```python
import torch

def _softmax(x, axis=-1):
    return torch.softmax(x, dim=axis)
def _gelu(x):
    return torch.nn.functional.gelu(x, approximate="tanh")
def _silu(x):
    return torch.nn.functional.silu(x)
def _sigmoid(x):
    return torch.sigmoid(x)
def _layernorm(x, axis=-1, eps=1e-5):
    m = x.mean(dim=axis, keepdim=True)
    v = x.var(dim=axis, keepdim=True, unbiased=False)
    return (x - m) / torch.sqrt(v + eps)
def _scatter_add(tgt, idx, src, axis=0):
    return tgt.clone().index_add_(axis, idx, src)
def _segment_sum(src, seg, n):
    out = torch.zeros((n,) + src.shape[1:], dtype=src.dtype)
    return out.index_add_(0, seg, src)
def _pad(x, pw):
    flat = tuple(v for pair in reversed(pw) for v in pair)
    return torch.nn.functional.pad(x, flat)

kernel_name = 'parallel_sum__mha_block__swiglu_ffn__prompt'

def setup_inputs():

    _w = (lambda a: (lambda t: t.to(torch.bfloat16) if t.is_floating_point() else t)(torch.as_tensor(a)))
    def _A_setup():
        B, S, D, H = 1, 2048, 512, 32
        return {
            "x": _w((lambda *s: torch.randn(*s, dtype=torch.bfloat16) * 0.05)(B, S, D)),
            "wqkv": _w((lambda *s: torch.randn(*s, dtype=torch.bfloat16) * 0.2)(D, 3 * D)),
            "wo": _w((lambda *s: torch.randn(*s, dtype=torch.bfloat16) * 0.1)(D, D)),
        }
    _A_in = _A_setup()

    def _B_setup():
        B, S, D, F = 1, 2048, 512, 1792
        return {
            "x": _w((lambda *s: torch.randn(*s, dtype=torch.bfloat16) * 0.05)(B, S, D)),
            "w_gate": _w((lambda *s: torch.randn(*s, dtype=torch.bfloat16) * 0.1)(D, F)),
            "w_up": _w((lambda *s: torch.randn(*s, dtype=torch.bfloat16) * 0.1)(D, F)),
            "w_down": _w((lambda *s: torch.randn(*s, dtype=torch.bfloat16) * 0.1)(F, D)),
        }
    _B_in = _B_setup()

    return {
        "A_x": _A_in["x"],
        "A_wqkv": _A_in["wqkv"],
        "A_wo": _A_in["wo"],
        "B_x": _B_in["x"],
        "B_w_gate": _B_in["w_gate"],
        "B_w_up": _B_in["w_up"],
        "B_w_down": _B_in["w_down"],
    }

def reference(A_x, A_wqkv, A_wo, B_x, B_w_gate, B_w_up, B_w_down):
    def _A_ref(x, wqkv, wo):
        B, S, D = x.shape
        H = 32
        Dh = D // H
        qkv = (lambda x, *d: x.permute(*d))((x @ wqkv).reshape(B, S, 3, H, Dh), 2, 0, 3, 1, 4)
        q, k, v = qkv[0], qkv[1], qkv[2]
        scores = torch.einsum("bhqd,bhkd->bhqk", q, k) * (Dh ** -0.5)
        p = _softmax(scores, axis=-1)
        o = torch.einsum("bhqk,bhkd->bhqd", p, v)
        return (lambda x, *d: x.permute(*d))(o, 0, 2, 1, 3).reshape(B, S, D) @ wo

    def _B_ref(x, w_gate, w_up, w_down):
        g = _silu(x @ w_gate)
        u = x @ w_up
        return (g * u) @ w_down

    x = A_x
    xn = _layernorm(x, axis=-1)
    return x + _A_ref(xn, A_wqkv, A_wo) + _B_ref(xn, B_w_gate, B_w_up, B_w_down)
```

```python
import re

class Asm:
    def __init__(self):
        self.lines = []
    def __call__(self, s):
        for ln in s.strip("\n").split("\n"):
            ln = ln.strip()
            if ln:
                self.lines.append("    " + ln if not ln.endswith(":") else ln)
    def label(self, name):
        self.lines.append(name + ":")
    def raw(self, s):
        self.lines.append(s)
    def nop(self, n):
        while n > 0:
            k = min(n, 16)
            self(f"s_nop {k-1}")
            n -= k
    def text(self):
        return "\n".join(self.lines) + "\n"

def vr(base, n=1):
    return f"v{base}" if n == 1 else f"v[{base}:{base+n-1}]"
def sr(base, n=1):
    return f"s{base}" if n == 1 else f"s[{base}:{base+n-1}]"

_REG = re.compile(r"\b([vsa])(\d+)\b|\b([vsa])\[(\d+):(\d+)\]|\b(vcc|exec|m0|scc)\b")
def regs_of(op):
    out = set()
    for m in _REG.finditer(op):
        if m.group(1):
            out.add((m.group(1), int(m.group(2))))
        elif m.group(3):
            for i in range(int(m.group(4)), int(m.group(5)) + 1):
                out.add((m.group(3), i))
        else:
            out.add((m.group(6), 0))
    return out

TRANS = ("v_exp_f32", "v_log_f32", "v_rcp_f32", "v_rsq_f32", "v_sqrt_f32", "v_sin_f32", "v_cos_f32", "v_exp_f16", "v_rcp_iflag_f32")

def parse(line):
    s = line.split(";")[0].strip()
    if not s or s.endswith(":") or s.startswith("."):
        return None
    parts = s.split(None, 1)
    op = parts[0]
    rest = parts[1] if len(parts) > 1 else ""
    ops = [o.strip() for o in re.split(r",(?![^\[]*\])", rest)] if rest else []
    d = dict(op=op, dst=set(), src=set(), kind="other", text=s, ops=ops)
    base = op.replace("_e32", "").replace("_e64", "").replace("_dpp", "").replace("_sdwa", "")
    d["base"] = base
    if op.startswith("v_mfma"):
        d["kind"] = "mfma"
        d["dst"] = regs_of(ops[0]); d["A"] = regs_of(ops[1]); d["B"] = regs_of(ops[2]); d["C"] = regs_of(ops[3].split()[0])
        d["src"] = d["A"] | d["B"] | d["C"]
        d["passes"] = 8 if "32x32" in op else 4
    elif op.startswith("v_cmp"):
        d["kind"] = "valu"
        d["dst"] = regs_of(ops[0]); d["src"] = set().union(*[regs_of(o) for o in ops[1:]])
        if op.startswith("v_cmpx"): d["dst"].add(("exec", 0))
    elif op.startswith("v_readfirstlane") or op.startswith("v_readlane"):
        d["kind"] = "valu"; d["rl"] = True
        d["dst"] = regs_of(ops[0]); d["src"] = set().union(*[regs_of(o) for o in ops[1:]])
    elif op.startswith("v_permlane"):
        d["kind"] = "valu"; d["perm"] = True
        d["dst"] = regs_of(ops[0]) | regs_of(ops[1]); d["src"] = set(d["dst"])
    elif op.startswith("v_"):
        d["kind"] = "valu"
        d["dst"] = regs_of(ops[0])
        rest_ops = ops[1:]
        if base in ("v_add_co_u32", "v_sub_co_u32", "v_addc_co_u32", "v_subb_co_u32", "v_subrev_co_u32", "v_div_scale_f32", "v_mad_u64_u32"):
            d["dst"] |= regs_of(ops[1]); rest_ops = ops[2:]
        d["src"] = set().union(*[regs_of(o) for o in rest_ops]) if rest_ops else set()
        if base in ("v_fmac_f32", "v_dot2c_f32_bf16", "v_writelane_b32", "v_pk_fmac_f16"):
            d["src"] |= regs_of(ops[0])
        if base == "v_cndmask_b32" and len(ops) == 3:
            d["src"].add(("vcc", 0))
        if "dpp" in s or "row_" in s or "quad_perm" in s: d["dpp"] = True
        if base in TRANS: d["trans"] = True
    elif op.startswith("buffer_") or op.startswith("global_") or op.startswith("flat_"):
        d["kind"] = "vmem"
        lds = (" lds" in (" " + s)) and op.startswith("buffer_") and s.rstrip().endswith("lds") or "_lds_" in op or re.search(r"\blds\b", s) is not None
        d["lds"] = lds
        if "load" in op and not lds:
            d["dst"] = regs_of(ops[0]); d["src"] = set().union(*[regs_of(o.split()[0]) for o in ops[1:]])
        elif "atomic" in op and ("sc0" in s):
            d["dst"] = regs_of(ops[0]); d["src"] = set().union(*[regs_of(o.split()[0]) for o in ops])
        else:
            d["src"] = set().union(*[regs_of(o.split()[0]) for o in ops])
            if "store" in op:
                d["store"] = True
                d["sdata"] = regs_of(ops[0]) if op.startswith("buffer_") else regs_of(ops[1])
                d["wide"] = ("x3" in op or "x4" in op)
        if lds: d["src"].add(("m0", 0))
    elif op.startswith("ds_"):
        d["kind"] = "ds"
        if op.startswith("ds_read") or op.startswith("ds_bpermute") or op.startswith("ds_swizzle") or op.startswith("ds_permute"):
            d["dst"] = regs_of(ops[0]); d["src"] = set().union(*[regs_of(o.split()[0]) for o in ops[1:]])
        else:
            d["src"] = set().union(*[regs_of(o.split()[0]) for o in ops])
    elif op == "s_nop":
        d["kind"] = "nop"; d["n"] = int(ops[0], 0) + 1
    elif op.startswith("s_"):
        d["kind"] = "salu"
        if op.startswith("s_cmp") or op.startswith("s_cbranch") or op.startswith("s_branch") or op.startswith("s_waitcnt") or op in ("s_barrier", "s_endpgm", "s_setprio", "s_sleep"):
            d["src"] = set().union(*[regs_of(o) for o in ops]) if ops else set()
        else:
            d["dst"] = regs_of(ops[0]) if ops else set()
            d["src"] = set().union(*[regs_of(o) for o in ops[1:]]) if len(ops) > 1 else set()
            if "saveexec" in op: d["dst"].add(("exec", 0))
    return d

def check_hazards(lines, name=""):
    ins = [p for p in (parse(l) for l in lines) if p is not None]
    probs = []
    for i, c in enumerate(ins):
        dist = 0
        for j in range(i - 1, max(-1, i - 40), -1):
            p = ins[j]
            need = 0; why = ""
            isv = lambda regs: {r for r in regs if r[0] in ("v", "a")}
            iss = lambda regs: {r for r in regs if r[0] == "s" or r[0] == "vcc"}
            if p["kind"] == "valu":
                wv = isv(p["dst"]); ws = iss(p["dst"])
                if c["kind"] == "mfma" and wv & c["src"]:
                    need, why = 2, "VALU->MFMA src"
                if c["kind"] == "valu" and p.get("trans") and not c.get("trans") and wv & c["src"]:
                    need, why = max(need, 1), "trans->VALU"
                if c["kind"] == "valu" and p.get("trans") and c.get("trans") and wv & c["src"]:
                    need, why = max(need, 1), "trans->trans(pad anyway)"
                if c["kind"] in ("vmem", "ds") and p.get("trans") and wv & c["src"]:
                    need, why = max(need, 1), "trans->mem"
                if c.get("rl") and wv & c["src"]:
                    need, why = max(need, 1), "VALU->readlane"
                if c.get("perm") and wv & c["src"]:
                    need, why = max(need, 2), "VALU->permlane"
                if c.get("dpp") and wv & c["src"]:
                    need, why = max(need, 2), "VALU->DPP"
                if c["kind"] == "valu" and ws & c["src"]:
                    need, why = max(need, 2), "VALU sgpr->VALU"
                if c["kind"] == "vmem" and ws & c["src"]:
                    need, why = max(need, 5), "VALU sgpr->VMEM"
                if ("exec", 0) in p["dst"] and c["kind"] in ("mfma",):
                    need, why = max(need, 4), "VALU exec->MFMA"
            if p["kind"] == "mfma":
                n = {4: 8, 8: 12}[p["passes"]]
                if c["kind"] == "mfma":
                    if p["dst"] & (c["A"] | c["B"]):
                        need, why = n, "MFMA D->MFMA A/B"
                    elif p["dst"] & c["C"] and not (p["dst"] == c["C"] and p["passes"] == c["passes"]):
                        need, why = n - 2, "MFMA D->MFMA C overlap"
                elif c["kind"] in ("valu", "vmem", "ds") and p["dst"] & (c["src"] | c["dst"]):
                    need, why = n, "MFMA D->VALU/MEM"
                if c["kind"] == "valu" and p["C"] & c["dst"] and not (p["dst"] & c["dst"]):
                    w = {4: 3, 8: 7}[p["passes"]]
                    if w > need: need, why = w, "MFMA C read->VALU write"
            if p["kind"] == "salu" and ("m0", 0) in p["dst"] and c.get("lds"):
                need, why = max(need, 1), "m0->LDS DMA"
            if p.get("store") and p.get("wide") and c["kind"] in ("valu", "mfma") and p["sdata"] & c["dst"]:
                need, why = max(need, 2), "store data WAR"
            if p.get("store") and p.get("wide") and c["kind"] in ("vmem", "ds") and p["sdata"] & c["dst"]:
                need, why = max(need, 1), "store data WAR(load)"
            if need > dist:
                probs.append(f"{name}: [{why}] need {need} have {dist}: '{p['text']}' -> '{c['text']}'")
            dist += p["n"] if p["kind"] == "nop" else 1
            if dist >= 20: break
    return probs
```

```python
import sys, math, struct
from asmlib import *

def f2h(x):
    return "0x%08x" % struct.unpack("<I", struct.pack("<f", x))[0]

WS_XNF = 0
WS_QH = 2 << 20
WS_KH = 4 << 20
WS_VT = 6 << 20
WS_AF = 8 << 20
WS_NREC = 32 << 20
LOG2E = math.log2(math.e)
QSCALE = 0.25 * LOG2E

HEADER = """; Kernarg layout for this problem (80 bytes, ptrs only, base s[0:1]):
"""

def kernarg(a):
    a("s_load_dwordx16 s[16:31], s[0:1], 0")
    a("s_load_dwordx2 s[32:33], s[0:1], 72")

def srd(a, d, base, nrec):
    a(f"s_mov_b32 s{d}, s{base}")
    a(f"s_mov_b32 s{d+1}, s{base+1}")
    a(f"s_mov_b32 s{d+2}, {nrec}")
    a(f"s_mov_b32 s{d+3}, 0x00020000")

def begin(a, name, nwg):
    a.raw(f".globl {name}")
    a.raw(".p2align 8")
    a.raw(f".type {name},@function")
    a.label(name)
    a(f"s_cmp_ge_u32 s2, {nwg}")
    a(f"s_cbranch_scc1 {name}_done")

def end(a, name):
    a.label(f"{name}_done")
    a("s_endpgm")

def descriptor(name, nv, ns=102):
    acc = (nv + 3) // 4 * 4
    return f""".amdhsa_kernel {name}
  .amdhsa_next_free_vgpr {nv}
  .amdhsa_next_free_sgpr {ns}
  .amdhsa_accum_offset {acc}
  .amdhsa_group_segment_fixed_size 0
  .amdhsa_kernarg_size 80
  .amdhsa_user_sgpr_count 2
  .amdhsa_user_sgpr_kernarg_segment_ptr 1
  .amdhsa_system_sgpr_workgroup_id_x 1
.end_amdhsa_kernel
"""

def allreduce_add(a, v, t):
    for off in (0x041F, 0x081F, 0x101F, 0x201F, 0x401F):
        a(f"ds_swizzle_b32 v{t}, v{v} offset:{off}")
        a("s_waitcnt lgkmcnt(0)")
        a(f"v_add_f32 v{v}, v{v}, v{t}")
    a(f"v_mov_b32 v{t}, v{v}")
    a("s_nop 1")
    a(f"v_permlane32_swap_b32 v{t}, v{v}")
    a("s_nop 1")
    a(f"v_add_f32 v{v}, v{v}, v{t}")

def round_bf16(a, v, t):
    a(f"v_cvt_pk_bf16_f32 v{t}, v{v}, v{v}")
    a(f"v_lshlrev_b32 v{v}, 16, v{t}")

def gen_ln(a):
    name = "ln_kernel"
    begin(a, name, 512)
    kernarg(a)
    a("v_and_b32 v1, 63, v0")
    a("v_lshrrev_b32 v2, 6, v0")
    a("s_lshl_b32 s3, s2, 2")
    a("v_add_u32 v3, s3, v2")
    a("v_lshlrev_b32 v4, 10, v3")
    a("v_lshl_add_u32 v4, v1, 4, v4")
    a("s_waitcnt lgkmcnt(0)")
    srd(a, 36, 16, 2048 * 1024)
    srd(a, 40, 32, WS_NREC)
    a("buffer_load_dwordx4 v[8:11], v4, s[36:39], 0 offen")
    a("v_lshrrev_b32 v5, 5, v3")
    a("v_lshlrev_b32 v5, 5, v5")
    a("v_lshrrev_b32 v6, 1, v1")
    a("v_add_u32 v5, v5, v6")
    a("v_lshlrev_b32 v5, 6, v5")
    a("v_and_b32 v6, 1, v1")
    a("v_lshl_add_u32 v5, v6, 5, v5")
    a("v_and_b32 v6, 31, v3")
    a("v_add_u32 v5, v5, v6")
    a("v_lshlrev_b32 v5, 4, v5")
    a("s_waitcnt vmcnt(0)")
    for i in range(4):
        a(f"v_lshlrev_b32 v{12+2*i}, 16, v{8+i}")
        a(f"v_and_b32 v{13+2*i}, 0xffff0000, v{8+i}")
    a("v_add_f32 v20, v12, v13")
    for i in range(2, 8):
        a(f"v_add_f32 v20, v20, v{12+i}")
    allreduce_add(a, 20, 21)
    a(f"v_mul_f32 v20, {f2h(1.0/512)}, v20")
    a("v_sub_f32 v22, v12, v20")
    a("v_mul_f32 v23, v22, v22")
    for i in range(1, 8):
        a(f"v_sub_f32 v22, v{12+i}, v20")
        a("v_fmac_f32 v23, v22, v22")
    allreduce_add(a, 23, 21)
    a(f"v_mul_f32 v23, {f2h(1.0/512)}, v23")
    round_bf16(a, 20, 21)
    round_bf16(a, 23, 21)
    a(f"v_add_f32 v23, {f2h(1e-5)}, v23")
    round_bf16(a, 23, 21)
    a("v_sqrt_f32 v23, v23")
    a("s_nop 0")
    round_bf16(a, 23, 21)
    a("v_rcp_f32 v23, v23")
    for i in range(8):
        a(f"v_sub_f32 v{12+i}, v{12+i}, v20")
    for i in range(4):
        a(f"v_cvt_pk_bf16_f32 v{8+i}, v{12+2*i}, v{13+2*i}")
    for i in range(4):
        a(f"v_lshlrev_b32 v{12+2*i}, 16, v{8+i}")
        a(f"v_and_b32 v{13+2*i}, 0xffff0000, v{8+i}")
    for i in range(8):
        a(f"v_mul_f32 v{12+i}, v{12+i}, v23")
    for i in range(4):
        a(f"v_cvt_pk_bf16_f32 v{8+i}, v{12+2*i}, v{13+2*i}")
    a(f"buffer_store_dwordx4 v[8:11], v5, s[40:43], 0 offen")
    end(a, name)
    return name, 32

def gen_gemm1(a):
    name = "gemm1_kernel"
    begin(a, name, 256)
    kernarg(a)
    ACC, XN, WF, DA, DS = 176, 112, 72, 40, 50
    a("v_and_b32 v1, 63, v0")
    a("v_lshrrev_b32 v2, 6, v0")
    a("s_and_b32 s3, s2, 7")
    a("v_readfirstlane_b32 s40, v2")
    a("s_lshr_b32 s4, s2, 3")
    a("s_and_b32 s5, s3, 1")
    a("s_lshl_b32 s5, s5, 2")
    a("s_and_b32 s6, s4, 3")
    a("s_add_u32 s41, s5, s6")
    a("s_lshr_b32 s5, s3, 1")
    a("s_lshl_b32 s5, s5, 3")
    a("s_lshr_b32 s6, s4, 2")
    a("s_add_u32 s42, s5, s6")
    a("s_lshl_b32 s5, s42, 2")
    a("s_mul_i32 s6, s42, 5")
    a("s_sub_u32 s6, s6, 16")
    a("s_add_u32 s7, s42, 144")
    a("s_add_u32 s8, s6, 4")
    a("s_cmp_lt_u32 s42, 16")
    a("s_cselect_b32 s44, s5, s6")
    a("s_cselect_b32 s48, s7, s8")
    a("s_add_u32 s45, s44, 1")
    a("s_add_u32 s46, s44, 2")
    a("s_add_u32 s47, s44, 3")
    a("s_lshl_b32 s43, s41, 3")
    a("s_add_u32 s43, s43, s40")
    a("s_waitcnt lgkmcnt(0)")
    srd(a, 36, 32, WS_NREC)
    a("s_lshl_b32 s9, s40, 4")
    a("s_movk_i32 s10, 205")
    a("s_movk_i32 s11, 3072")
    a("s_movk_i32 s12, 3584")
    for i in range(5):
        lo, hi, st = DA + 2 * i, DA + 2 * i + 1, DS + i
        a(f"v_add_u32 v3, {64*i}, v1")
        a("v_mul_lo_u32 v4, v3, s10")
        a("v_lshrrev_b32 v4, 14, v4")
        a("v_mul_u32_u24 v5, 80, v4")
        a("v_sub_u32 v5, v3, v5")
        a("v_lshrrev_b32 v6, 4, v5")
        a("v_bfe_u32 v7, v5, 2, 2")
        a("v_and_b32 v8, 3, v5")
        a("v_lshl_add_u32 v7, v4, 2, v7")
        a("v_add_u32 v7, s9, v7")
        a("v_add_u32 v9, s44, v6")
        a("v_mov_b32 v10, s48")
        a("v_cmp_eq_u32 vcc, 4, v6")
        a("s_nop 1")
        a("v_cndmask_b32 v9, v9, v10, vcc")
        a("v_subrev_u32 v10, 112, v9")
        a("v_cmp_gt_u32 vcc, 32, v9")
        a("s_nop 1")
        a("v_cndmask_b32 v10, v10, v9, vcc")
        a("v_lshlrev_b32 v10, 6, v10")
        a("v_lshl_add_u32 v10, v8, 4, v10")
        a("v_mul_lo_u32 v11, v7, s11")
        a("v_add_u32 v10, v10, v11")
        a("v_subrev_u32 v11, 32, v9")
        a("v_lshlrev_b32 v12, 5, v11")
        a("v_and_b32 v13, 1, v8")
        a("v_lshl_add_u32 v12, v13, 4, v12")
        a("v_mul_lo_u32 v13, v7, s12")
        a("v_add_u32 v12, v12, v13")
        a("v_mov_b32 v13, s24")
        a("v_mov_b32 v14, s25")
        a("v_mov_b32 v15, s26")
        a("v_mov_b32 v16, s27")
        a("v_cmp_gt_u32 vcc, 2, v8")
        a("s_nop 1")
        a("v_cndmask_b32 v13, v15, v13, vcc")
        a("v_cndmask_b32 v14, v16, v14, vcc")
        a("v_mov_b32 v15, s18")
        a("v_mov_b32 v16, s19")
        a(f"v_mov_b32 v17, {128*3072}")
        a(f"v_mov_b32 v18, {128*3584}")
        a("v_cmp_gt_u32 vcc, 112, v11")
        a("s_nop 1")
        a("v_cndmask_b32 v13, v15, v13, vcc")
        a("v_cndmask_b32 v14, v16, v14, vcc")
        a("v_cndmask_b32 v10, v10, v12, vcc")
        a(f"v_cndmask_b32 v{st}, v17, v18, vcc")
        a(f"v_add_co_u32 v{lo}, vcc, v13, v10")
        a("s_nop 1")
        a(f"v_addc_co_u32 v{hi}, vcc, 0, v14, vcc")
    a("v_lshlrev_b32 v2, 4, v1")
    a("s_lshl_b32 s50, s43, 15")
    a("s_mul_i32 s51, s40, 5120")
    def dma_group(c):
        for i in range(5):
            lo, hi, st = DA + 2 * i, DA + 2 * i + 1, DS + i
            a(f"s_add_u32 m0, s51, {c*40960 + i*1024}")
            a("s_nop 0")
            a(f"global_load_lds_dwordx4 v[{lo}:{hi}], off")
            if c < 3:
                a(f"v_add_co_u32 v{lo}, vcc, v{st}, v{lo}")
                a("s_nop 1")
                a(f"v_addc_co_u32 v{hi}, vcc, 0, v{hi}, vcc")
    def xn_group(c):
        for k in range(8):
            ks = 8 * c + k
            if ks % 4 == 0:
                a(f"s_add_u32 s52, s50, {ks*1024}")
            r = XN + (ks % 16) * 4
            a(f"buffer_load_dwordx4 v[{r}:{r+3}], v2, s[36:39], s52 offen offset:{(ks%4)*1024}")
    dma_group(0); xn_group(0); dma_group(1); xn_group(1); dma_group(2); dma_group(3)
    a("v_lshrrev_b32 v3, 5, v1")
    a("v_mul_u32_u24 v3, 2560, v3")
    a("v_bfe_u32 v4, v1, 2, 2")
    a("v_lshl_add_u32 v3, v4, 6, v3")
    a("v_bfe_u32 v4, v1, 4, 1")
    a("v_lshl_add_u32 v3, v4, 5, v3")
    a("v_and_b32 v4, 3, v1")
    a("v_lshl_add_u32 v3, v4, 3, v3")
    for i in range(80):
        a(f"v_mov_b32 v{ACC+i}, 0")
    a("s_cmp_lt_u32 s42, 16")
    a(f"s_cbranch_scc1 {name}_mainV")
    waits = [23, 18, 8, 0]
    def main(withV):
        for c in range(4):
            a(f"s_waitcnt vmcnt({waits[c]})")
            a("s_barrier")
            def rd(k, u):
                b = WF + (k % 2) * 20 + u * 4
                off = k * 5120 + u * 256
                a(f"ds_read_b64_tr_b16 v[{b}:{b+1}], v3 offset:{off}")
                a(f"ds_read_b64_tr_b16 v[{b+2}:{b+3}], v3 offset:{off+1280}")
            for u in range(5):
                rd(0, u)
            for k in range(8):
                ks = 8 * c + k
                x = XN + (ks % 16) * 4
                for u in range(5):
                    if k < 7:
                        rd(k + 1, u)
                        a("s_waitcnt lgkmcnt(10)")
                    else:
                        a(f"s_waitcnt lgkmcnt({2*(4-u)})")
                    w = WF + (k % 2) * 20 + u * 4
                    d = ACC + u * 16
                    if withV and u == 4:
                        a(f"v_mfma_f32_32x32x16_bf16 v[{d}:{d+15}], v[{x}:{x+3}], v[{w}:{w+3}], v[{d}:{d+15}]")
                    else:
                        a(f"v_mfma_f32_32x32x16_bf16 v[{d}:{d+15}], v[{w}:{w+3}], v[{x}:{x+3}], v[{d}:{d+15}]")
            if c < 2:
                xn_group(c + 2)
            if c < 3:
                a("v_add_u32 v3, 40960, v3")
    main(False)
    a(f"s_branch {name}_epi")
    a.label(f"{name}_mainV")
    main(True)
    a.label(f"{name}_epi")
    a("v_and_b32 v4, 31, v1")
    a("v_lshrrev_b32 v5, 5, v1")
    a("v_lshlrev_b32 v6, 5, v4")
    a("v_lshl_add_u32 v6, v5, 4, v6")
    a("v_bfe_u32 v7, v1, 4, 1")
    a("v_lshlrev_b32 v7, 16, v7")
    a("v_lshl_add_u32 v7, v5, 8, v7")
    a("v_and_b32 v8, 15, v1")
    a("v_lshl_add_u32 v7, v8, 4, v7")
    a("s_lshl_b32 s53, s43, 10")
    a("s_mul_i32 s54, s43, 144")
    a(f"s_mov_b32 s55, {f2h(QSCALE)}")
    a(f"s_mov_b32 s56, {f2h(-LOG2E)}")
    a.nop(12)
    for u in range(5):
        d = ACC + u * 16
        su = 44 + u
        L = f"{name}_e{u}"
        a(f"s_cmp_lt_u32 s{su}, 32")
        a(f"s_cbranch_scc1 {L}_qk")
        a(f"s_cmp_lt_u32 s{su}, 144")
        a(f"s_cbranch_scc1 {L}_ffn")
        for i in range(8):
            a(f"v_cvt_pk_bf16_f32 v{WF+i}, v{d+2*i}, v{d+2*i+1}")
        a(f"s_sub_u32 s57, s{su}, 144")
        a("s_lshl_b32 s57, s57, 17")
        a("s_add_u32 s57, s57, s53")
        a(f"s_add_u32 s57, s57, {WS_VT}")
        a(f"buffer_store_dwordx4 v[{WF}:{WF+3}], v7, s[36:39], s57 offen")
        a(f"buffer_store_dwordx4 v[{WF+4}:{WF+7}], v7, s[36:39], s57 offen offset:512")
        a(f"s_branch {L}_end")
        a.label(f"{L}_qk")
        a(f"s_cmp_lt_u32 s{su}, 16")
        a(f"s_cselect_b32 s58, s55, 1.0")
        for i in range(16):
            a(f"v_mul_f32 v{d+i}, s58, v{d+i}")
        for i in range(8):
            a(f"v_cvt_pk_bf16_f32 v{WF+i}, v{d+2*i}, v{d+2*i+1}")
        a(f"s_lshl_b32 s57, s{su}, 17")
        a("s_add_u32 s57, s57, s53")
        a(f"s_add_u32 s57, s57, {WS_QH}")
        a(f"s_add_u32 s59, s57, 65536")
        a(f"buffer_store_dwordx4 v[{WF}:{WF+3}], v6, s[36:39], s57 offen")
        a(f"buffer_store_dwordx4 v[{WF+4}:{WF+7}], v6, s[36:39], s59 offen")
        a(f"s_branch {L}_end")
        a.label(f"{L}_ffn")
        T = WF + 8
        for i in range(8):
            a(f"v_mul_f32 v{T+i}, s56, v{d+i}")
        for i in range(8):
            a(f"v_exp_f32 v{T+i}, v{T+i}")
        for i in range(8):
            a(f"v_add_f32 v{T+i}, 1.0, v{T+i}")
        for i in range(8):
            a(f"v_rcp_f32 v{T+i}, v{T+i}")
        for i in range(8):
            a(f"v_mul_f32 v{d+i}, v{d+i}, v{d+8+i}")
        for i in range(8):
            a(f"v_mul_f32 v{d+i}, v{d+i}, v{T+i}")
        for i in range(4):
            a(f"v_cvt_pk_bf16_f32 v{WF+i}, v{d+2*i}, v{d+2*i+1}")
        a(f"s_add_u32 s57, s54, s{su}")
        a("s_lshl_b32 s57, s57, 10")
        a(f"s_add_u32 s57, s57, {WS_AF}")
        a(f"buffer_store_dwordx4 v[{WF}:{WF+3}], v2, s[36:39], s57 offen")
        a.label(f"{L}_end")
        a("s_nop 1")
    end(a, name)
    return name, 256

RESCALE_T = 40
NINIT = 2
def gen_attn(a):
    name = "attn_kernel"
    begin(a, name, 256)
    kernarg(a)
    Q = {"A": 4, "B": 8}
    NEG = {"A": 16, "B": 32}
    S = {"A": 48, "B": 64}
    O = {"A": 80, "B": 96}
    P = {"A": 112, "B": 120}
    RING = 128
    T0 = 176
    Kf = lambda s: RING + 12 * s
    V0 = lambda s: RING + 12 * s + 4
    V1 = lambda s: RING + 12 * s + 8
    mf = lambda d, x, y, c: a(f"v_mfma_f32_32x32x16_bf16 v[{d}:{d+15}], v[{x}:{x+3}], v[{y}:{y+3}], " + (f"v[{c}:{c+15}]" if c is not None else "0"))
    a("v_and_b32 v1, 63, v0")
    a("v_lshrrev_b32 v2, 6, v0")
    a("s_and_b32 s3, s2, 7")
    a("v_readfirstlane_b32 s40, v2")
    a("s_lshr_b32 s4, s2, 3")
    a("s_and_b32 s5, s4, 3")
    a("s_lshl_b32 s3, s3, 2")
    a("s_add_u32 s41, s3, s5")
    a("s_lshr_b32 s42, s4, 2")
    a("s_lshl_b32 s42, s42, 3")
    a("s_lshl_b32 s5, s40, 1")
    a("s_add_u32 s42, s42, s5")
    a("v_and_b32 v12, 31, v1")
    a("v_lshrrev_b32 v13, 5, v1")
    a("v_lshlrev_b32 v2, 5, v12")
    a("v_lshl_add_u32 v2, v13, 4, v2")
    a("v_lshlrev_b32 v3, 8, v13")
    a("v_and_b32 v14, 15, v1")
    a("v_lshl_add_u32 v3, v14, 4, v3")
    a(f"v_add_u32 v3, {WS_VT-WS_KH}, v3")
    a("s_mov_b32 s44, 0x0000ffff")
    a("s_mov_b32 s45, 0x0000ffff")
    a("s_lshl_b32 s46, s41, 16")
    a("s_lshl_b32 s47, s42, 10")
    a("s_add_u32 s47, s47, s46")
    a(f"s_add_u32 s47, s47, {WS_QH}")
    a(f"s_add_u32 s46, s46, {WS_KH}")
    a("s_waitcnt lgkmcnt(0)")
    srd(a, 36, 32, WS_NREC)
    a(f"buffer_load_dwordx4 v[{Q['A']}:{Q['A']+3}], v2, s[36:39], s47 offen")
    a(f"buffer_load_dwordx4 v[{Q['B']}:{Q['B']+3}], v2, s[36:39], s47 offen offset:1024")
    a("v_mov_b32 v14, 0x3f803f80")
    a("v_cmp_eq_u32 vcc, 16, v12")
    a("s_nop 1")
    a("v_cndmask_b32 v14, 0, v14, vcc")
    for s in range(4):
        for i in range(8):
            a(f"v_mov_b32 v{V0(s)+i}, v14")
    def loads(slot, soff, imm):
        a(f"buffer_load_dwordx4 v[{Kf(slot)}:{Kf(slot)+3}], v2, s[36:39], {soff} offen offset:{imm}")
        a("s_mov_b64 exec, s[44:45]")
        a(f"buffer_load_dwordx4 v[{V0(slot)}:{V0(slot)+3}], v3, s[36:39], {soff} offen offset:{imm}")
        a(f"buffer_load_dwordx4 v[{V1(slot)}:{V1(slot)+3}], v3, s[36:39], {soff} offen offset:{imm+512}")
        a("s_mov_b64 exec, -1")
    for t in range(3):
        loads(t, "s46", t * 1024)
    for X in "AB":
        for i in range(16):
            a(f"v_mov_b32 v{O[X]+i}, 0")
        for i in range(8):
            a(f"v_mov_b32 v{P[X]+i}, 0")
    a(f"s_mov_b32 s48, {f2h(2.0**RESCALE_T)}")
    a("s_mov_b32 s49, 0")
    a(f"s_waitcnt vmcnt({9-3*(NINIT-1)-1})")
    for X in "AB":
        mf(S[X], Kf(0), Q[X], None)
        mf(NEG[X], Kf(1), Q[X], None)
    a.nop(14)
    for X in "AB":
        m = T0
        a(f"v_max3_f32 v{m}, v{S[X]}, v{S[X]+1}, v{S[X]+2}")
        for i in range(3, 15, 2):
            a(f"v_max3_f32 v{m}, v{m}, v{S[X]+i}, v{S[X]+i+1}")
        a(f"v_max3_f32 v{m}, v{m}, v{S[X]+15}, v{NEG[X]}")
        for i in range(1, 15, 2):
            a(f"v_max3_f32 v{m}, v{m}, v{NEG[X]+i}, v{NEG[X]+i+1}")
        a(f"v_max_f32 v{m}, v{m}, v{NEG[X]+15}")
        a(f"v_mov_b32 v{m+1}, v{m}")
        a("s_nop 1")
        a(f"v_permlane32_swap_b32 v{m+1}, v{m}")
        a("s_nop 1")
        a(f"v_max_f32 v{m}, v{m}, v{m+1}")
        for i in range(16):
            a(f"v_sub_f32 v{NEG[X]+i}, 0, v{m}")
    a("s_nop 1")
    mf(S["A"], Kf(0), Q["A"], NEG["A"])
    a("s_add_u32 s50, s46, 3072")
    a("s_mov_b32 s51, 16")
    a.nop(10)
    a.raw(".p2align 6")
    a.label(f"{name}_loop")
    def half(X, tt):
        Y = "B" if X == "A" else "A"
        x, p = S[X], P[X]
        e = lambda i: a(f"v_exp_f32 v{x+i}, v{x+i}")
        c = lambda i: a(f"v_cvt_pk_bf16_f32 v{p+i}, v{x+2*i}, v{x+2*i+1}")
        e(0); e(1)
        ty = (tt - 1) % 4 if X == "A" else tt
        mf(O[Y], V1(ty), P[Y] + 4, O[Y])
        if X == "A":
            loads((tt + 3) % 4, "s50", tt * 1024)
        e(2); e(3); c(0); e(4); e(5); c(1)
        if X == "B":
            a("s_waitcnt vmcnt(6)")
        tk = tt if X == "A" else (tt + 1) % 4
        mf(S[Y], Kf(tk), Q[Y], NEG[Y])
        e(6); e(7); c(2); e(8); c(3); e(9); e(10)
        mf(O[X], V0(tt), p, O[X])
        c(4); e(11); e(12); c(5); e(13); e(14); e(15); c(6); c(7)
        if (X == "A" and tt == 1) or (X == "B" and tt == 3):
            a(f"v_cmp_nge_f32 vcc, s48, v{O[Y]+8}")
            a(f"s_cbranch_vccnz {name}_rare{Y}")
            a.label(f"{name}_ret{Y}")
    for tt in range(4):
        half("A", tt)
        half("B", tt)
    a("s_add_u32 s50, s50, 4096")
    a("s_sub_u32 s51, s51, 1")
    a("s_cmp_lg_u32 s51, 0")
    a(f"s_cbranch_scc1 {name}_loop")
    a("s_nop 1")
    mf(O["B"], V1(3), P["B"] + 4, O["B"])
    a.label(f"{name}_fin")
    a.nop(14)
    a(f"v_mov_b32 v{T0}, 0")
    for X in "AB":
        for i in range(9):
            a(f"v_fma_f32 v{T0}, v{O[X]+i}, 0, v{T0}")
    a(f"v_cmp_u_f32 vcc, v{T0}, v{T0}")
    a("s_cmp_eq_u32 s49, 0")
    a("s_cselect_b64 s[52:53], vcc, 0")
    a("s_cmp_lg_u64 s[52:53], 0")
    a(f"s_cbranch_scc1 {name}_safe")
    a("s_mul_i32 s52, s42, 144")
    a("s_add_u32 s52, s52, s41")
    a("s_lshl_b32 s52, s52, 10")
    a(f"s_add_u32 s52, s52, {WS_AF}")
    a(f"s_add_u32 s53, s52, {144*1024}")
    a("v_lshlrev_b32 v12, 4, v1")
    for X in "AB":
        l = O[X] + 8
        a(f"v_mov_b32 v{T0}, v{l}")
        a("s_nop 1")
        a(f"v_permlane32_swap_b32 v{T0}, v{l}")
        a("s_nop 1")
        a(f"v_rcp_f32 v{T0}, v{T0}")
        a("s_nop 0")
        for i in range(8):
            a(f"v_mul_f32 v{O[X]+i}, v{O[X]+i}, v{T0}")
        for i in range(4):
            a(f"v_cvt_pk_bf16_f32 v{P[X]+i}, v{O[X]+2*i}, v{O[X]+2*i+1}")
        a(f"buffer_store_dwordx4 v[{P[X]}:{P[X]+3}], v12, s[36:39], {'s52' if X=='A' else 's53'} offen")
    a("s_endpgm")
    for Y in "AB":
        a.label(f"{name}_rare{Y}")
        a.nop(16)
        l = O[Y] + 8
        a(f"v_cmp_class_f32 vcc, v{l}, v15" if False else f"v_mov_b32 v{T0+2}, 0x207")
        a(f"v_cmp_class_f32 vcc, v{l}, v{T0+2}")
        a(f"s_cbranch_vccnz {name}_safe")
        a(f"v_frexp_exp_i32_f32 v{T0}, v{l}")
        a(f"v_max_i32 v{T0}, 0, v{T0}")
        a(f"v_mov_b32 v{T0+1}, v{T0}")
        a("s_nop 1")
        a(f"v_permlane32_swap_b32 v{T0}, v{T0+1}")
        a("s_nop 1")
        a(f"v_cvt_f32_i32 v{T0+1}, v{T0}")
        a(f"v_sub_u32 v{T0}, 0, v{T0}")
        for i in range(9):
            a(f"v_ldexp_f32 v{O[Y]+i}, v{O[Y]+i}, v{T0}")
        for i in range(16):
            a(f"v_sub_f32 v{NEG[Y]+i}, v{NEG[Y]+i}, v{T0+1}")
        for i in range(16):
            a(f"v_sub_f32 v{S[Y]+i}, v{S[Y]+i}, v{T0+1}")
        a("s_nop 1")
        a(f"s_branch {name}_ret{Y}")
    a.label(f"{name}_safe")
    a("s_waitcnt vmcnt(0)")
    a.nop(16)
    a("s_mov_b32 s49, 1")
    M = {"A": NEG["A"], "B": NEG["B"]}
    for X in "AB":
        for i in range(16):
            a(f"v_mov_b32 v{O[X]+i}, 0")
        a(f"v_mov_b32 v{M[X]}, 0xff800000")
    a("s_mov_b32 s50, s46")
    a("s_mov_b32 s51, 64")
    a.label(f"{name}_sloop")
    loads(0, "s50", 0)
    a("s_waitcnt vmcnt(0)")
    for X in "AB":
        mf(S[X], Kf(0), Q[X], None)
    a.nop(16)
    for X in "AB":
        x, p, m = S[X], P[X], M[X]
        a(f"v_max3_f32 v{T0}, v{x}, v{x+1}, v{x+2}")
        for i in range(3, 15, 2):
            a(f"v_max3_f32 v{T0}, v{T0}, v{x+i}, v{x+i+1}")
        a(f"v_max_f32 v{T0}, v{T0}, v{x+15}")
        a(f"v_mov_b32 v{T0+1}, v{T0}")
        a("s_nop 1")
        a(f"v_permlane32_swap_b32 v{T0+1}, v{T0}")
        a("s_nop 1")
        a(f"v_max3_f32 v{T0}, v{T0}, v{T0+1}, v{m}")
        a(f"v_sub_f32 v{T0+1}, v{m}, v{T0}")
        a(f"v_exp_f32 v{T0+1}, v{T0+1}")
        a(f"v_mov_b32 v{m}, v{T0}")
        for i in range(9):
            a(f"v_mul_f32 v{O[X]+i}, v{O[X]+i}, v{T0+1}")
        for i in range(16):
            a(f"v_sub_f32 v{x+i}, v{x+i}, v{T0}")
        for i in range(16):
            a(f"v_exp_f32 v{x+i}, v{x+i}")
        a("s_nop 0")
        for i in range(8):
            a(f"v_cvt_pk_bf16_f32 v{p+i}, v{x+2*i}, v{x+2*i+1}")
        a("s_nop 1")
        mf(O[X], V0(0), p, O[X])
        mf(O[X], V1(0), p + 4, O[X])
    a.nop(16)
    a("s_add_u32 s50, s50, 1024")
    a("s_sub_u32 s51, s51, 1")
    a("s_cmp_lg_u32 s51, 0")
    a(f"s_cbranch_scc1 {name}_sloop")
    a(f"s_branch {name}_fin")
    end(a, name)
    return name, 192

def gen_gemm2(a):
    name = "gemm2_kernel"
    begin(a, name, 256)
    kernarg(a)
    D = 8
    NK = 36
    ACC, AR, WF = 64, 128, 32
    a("v_and_b32 v1, 63, v0")
    a("v_lshrrev_b32 v2, 6, v0")
    a("s_and_b32 s3, s2, 7")
    a("v_readfirstlane_b32 s40, v2")
    a("s_lshr_b32 s4, s2, 3")
    a("s_lshl_b32 s5, s3, 2")
    a("s_and_b32 s6, s4, 3")
    a("s_add_u32 s41, s5, s6")
    a("s_lshr_b32 s42, s4, 2")
    a("s_waitcnt lgkmcnt(0)")
    srd(a, 36, 32, WS_NREC)
    srd(a, 44, 28, 1792 * 1024)
    srd(a, 48, 20, 512 * 1024)
    a("s_cmp_eq_u32 s40, 0")
    a("s_cselect_b32 s48, s48, s44")
    a("s_cselect_b32 s49, s49, s45")
    a("s_cselect_b32 s50, s50, s46")
    a("s_mul_i32 s52, s40, 36")
    a("s_sub_u32 s53, s52, 32")
    a("s_cselect_b32 s53, 0, s53")
    a("s_cmp_eq_u32 s40, 0")
    a("s_sub_u32 s53, s52, 32")
    a("s_cmp_eq_u32 s40, 0")
    a("s_cselect_b32 s53, 0, s53")
    a("s_lshl_b32 s53, s53, 14")
    a("s_lshl_b32 s54, s41, 1")
    a("s_mul_i32 s54, s54, 144")
    a("s_add_u32 s54, s54, s52")
    a("s_lshl_b32 s54, s54, 10")
    a(f"s_add_u32 s54, s54, {WS_AF}")
    a(f"s_add_u32 s55, s54, {144*1024}")
    a(f"s_mul_i32 s56, s40, {D*2048}")
    a("v_lshlrev_b32 v2, 4, v1")
    a("v_lshrrev_b32 v3, 5, v1")
    a("v_lshlrev_b32 v4, 2, v3")
    a("v_bfe_u32 v5, v1, 2, 2")
    a("v_add_u32 v4, v4, v5")
    a("v_lshlrev_b32 v4, 10, v4")
    a("v_bfe_u32 v6, v1, 4, 1")
    a("v_lshl_add_u32 v4, v6, 6, v4")
    a("v_and_b32 v7, 3, v1")
    a("v_lshl_add_u32 v4, v7, 4, v4")
    a("s_lshl_b32 s57, s42, 7")
    a("v_add_u32 v4, s57, v4")
    a("v_lshlrev_b32 v8, 9, v3")
    a("v_lshl_add_u32 v8, v5, 6, v8")
    a("v_lshl_add_u32 v8, v6, 5, v8")
    a("v_lshl_add_u32 v8, v7, 3, v8")
    a("v_add_u32 v8, s56, v8")
    def loads(i):
        s = i % D
        if i == 32:
            a("s_cmp_eq_u32 s40, 0")
            a("s_cselect_b32 s48, s44, s48")
            a("s_cselect_b32 s49, s45, s49")
            a("s_cselect_b32 s50, s46, s50")
            a("s_cselect_b32 s53, 0, s53")
        a(f"s_add_u32 m0, s56, {s*2048}")
        a("s_add_u32 s58, s53, 8192")
        a("buffer_load_dwordx4 v4, s[48:51], s53 offen lds")
        a(f"s_add_u32 m0, s56, {s*2048+1024}")
        a("s_add_u32 s53, s53, 16384")
        a("buffer_load_dwordx4 v4, s[48:51], s58 offen lds")
        r = AR + s * 8
        a(f"buffer_load_dwordx4 v[{r}:{r+3}], v2, s[36:39], s54 offen offset:{(i%4)*1024}")
        a(f"buffer_load_dwordx4 v[{r+4}:{r+7}], v2, s[36:39], s55 offen offset:{(i%4)*1024}")
        if i % 4 == 3:
            a("s_add_u32 s54, s54, 4096")
            a("s_add_u32 s55, s55, 4096")
    for i in range(D):
        loads(i)
    for i in range(64):
        a(f"v_mov_b32 v{ACC+i}, 0")
    def rd(i):
        s = i % D
        for u in range(2):
            b = WF + (i % 2) * 8 + u * 4
            a(f"ds_read_b64_tr_b16 v[{b}:{b+1}], v8 offset:{s*2048+u*256}")
            a(f"ds_read_b64_tr_b16 v[{b+2}:{b+3}], v8 offset:{s*2048+1024+u*256}")
    a(f"s_waitcnt vmcnt({4*(D-1)})")
    rd(0)
    for i in range(NK):
        if i + 1 < NK:
            last = min(i + D - 1, NK - 1)
            a(f"s_waitcnt vmcnt({4*(last-(i+1))})")
            rd(i + 1)
            a("s_waitcnt lgkmcnt(4)")
        else:
            a("s_waitcnt lgkmcnt(0)")
        r = AR + (i % D) * 8
        for t in range(2):
            for u in range(2):
                w = WF + (i % 2) * 8 + u * 4
                d = ACC + (t * 2 + u) * 16
                a(f"v_mfma_f32_32x32x16_bf16 v[{d}:{d+15}], v[{w}:{w+3}], v[{r+4*t}:{r+4*t+3}], v[{d}:{d+15}]")
        if i + D < NK:
            loads(i + D)
    PITCH = 272
    a("s_barrier")
    a("v_and_b32 v9, 31, v1")
    a(f"v_mul_u32_u24 v9, {PITCH}, v9")
    a("v_lshl_add_u32 v9, v3, 4, v9")
    a(f"s_mul_i32 s56, s40, {64*PITCH}")
    a("v_add_u32 v9, s56, v9")
    a("v_lshrrev_b32 v10, 3, v0")
    a("v_and_b32 v11, 7, v0")
    a("s_lshl_b32 s57, s41, 6")
    a("v_add_u32 v12, s57, v10")
    a("v_lshlrev_b32 v12, 10, v12")
    a("v_lshl_add_u32 v12, v11, 4, v12")
    a("s_lshl_b32 s57, s42, 7")
    a("v_add_u32 v12, s57, v12")
    srd(a, 44, 16, 2048 * 1024)
    srd(a, 48, 30, 2048 * 1024)
    a("s_mov_b32 s58, 32768")
    a("buffer_load_dwordx4 v[16:19], v12, s[44:47], 0 offen")
    a("buffer_load_dwordx4 v[20:23], v12, s[44:47], s58 offen")
    a.nop(4)
    for t in range(2):
        for u in range(2):
            d = ACC + (t * 2 + u) * 16
            for j in range(4):
                a(f"ds_write_b128 v9, v[{d+4*j}:{d+4*j+3}] offset:{t*32*PITCH + u*128 + j*32}")
    a(f"v_mul_u32_u24 v13, {PITCH}, v10")
    a("v_lshl_add_u32 v13, v11, 5, v13")
    a("s_waitcnt lgkmcnt(0)")
    a("s_barrier")
    for it in range(2):
        for w in range(4):
            b = AR + (it * 4 + w) * 8
            off = w * 64 * PITCH + it * 32 * PITCH
            a(f"ds_read_b128 v[{b}:{b+3}], v13 offset:{off}")
            a(f"ds_read_b128 v[{b+4}:{b+7}], v13 offset:{off+16}")
    a("s_waitcnt vmcnt(0)")
    for it in range(2):
        xs = 16 + 4 * it
        for i in range(4):
            a(f"v_lshlrev_b32 v{24+it*8+2*i}, 16, v{xs+i}")
            a(f"v_and_b32 v{25+it*8+2*i}, 0xffff0000, v{xs+i}")
    for it in range(2):
        a(f"s_waitcnt lgkmcnt({8*(1-it)})")
        for w in range(4):
            b = AR + (it * 4 + w) * 8
            for i in range(8):
                a(f"v_add_f32 v{24+it*8+i}, v{24+it*8+i}, v{b+i}")
        for i in range(4):
            a(f"v_cvt_pk_bf16_f32 v{40+it*4+i}, v{24+it*8+2*i}, v{25+it*8+2*i}")
        a(f"buffer_store_dwordx4 v[{40+it*4}:{43+it*4}], v12, s[48:51], {'0' if it==0 else 's58'} offen")
    end(a, name)
    return name, 192

def main(out):
    kernels = []
    body = Asm()
    launches = []
    for g, grid, block, lds in ((gen_ln, 512, 256, 0), (gen_gemm1, 256, 512, 163840), (gen_attn, 256, 256, 0), (gen_gemm2, 256, 256, 69632)):
        a = Asm()
        name, nv = g(a)
        probs = check_hazards(a.lines, name)
        for p in probs: print("HAZARD", p, file=sys.stderr)
        body.lines += a.lines
        kernels.append((name, nv))
        launches.append(f"; @launch kernel={name} grid=({grid},1,1) block=({block},1,1) lds={lds}")
    txt = HEADER + "\n".join(launches) + "\n" + '.amdgcn_target "amdgcn-amd-amdhsa--gfx950"\n.text\n' + body.text()
    txt += '.section .rodata,"a"\n'
    for name, nv in kernels:
        txt += ".p2align 6\n" + descriptor(name, nv)
    open(out, "w").write(txt)

if __name__ == "__main__":
    main(sys.argv[1] if len(sys.argv) > 1 else "parallel_sum__mha_block__swiglu_ffn__prompt.s")
```

```python
import sys, math, struct
from asmlib import *

def f2h(x):
    return "0x%08x" % struct.unpack("<I", struct.pack("<f", x))[0]

WS_XNF = 0
WS_QH = 2 << 20
WS_KH = 4 << 20
WS_VT = 6 << 20
WS_AF = 8 << 20
WS_NREC = 32 << 20
LOG2E = math.log2(math.e)
QSCALE = 0.25 * LOG2E

HEADER = """; Kernarg layout for this problem (80 bytes, ptrs only, base s[0:1]):
"""

def kernarg(a):
    a("s_load_dwordx16 s[16:31], s[0:1], 0")
    a("s_load_dwordx2 s[32:33], s[0:1], 72")

def srd(a, d, base, nrec):
    a(f"s_mov_b32 s{d}, s{base}")
    a(f"s_mov_b32 s{d+1}, s{base+1}")
    a(f"s_mov_b32 s{d+2}, {nrec}")
    a(f"s_mov_b32 s{d+3}, 0x00020000")

def begin(a, name, nwg):
    a.raw(f".globl {name}")
    a.raw(".p2align 8")
    a.raw(f".type {name},@function")
    a.label(name)
    a(f"s_cmp_ge_u32 s2, {nwg}")
    a(f"s_cbranch_scc1 {name}_done")

import os
TIMING = bool(os.environ.get("TIMING"))
def stamp(a, idx):
    if TIMING:
        a(f"s_memtime s[{64+4*idx}:{65+4*idx}]")
        a(f"s_memrealtime s[{66+4*idx}:{67+4*idx}]")
        a("s_waitcnt lgkmcnt(0)")
def dump_stamps(a, n, wgsel=0):
    if TIMING:
        a("s_load_dwordx2 s[96:97], s[0:1], 64")
        a("s_waitcnt lgkmcnt(0)")
        a("s_mov_b32 s98, 256")
        a("s_mov_b32 s99, 0x00020000")
        a(f"s_cmp_lg_u32 s2, {wgsel}")
        a("s_cselect_b32 s98, 0, s98")
        a("v_mov_b32 v250, 0")
        a("v_lshrrev_b32 v251, 6, v0")
        a("v_lshlrev_b32 v251, 6, v251")
        for i in range(1, n):
            a(f"s_sub_u32 s60, s{64+4*i}, s64")
            a(f"s_sub_u32 s61, s{66+4*i}, s66")
            a("v_mov_b32 v252, s60")
            a("v_mov_b32 v253, s61")
            a(f"buffer_store_dwordx2 v[252:253], v251, s[96:99], 0 offen offset:{8*(i-1)}")
            a("s_nop 1")
def end(a, name):
    a.label(f"{name}_done")
    a("s_endpgm")

def descriptor(name, nv, ns=102):
    acc = (nv + 3) // 4 * 4
    return f""".amdhsa_kernel {name}
  .amdhsa_next_free_vgpr {nv}
  .amdhsa_next_free_sgpr {ns}
  .amdhsa_accum_offset {acc}
  .amdhsa_group_segment_fixed_size 0
  .amdhsa_kernarg_size 80
  .amdhsa_user_sgpr_count 2
  .amdhsa_user_sgpr_kernarg_segment_ptr 1
  .amdhsa_system_sgpr_workgroup_id_x 1
.end_amdhsa_kernel
"""

def allreduce_add(a, v, t):
    for off in (0x041F, 0x081F, 0x101F, 0x201F, 0x401F):
        a(f"ds_swizzle_b32 v{t}, v{v} offset:{off}")
        a("s_waitcnt lgkmcnt(0)")
        a(f"v_add_f32 v{v}, v{v}, v{t}")
    a(f"v_mov_b32 v{t}, v{v}")
    a("s_nop 1")
    a(f"v_permlane32_swap_b32 v{t}, v{v}")
    a("s_nop 1")
    a(f"v_add_f32 v{v}, v{v}, v{t}")

def round_bf16(a, v, t):
    a(f"v_cvt_pk_bf16_f32 v{t}, v{v}, v{v}")
    a(f"v_lshlrev_b32 v{v}, 16, v{t}")

def gen_ln(a):
    name = "ln_kernel"
    begin(a, name, 512)
    kernarg(a)
    a("v_and_b32 v1, 63, v0")
    a("v_lshrrev_b32 v2, 6, v0")
    a("s_lshl_b32 s3, s2, 2")
    a("v_add_u32 v3, s3, v2")
    a("v_lshlrev_b32 v4, 10, v3")
    a("v_lshl_add_u32 v4, v1, 4, v4")
    a("s_waitcnt lgkmcnt(0)")
    srd(a, 36, 16, 2048 * 1024)
    srd(a, 40, 32, WS_NREC)
    a("buffer_load_dwordx4 v[8:11], v4, s[36:39], 0 offen")
    a("v_lshrrev_b32 v5, 5, v3")
    a("v_lshlrev_b32 v5, 5, v5")
    a("v_lshrrev_b32 v6, 1, v1")
    a("v_add_u32 v5, v5, v6")
    a("v_lshlrev_b32 v5, 6, v5")
    a("v_and_b32 v6, 1, v1")
    a("v_lshl_add_u32 v5, v6, 5, v5")
    a("v_and_b32 v6, 31, v3")
    a("v_add_u32 v5, v5, v6")
    a("v_lshlrev_b32 v5, 4, v5")
    a("s_waitcnt vmcnt(0)")
    for i in range(4):
        a(f"v_lshlrev_b32 v{12+2*i}, 16, v{8+i}")
        a(f"v_and_b32 v{13+2*i}, 0xffff0000, v{8+i}")
    a("v_add_f32 v20, v12, v13")
    for i in range(2, 8):
        a(f"v_add_f32 v20, v20, v{12+i}")
    allreduce_add(a, 20, 21)
    a(f"v_mul_f32 v20, {f2h(1.0/512)}, v20")
    a("v_sub_f32 v22, v12, v20")
    a("v_mul_f32 v23, v22, v22")
    for i in range(1, 8):
        a(f"v_sub_f32 v22, v{12+i}, v20")
        a("v_fmac_f32 v23, v22, v22")
    allreduce_add(a, 23, 21)
    a(f"v_mul_f32 v23, {f2h(1.0/512)}, v23")
    round_bf16(a, 20, 21)
    round_bf16(a, 23, 21)
    a(f"v_add_f32 v23, {f2h(1e-5)}, v23")
    round_bf16(a, 23, 21)
    a("v_sqrt_f32 v23, v23")
    a("s_nop 0")
    round_bf16(a, 23, 21)
    a("v_rcp_f32 v23, v23")
    for i in range(8):
        a(f"v_sub_f32 v{12+i}, v{12+i}, v20")
    for i in range(4):
        a(f"v_cvt_pk_bf16_f32 v{8+i}, v{12+2*i}, v{13+2*i}")
    for i in range(4):
        a(f"v_lshlrev_b32 v{12+2*i}, 16, v{8+i}")
        a(f"v_and_b32 v{13+2*i}, 0xffff0000, v{8+i}")
    for i in range(8):
        a(f"v_mul_f32 v{12+i}, v{12+i}, v23")
    for i in range(4):
        a(f"v_cvt_pk_bf16_f32 v{8+i}, v{12+2*i}, v{13+2*i}")
    a(f"buffer_store_dwordx4 v[8:11], v5, s[40:43], 0 offen")
    end(a, name)
    return name, 32

def gen_gemm1(a):
    name = "gemm1_kernel"
    begin(a, name, 256)
    kernarg(a)
    ACC, XN, WF, DA, DS = 176, 112, 72, 40, 50
    a("v_and_b32 v1, 63, v0")
    a("v_lshrrev_b32 v2, 6, v0")
    a("s_and_b32 s3, s2, 7")
    a("v_readfirstlane_b32 s40, v2")
    a("s_lshr_b32 s4, s2, 3")
    a("s_and_b32 s5, s3, 1")
    a("s_lshl_b32 s5, s5, 2")
    a("s_and_b32 s6, s4, 3")
    a("s_add_u32 s41, s5, s6")
    a("s_lshr_b32 s5, s3, 1")
    a("s_lshl_b32 s5, s5, 3")
    a("s_lshr_b32 s6, s4, 2")
    a("s_add_u32 s42, s5, s6")
    a("s_lshl_b32 s5, s42, 2")
    a("s_mul_i32 s6, s42, 5")
    a("s_sub_u32 s6, s6, 16")
    a("s_add_u32 s7, s42, 144")
    a("s_add_u32 s8, s6, 4")
    a("s_cmp_lt_u32 s42, 16")
    a("s_cselect_b32 s44, s5, s6")
    a("s_cselect_b32 s48, s7, s8")
    a("s_add_u32 s45, s44, 1")
    a("s_add_u32 s46, s44, 2")
    a("s_add_u32 s47, s44, 3")
    a("s_lshl_b32 s43, s41, 3")
    a("s_add_u32 s43, s43, s40")
    a("s_waitcnt lgkmcnt(0)")
    stamp(a, 0)
    srd(a, 36, 32, WS_NREC)
    a("s_lshl_b32 s9, s40, 4")
    a("s_movk_i32 s10, 205")
    a("s_movk_i32 s11, 3072")
    a("s_movk_i32 s12, 3584")
    for i in range(5):
        lo, hi, st = DA + 2 * i, DA + 2 * i + 1, DS + i
        a(f"v_add_u32 v3, {64*i}, v1")
        a("v_mul_lo_u32 v4, v3, s10")
        a("v_lshrrev_b32 v4, 14, v4")
        a("v_mul_u32_u24 v5, 80, v4")
        a("v_sub_u32 v5, v3, v5")
        a("v_lshrrev_b32 v6, 4, v5")
        a("v_bfe_u32 v7, v5, 2, 2")
        a("v_and_b32 v8, 3, v5")
        a("v_lshl_add_u32 v7, v4, 2, v7")
        a("v_add_u32 v7, s9, v7")
        a("v_add_u32 v9, s44, v6")
        a("v_mov_b32 v10, s48")
        a("v_cmp_eq_u32 vcc, 4, v6")
        a("s_nop 1")
        a("v_cndmask_b32 v9, v9, v10, vcc")
        a("v_subrev_u32 v10, 112, v9")
        a("v_cmp_gt_u32 vcc, 32, v9")
        a("s_nop 1")
        a("v_cndmask_b32 v10, v10, v9, vcc")
        a("v_lshlrev_b32 v10, 6, v10")
        a("v_lshl_add_u32 v10, v8, 4, v10")
        a("v_mul_lo_u32 v11, v7, s11")
        a("v_add_u32 v10, v10, v11")
        a("v_subrev_u32 v11, 32, v9")
        a("v_lshlrev_b32 v12, 5, v11")
        a("v_and_b32 v13, 1, v8")
        a("v_lshl_add_u32 v12, v13, 4, v12")
        a("v_mul_lo_u32 v13, v7, s12")
        a("v_add_u32 v12, v12, v13")
        a("v_mov_b32 v13, s24")
        a("v_mov_b32 v14, s25")
        a("v_mov_b32 v15, s26")
        a("v_mov_b32 v16, s27")
        a("v_cmp_gt_u32 vcc, 2, v8")
        a("s_nop 1")
        a("v_cndmask_b32 v13, v15, v13, vcc")
        a("v_cndmask_b32 v14, v16, v14, vcc")
        a("v_mov_b32 v15, s18")
        a("v_mov_b32 v16, s19")
        a(f"v_mov_b32 v17, {128*3072}")
        a(f"v_mov_b32 v18, {128*3584}")
        a("v_cmp_gt_u32 vcc, 112, v11")
        a("s_nop 1")
        a("v_cndmask_b32 v13, v15, v13, vcc")
        a("v_cndmask_b32 v14, v16, v14, vcc")
        a("v_cndmask_b32 v10, v10, v12, vcc")
        a(f"v_cndmask_b32 v{st}, v17, v18, vcc")
        a(f"v_add_co_u32 v{lo}, vcc, v13, v10")
        a("s_nop 1")
        a(f"v_addc_co_u32 v{hi}, vcc, 0, v14, vcc")
    a("v_lshlrev_b32 v2, 4, v1")
    a("s_lshl_b32 s50, s43, 15")
    a("s_mul_i32 s51, s40, 5120")
    def dma_group(c):
        for i in range(5):
            lo, hi, st = DA + 2 * i, DA + 2 * i + 1, DS + i
            a(f"s_add_u32 m0, s51, {c*40960 + i*1024}")
            a("s_nop 0")
            a(f"global_load_lds_dwordx4 v[{lo}:{hi}], off")
            if c < 3:
                a(f"v_add_co_u32 v{lo}, vcc, v{st}, v{lo}")
                a("s_nop 1")
                a(f"v_addc_co_u32 v{hi}, vcc, 0, v{hi}, vcc")
    def xn_group(c):
        for k in range(8):
            ks = 8 * c + k
            if ks % 4 == 0:
                a(f"s_add_u32 s52, s50, {ks*1024}")
            r = XN + (ks % 16) * 4
            a(f"buffer_load_dwordx4 v[{r}:{r+3}], v2, s[36:39], s52 offen offset:{(ks%4)*1024}")
    dma_group(0); xn_group(0); dma_group(1); xn_group(1); dma_group(2); dma_group(3)
    a("v_lshrrev_b32 v3, 5, v1")
    a("v_mul_u32_u24 v3, 2560, v3")
    a("v_bfe_u32 v4, v1, 2, 2")
    a("v_lshl_add_u32 v3, v4, 6, v3")
    a("v_bfe_u32 v4, v1, 4, 1")
    a("v_lshl_add_u32 v3, v4, 5, v3")
    a("v_and_b32 v4, 3, v1")
    a("v_lshl_add_u32 v3, v4, 3, v3")
    for i in range(80):
        a(f"v_mov_b32 v{ACC+i}, 0")
    a("s_cmp_lt_u32 s42, 16")
    a(f"s_cbranch_scc1 {name}_mainV")
    waits = [23, 18, 8, 0]
    def main(withV):
        for c in range(4):
            if c == 0: stamp(a, 1)
            a(f"s_waitcnt vmcnt({waits[c]})")
            a("s_barrier")
            if c in (0, 1, 3): stamp(a, {0:2, 1:3, 3:4}[c])
            def rd(k, u):
                b = WF + (k % 2) * 20 + u * 4
                off = k * 5120 + u * 256
                a(f"ds_read_b64_tr_b16 v[{b}:{b+1}], v3 offset:{off}")
                a(f"ds_read_b64_tr_b16 v[{b+2}:{b+3}], v3 offset:{off+1280}")
            for u in range(5):
                rd(0, u)
            for k in range(8):
                ks = 8 * c + k
                x = XN + (ks % 16) * 4
                for u in range(5):
                    if k < 7:
                        rd(k + 1, u)
                        a("s_waitcnt lgkmcnt(10)")
                    else:
                        a(f"s_waitcnt lgkmcnt({2*(4-u)})")
                    w = WF + (k % 2) * 20 + u * 4
                    d = ACC + u * 16
                    if withV and u == 4:
                        a(f"v_mfma_f32_32x32x16_bf16 v[{d}:{d+15}], v[{x}:{x+3}], v[{w}:{w+3}], v[{d}:{d+15}]")
                    else:
                        a(f"v_mfma_f32_32x32x16_bf16 v[{d}:{d+15}], v[{w}:{w+3}], v[{x}:{x+3}], v[{d}:{d+15}]")
            if c < 2:
                xn_group(c + 2)
            if c < 3:
                a("v_add_u32 v3, 40960, v3")
    main(False)
    a(f"s_branch {name}_epi")
    a.label(f"{name}_mainV")
    main(True)
    a.label(f"{name}_epi")
    stamp(a, 5)
    a("v_and_b32 v4, 31, v1")
    a("v_lshrrev_b32 v5, 5, v1")
    a("v_lshlrev_b32 v6, 5, v4")
    a("v_lshl_add_u32 v6, v5, 4, v6")
    a("v_bfe_u32 v7, v1, 4, 1")
    a("v_lshlrev_b32 v7, 16, v7")
    a("v_lshl_add_u32 v7, v5, 8, v7")
    a("v_and_b32 v8, 15, v1")
    a("v_lshl_add_u32 v7, v8, 4, v7")
    a("s_lshl_b32 s53, s43, 10")
    a("s_mul_i32 s54, s43, 144")
    a(f"s_mov_b32 s55, {f2h(QSCALE)}")
    a(f"s_mov_b32 s56, {f2h(-LOG2E)}")
    a.nop(12)
    for u in range(5):
        d = ACC + u * 16
        su = 44 + u
        L = f"{name}_e{u}"
        a(f"s_cmp_lt_u32 s{su}, 32")
        a(f"s_cbranch_scc1 {L}_qk")
        a(f"s_cmp_lt_u32 s{su}, 144")
        a(f"s_cbranch_scc1 {L}_ffn")
        for i in range(8):
            a(f"v_cvt_pk_bf16_f32 v{WF+i}, v{d+2*i}, v{d+2*i+1}")
        a(f"s_sub_u32 s57, s{su}, 144")
        a("s_lshl_b32 s57, s57, 17")
        a("s_add_u32 s57, s57, s53")
        a(f"s_add_u32 s57, s57, {WS_VT}")
        a(f"buffer_store_dwordx4 v[{WF}:{WF+3}], v7, s[36:39], s57 offen")
        a(f"buffer_store_dwordx4 v[{WF+4}:{WF+7}], v7, s[36:39], s57 offen offset:512")
        a(f"s_branch {L}_end")
        a.label(f"{L}_qk")
        a(f"s_cmp_lt_u32 s{su}, 16")
        a(f"s_cselect_b32 s58, s55, 1.0")
        for i in range(16):
            a(f"v_mul_f32 v{d+i}, s58, v{d+i}")
        for i in range(8):
            a(f"v_cvt_pk_bf16_f32 v{WF+i}, v{d+2*i}, v{d+2*i+1}")
        a(f"s_lshl_b32 s57, s{su}, 17")
        a("s_add_u32 s57, s57, s53")
        a(f"s_add_u32 s57, s57, {WS_QH}")
        a(f"s_add_u32 s59, s57, 65536")
        a(f"buffer_store_dwordx4 v[{WF}:{WF+3}], v6, s[36:39], s57 offen")
        a(f"buffer_store_dwordx4 v[{WF+4}:{WF+7}], v6, s[36:39], s59 offen")
        a(f"s_branch {L}_end")
        a.label(f"{L}_ffn")
        T = WF + 8
        for i in range(8):
            a(f"v_mul_f32 v{T+i}, s56, v{d+i}")
        for i in range(8):
            a(f"v_exp_f32 v{T+i}, v{T+i}")
        for i in range(8):
            a(f"v_add_f32 v{T+i}, 1.0, v{T+i}")
        for i in range(8):
            a(f"v_rcp_f32 v{T+i}, v{T+i}")
        for i in range(8):
            a(f"v_mul_f32 v{d+i}, v{d+i}, v{d+8+i}")
        for i in range(8):
            a(f"v_mul_f32 v{d+i}, v{d+i}, v{T+i}")
        for i in range(4):
            a(f"v_cvt_pk_bf16_f32 v{WF+i}, v{d+2*i}, v{d+2*i+1}")
        a(f"s_add_u32 s57, s54, s{su}")
        a("s_lshl_b32 s57, s57, 10")
        a(f"s_add_u32 s57, s57, {WS_AF}")
        a(f"buffer_store_dwordx4 v[{WF}:{WF+3}], v2, s[36:39], s57 offen")
        a.label(f"{L}_end")
        a("s_nop 1")
    if TIMING:
        a("s_waitcnt vmcnt(0)")
        a("s_and_b32 s60, s40, 3")
        a("v_mov_b32 v0, s60")
        a("v_lshlrev_b32 v0, 6, v0")
    stamp(a, 6)
    dump_stamps(a, 7)
    end(a, name)
    return name, 256

RESCALE_T = 30
BIAS = 80
NINIT = 2
def gen_attn(a):
    name = "attn_kernel"
    begin(a, name, 256)
    kernarg(a)
    Q = {"A": 4, "B": 8}
    NEG = {"A": 16, "B": 32}
    S = {"A": 48, "B": 64}
    O = {"A": 80, "B": 96}
    P = {"A": 112, "B": 120}
    RING = 128
    T0 = 176
    Kf = lambda s: RING + 12 * s
    V0 = lambda s: RING + 12 * s + 4
    V1 = lambda s: RING + 12 * s + 8
    mf = lambda d, x, y, c: a(f"v_mfma_f32_32x32x16_bf16 v[{d}:{d+15}], v[{x}:{x+3}], v[{y}:{y+3}], " + (f"v[{c}:{c+15}]" if c is not None else "0"))
    a("v_and_b32 v1, 63, v0")
    a("v_lshrrev_b32 v2, 6, v0")
    a("s_and_b32 s3, s2, 7")
    a("v_readfirstlane_b32 s40, v2")
    a("s_lshr_b32 s4, s2, 3")
    a("s_and_b32 s5, s4, 3")
    a("s_lshl_b32 s3, s3, 2")
    a("s_add_u32 s41, s3, s5")
    a("s_lshr_b32 s42, s4, 2")
    a("s_lshl_b32 s42, s42, 3")
    a("s_lshl_b32 s5, s40, 1")
    a("s_add_u32 s42, s42, s5")
    a("v_and_b32 v12, 31, v1")
    a("v_lshrrev_b32 v13, 5, v1")
    a("v_lshlrev_b32 v2, 5, v12")
    a("v_lshl_add_u32 v2, v13, 4, v2")
    a("v_lshlrev_b32 v3, 8, v13")
    a("v_and_b32 v14, 15, v1")
    a("v_lshl_add_u32 v3, v14, 4, v3")
    a(f"v_add_u32 v3, {WS_VT-WS_KH}, v3")
    a("s_mov_b32 s44, 0x0000ffff")
    a("s_mov_b32 s45, 0x0000ffff")
    a("s_lshl_b32 s46, s41, 16")
    a("s_lshl_b32 s47, s42, 10")
    a("s_add_u32 s47, s47, s46")
    a(f"s_add_u32 s47, s47, {WS_QH}")
    a(f"s_add_u32 s46, s46, {WS_KH}")
    a("s_waitcnt lgkmcnt(0)")
    stamp(a, 0)
    srd(a, 36, 32, WS_NREC)
    a(f"buffer_load_dwordx4 v[{Q['A']}:{Q['A']+3}], v2, s[36:39], s47 offen")
    a(f"buffer_load_dwordx4 v[{Q['B']}:{Q['B']+3}], v2, s[36:39], s47 offen offset:1024")
    a("v_mov_b32 v14, 0x3f803f80")
    a("v_cmp_eq_u32 vcc, 16, v12")
    a("s_nop 1")
    a("v_cndmask_b32 v14, 0, v14, vcc")
    for s in range(4):
        for i in range(8):
            a(f"v_mov_b32 v{V0(s)+i}, v14")
    def loads(slot, soff, imm):
        a(f"buffer_load_dwordx4 v[{Kf(slot)}:{Kf(slot)+3}], v2, s[36:39], {soff} offen offset:{imm}")
        a("s_mov_b64 exec, s[44:45]")
        a(f"buffer_load_dwordx4 v[{V0(slot)}:{V0(slot)+3}], v3, s[36:39], {soff} offen offset:{imm}")
        a(f"buffer_load_dwordx4 v[{V1(slot)}:{V1(slot)+3}], v3, s[36:39], {soff} offen offset:{imm+512}")
        a("s_mov_b64 exec, -1")
    for t in range(3):
        loads(t, "s46", t * 1024)
    for X in "AB":
        for i in range(16):
            a(f"v_mov_b32 v{O[X]+i}, 0")
        for i in range(8):
            a(f"v_mov_b32 v{P[X]+i}, 0")
    a(f"s_mov_b32 s48, {f2h(2.0**RESCALE_T)}")
    a("s_mov_b32 s49, 0")
    a(f"s_waitcnt vmcnt({9-3*(NINIT-1)-1})")
    for X in "AB":
        mf(S[X], Kf(0), Q[X], None)
        mf(NEG[X], Kf(1), Q[X], None)
    a.nop(14)
    for X in "AB":
        m = T0
        a(f"v_max3_f32 v{m}, v{S[X]}, v{S[X]+1}, v{S[X]+2}")
        for i in range(3, 15, 2):
            a(f"v_max3_f32 v{m}, v{m}, v{S[X]+i}, v{S[X]+i+1}")
        a(f"v_max3_f32 v{m}, v{m}, v{S[X]+15}, v{NEG[X]}")
        for i in range(1, 15, 2):
            a(f"v_max3_f32 v{m}, v{m}, v{NEG[X]+i}, v{NEG[X]+i+1}")
        a(f"v_max_f32 v{m}, v{m}, v{NEG[X]+15}")
        a(f"v_mov_b32 v{m+1}, v{m}")
        a("s_nop 1")
        a(f"v_permlane32_swap_b32 v{m+1}, v{m}")
        a("s_nop 1")
        a(f"v_max_f32 v{m}, v{m}, v{m+1}")
        for i in range(16):
            a(f"v_sub_f32 v{NEG[X]+i}, {f2h(-float(BIAS))}, v{m}")
    a("s_nop 1")
    mf(S["A"], Kf(0), Q["A"], NEG["A"])
    a("s_add_u32 s50, s46, 3072")
    a("s_mov_b32 s51, 16")
    a.nop(10)
    stamp(a, 1)
    a.raw(".p2align 6")
    a.label(f"{name}_loop")
    def half(X, tt):
        Y = "B" if X == "A" else "A"
        x, p = S[X], P[X]
        e = lambda i: a(f"v_exp_f32 v{x+i}, v{x+i}")
        c = lambda i: a(f"v_cvt_pk_bf16_f32 v{p+i}, v{x+2*i}, v{x+2*i+1}")
        e(0); e(1)
        ty = (tt - 1) % 4 if X == "A" else tt
        mf(O[Y], V1(ty), P[Y] + 4, O[Y])
        if X == "A":
            loads((tt + 3) % 4, "s50", tt * 1024)
        e(2); e(3); c(0); e(4); e(5); c(1)
        if X == "B":
            a("s_waitcnt vmcnt(6)")
        tk = tt if X == "A" else (tt + 1) % 4
        mf(S[Y], Kf(tk), Q[Y], NEG[Y])
        e(6); e(7); c(2); e(8); c(3); e(9); e(10)
        mf(O[X], V0(tt), p, O[X])
        c(4); e(11); e(12); c(5); e(13); e(14); e(15); c(6); c(7)
        if (X == "A" and tt == 1) or (X == "B" and tt == 3):
            a(f"v_cmp_nge_f32 vcc, s48, v{O[Y]+8}")
            a(f"s_cbranch_vccnz {name}_rare{Y}")
            a.label(f"{name}_ret{Y}")
    for tt in range(4):
        half("A", tt)
        half("B", tt)
    a("s_add_u32 s50, s50, 4096")
    a("s_sub_u32 s51, s51, 1")
    a("s_cmp_lg_u32 s51, 0")
    a(f"s_cbranch_scc1 {name}_loop")
    a("s_nop 1")
    mf(O["B"], V1(3), P["B"] + 4, O["B"])
    a.label(f"{name}_fin")
    stamp(a, 2)
    a.nop(14)
    a(f"v_mov_b32 v{T0}, 0")
    for X in "AB":
        for i in range(9):
            a(f"v_fma_f32 v{T0}, v{O[X]+i}, 0, v{T0}")
    a(f"v_cmp_u_f32 vcc, v{T0}, v{T0}")
    a("s_cmp_eq_u32 s49, 0")
    a("s_cselect_b64 s[52:53], vcc, 0")
    a("s_cmp_lg_u64 s[52:53], 0")
    a(f"s_cbranch_scc1 {name}_safe")
    a("s_mul_i32 s52, s42, 144")
    a("s_add_u32 s52, s52, s41")
    a("s_lshl_b32 s52, s52, 10")
    a(f"s_add_u32 s52, s52, {WS_AF}")
    a(f"s_add_u32 s53, s52, {144*1024}")
    a("v_lshlrev_b32 v12, 4, v1")
    for X in "AB":
        l = O[X] + 8
        a(f"v_mov_b32 v{T0}, v{l}")
        a("s_nop 1")
        a(f"v_permlane32_swap_b32 v{T0}, v{l}")
        a("s_nop 1")
        a(f"v_rcp_f32 v{T0}, v{T0}")
        a("s_nop 0")
        for i in range(8):
            a(f"v_mul_f32 v{O[X]+i}, v{O[X]+i}, v{T0}")
        for i in range(4):
            a(f"v_cvt_pk_bf16_f32 v{P[X]+i}, v{O[X]+2*i}, v{O[X]+2*i+1}")
        a(f"buffer_store_dwordx4 v[{P[X]}:{P[X]+3}], v12, s[36:39], {'s52' if X=='A' else 's53'} offen")
    a("s_waitcnt vmcnt(0)") if TIMING else None
    stamp(a, 3)
    dump_stamps(a, 4)
    a("s_endpgm")
    for Y in "AB":
        a.label(f"{name}_rare{Y}")
        a.nop(16)
        l = O[Y] + 8
        a(f"v_cmp_class_f32 vcc, v{l}, v15" if False else f"v_mov_b32 v{T0+2}, 0x207")
        a(f"v_cmp_class_f32 vcc, v{l}, v{T0+2}")
        a(f"s_cbranch_vccnz {name}_safe")
        a(f"v_frexp_exp_i32_f32 v{T0}, v{l}")
        a(f"v_add_u32 v{T0}, {BIAS}, v{T0}")
        a(f"v_max_i32 v{T0}, 0, v{T0}")
        a(f"v_mov_b32 v{T0+1}, v{T0}")
        a("s_nop 1")
        a(f"v_permlane32_swap_b32 v{T0}, v{T0+1}")
        a("s_nop 1")
        a(f"v_cvt_f32_i32 v{T0+1}, v{T0}")
        a(f"v_sub_u32 v{T0}, 0, v{T0}")
        for i in range(9):
            a(f"v_ldexp_f32 v{O[Y]+i}, v{O[Y]+i}, v{T0}")
        for i in range(16):
            a(f"v_sub_f32 v{NEG[Y]+i}, v{NEG[Y]+i}, v{T0+1}")
        for i in range(16):
            a(f"v_sub_f32 v{S[Y]+i}, v{S[Y]+i}, v{T0+1}")
        a("s_nop 1")
        a(f"s_branch {name}_ret{Y}")
    a.label(f"{name}_safe")
    a("s_waitcnt vmcnt(0)")
    a.nop(16)
    a("s_mov_b32 s49, 1")
    M = {"A": NEG["A"], "B": NEG["B"]}
    for X in "AB":
        for i in range(16):
            a(f"v_mov_b32 v{O[X]+i}, 0")
        a(f"v_mov_b32 v{M[X]}, 0xff800000")
    a("s_mov_b32 s50, s46")
    a("s_mov_b32 s51, 64")
    a.label(f"{name}_sloop")
    loads(0, "s50", 0)
    a("s_waitcnt vmcnt(0)")
    for X in "AB":
        mf(S[X], Kf(0), Q[X], None)
    a.nop(16)
    for X in "AB":
        x, p, m = S[X], P[X], M[X]
        a(f"v_max3_f32 v{T0}, v{x}, v{x+1}, v{x+2}")
        for i in range(3, 15, 2):
            a(f"v_max3_f32 v{T0}, v{T0}, v{x+i}, v{x+i+1}")
        a(f"v_max_f32 v{T0}, v{T0}, v{x+15}")
        a(f"v_mov_b32 v{T0+1}, v{T0}")
        a("s_nop 1")
        a(f"v_permlane32_swap_b32 v{T0+1}, v{T0}")
        a("s_nop 1")
        a(f"v_max3_f32 v{T0}, v{T0}, v{T0+1}, v{m}")
        a(f"v_sub_f32 v{T0+1}, v{m}, v{T0}")
        a(f"v_exp_f32 v{T0+1}, v{T0+1}")
        a(f"v_mov_b32 v{m}, v{T0}")
        for i in range(9):
            a(f"v_mul_f32 v{O[X]+i}, v{O[X]+i}, v{T0+1}")
        for i in range(16):
            a(f"v_sub_f32 v{x+i}, v{x+i}, v{T0}")
        for i in range(16):
            a(f"v_exp_f32 v{x+i}, v{x+i}")
        a("s_nop 0")
        for i in range(8):
            a(f"v_cvt_pk_bf16_f32 v{p+i}, v{x+2*i}, v{x+2*i+1}")
        a("s_nop 1")
        mf(O[X], V0(0), p, O[X])
        mf(O[X], V1(0), p + 4, O[X])
    a.nop(16)
    a("s_add_u32 s50, s50, 1024")
    a("s_sub_u32 s51, s51, 1")
    a("s_cmp_lg_u32 s51, 0")
    a(f"s_cbranch_scc1 {name}_sloop")
    a(f"s_branch {name}_fin")
    end(a, name)
    return name, 192

def gen_gemm2(a):
    name = "gemm2_kernel"
    begin(a, name, 256)
    kernarg(a)
    D = 8
    NK = 36
    ACC, AR, WF = 64, 128, 32
    a("v_and_b32 v1, 63, v0")
    a("v_lshrrev_b32 v2, 6, v0")
    a("s_and_b32 s3, s2, 7")
    a("v_readfirstlane_b32 s40, v2")
    a("s_lshr_b32 s4, s2, 3")
    a("s_lshl_b32 s5, s3, 2")
    a("s_and_b32 s6, s4, 3")
    a("s_add_u32 s41, s5, s6")
    a("s_lshr_b32 s42, s4, 2")
    a("s_waitcnt lgkmcnt(0)")
    stamp(a, 0)
    srd(a, 36, 32, WS_NREC)
    srd(a, 44, 28, 1792 * 1024)
    srd(a, 48, 20, 512 * 1024)
    a("s_cmp_eq_u32 s40, 0")
    a("s_cselect_b32 s48, s48, s44")
    a("s_cselect_b32 s49, s49, s45")
    a("s_cselect_b32 s50, s50, s46")
    a("s_mul_i32 s52, s40, 36")
    a("s_sub_u32 s53, s52, 32")
    a("s_cselect_b32 s53, 0, s53")
    a("s_cmp_eq_u32 s40, 0")
    a("s_sub_u32 s53, s52, 32")
    a("s_cmp_eq_u32 s40, 0")
    a("s_cselect_b32 s53, 0, s53")
    a("s_lshl_b32 s53, s53, 14")
    a("s_lshl_b32 s54, s41, 1")
    a("s_mul_i32 s54, s54, 144")
    a("s_add_u32 s54, s54, s52")
    a("s_lshl_b32 s54, s54, 10")
    a(f"s_add_u32 s54, s54, {WS_AF}")
    a(f"s_add_u32 s55, s54, {144*1024}")
    a(f"s_mul_i32 s56, s40, {D*2048}")
    a("v_lshlrev_b32 v2, 4, v1")
    a("v_lshrrev_b32 v3, 5, v1")
    a("v_lshlrev_b32 v4, 2, v3")
    a("v_bfe_u32 v5, v1, 2, 2")
    a("v_add_u32 v4, v4, v5")
    a("v_lshlrev_b32 v4, 10, v4")
    a("v_bfe_u32 v6, v1, 4, 1")
    a("v_lshl_add_u32 v4, v6, 6, v4")
    a("v_and_b32 v7, 3, v1")
    a("v_lshl_add_u32 v4, v7, 4, v4")
    a("s_lshl_b32 s57, s42, 7")
    a("v_add_u32 v4, s57, v4")
    a("v_lshlrev_b32 v8, 9, v3")
    a("v_lshl_add_u32 v8, v5, 6, v8")
    a("v_lshl_add_u32 v8, v6, 5, v8")
    a("v_lshl_add_u32 v8, v7, 3, v8")
    a("v_add_u32 v8, s56, v8")
    def loads(i):
        s = i % D
        if i == 32:
            a("s_cmp_eq_u32 s40, 0")
            a("s_cselect_b32 s48, s44, s48")
            a("s_cselect_b32 s49, s45, s49")
            a("s_cselect_b32 s50, s46, s50")
            a("s_cselect_b32 s53, 0, s53")
        a(f"s_add_u32 m0, s56, {s*2048}")
        a("s_add_u32 s58, s53, 8192")
        a("buffer_load_dwordx4 v4, s[48:51], s53 offen lds")
        a(f"s_add_u32 m0, s56, {s*2048+1024}")
        a("s_add_u32 s53, s53, 16384")
        a("buffer_load_dwordx4 v4, s[48:51], s58 offen lds")
        r = AR + s * 8
        a(f"buffer_load_dwordx4 v[{r}:{r+3}], v2, s[36:39], s54 offen offset:{(i%4)*1024}")
        a(f"buffer_load_dwordx4 v[{r+4}:{r+7}], v2, s[36:39], s55 offen offset:{(i%4)*1024}")
        if i % 4 == 3:
            a("s_add_u32 s54, s54, 4096")
            a("s_add_u32 s55, s55, 4096")
    for i in range(D):
        loads(i)
    for i in range(64):
        a(f"v_mov_b32 v{ACC+i}, 0")
    def rd(i):
        s = i % D
        for u in range(2):
            b = WF + (i % 2) * 8 + u * 4
            a(f"ds_read_b64_tr_b16 v[{b}:{b+1}], v8 offset:{s*2048+u*256}")
            a(f"ds_read_b64_tr_b16 v[{b+2}:{b+3}], v8 offset:{s*2048+1024+u*256}")
    stamp(a, 1)
    a(f"s_waitcnt vmcnt({4*(D-1)})")
    stamp(a, 2)
    rd(0)
    for i in range(NK):
        if i + 1 < NK:
            last = min(i + D - 1, NK - 1)
            a(f"s_waitcnt vmcnt({4*(last-(i+1))})")
            rd(i + 1)
            a("s_waitcnt lgkmcnt(4)")
        else:
            a("s_waitcnt lgkmcnt(0)")
        r = AR + (i % D) * 8
        for t in range(2):
            for u in range(2):
                w = WF + (i % 2) * 8 + u * 4
                d = ACC + (t * 2 + u) * 16
                a(f"v_mfma_f32_32x32x16_bf16 v[{d}:{d+15}], v[{w}:{w+3}], v[{r+4*t}:{r+4*t+3}], v[{d}:{d+15}]")
        if i + D < NK:
            loads(i + D)
    PITCH = 272
    stamp(a, 3)
    a("s_barrier")
    stamp(a, 4)
    a("v_and_b32 v9, 31, v1")
    a(f"v_mul_u32_u24 v9, {PITCH}, v9")
    a("v_lshl_add_u32 v9, v3, 4, v9")
    a(f"s_mul_i32 s56, s40, {64*PITCH}")
    a("v_add_u32 v9, s56, v9")
    a("v_lshrrev_b32 v10, 3, v0")
    a("v_and_b32 v11, 7, v0")
    a("s_lshl_b32 s57, s41, 6")
    a("v_add_u32 v12, s57, v10")
    a("v_lshlrev_b32 v12, 10, v12")
    a("v_lshl_add_u32 v12, v11, 4, v12")
    a("s_lshl_b32 s57, s42, 7")
    a("v_add_u32 v12, s57, v12")
    srd(a, 44, 16, 2048 * 1024)
    srd(a, 48, 30, 2048 * 1024)
    a("s_mov_b32 s58, 32768")
    a("buffer_load_dwordx4 v[16:19], v12, s[44:47], 0 offen")
    a("buffer_load_dwordx4 v[20:23], v12, s[44:47], s58 offen")
    a.nop(4)
    for t in range(2):
        for u in range(2):
            d = ACC + (t * 2 + u) * 16
            for j in range(4):
                a(f"ds_write_b128 v9, v[{d+4*j}:{d+4*j+3}] offset:{t*32*PITCH + u*128 + j*32}")
    a(f"v_mul_u32_u24 v13, {PITCH}, v10")
    a("v_lshl_add_u32 v13, v11, 5, v13")
    a("s_waitcnt lgkmcnt(0)")
    a("s_barrier")
    for it in range(2):
        for w in range(4):
            b = AR + (it * 4 + w) * 8
            off = w * 64 * PITCH + it * 32 * PITCH
            a(f"ds_read_b128 v[{b}:{b+3}], v13 offset:{off}")
            a(f"ds_read_b128 v[{b+4}:{b+7}], v13 offset:{off+16}")
    a("s_waitcnt vmcnt(0)")
    for it in range(2):
        xs = 16 + 4 * it
        for i in range(4):
            a(f"v_lshlrev_b32 v{24+it*8+2*i}, 16, v{xs+i}")
            a(f"v_and_b32 v{25+it*8+2*i}, 0xffff0000, v{xs+i}")
    for it in range(2):
        a(f"s_waitcnt lgkmcnt({8*(1-it)})")
        for w in range(4):
            b = AR + (it * 4 + w) * 8
            for i in range(8):
                a(f"v_add_f32 v{24+it*8+i}, v{24+it*8+i}, v{b+i}")
        if os.environ.get("PERTURB"):
            for i in range(8):
                a(f"v_mul_f32 v{24+it*8+i}, {f2h(1.0+float(os.environ['PERTURB']))}, v{24+it*8+i}")
        for i in range(4):
            a(f"v_cvt_pk_bf16_f32 v{40+it*4+i}, v{24+it*8+2*i}, v{25+it*8+2*i}")
        a(f"buffer_store_dwordx4 v[{40+it*4}:{43+it*4}], v12, s[48:51], {'0' if it==0 else 's58'} offen")
    a("s_waitcnt vmcnt(0)") if TIMING else None
    stamp(a, 5)
    dump_stamps(a, 6)
    end(a, name)
    return name, 192

def main(out):
    kernels = []
    body = Asm()
    launches = []
    for g, grid, block, lds in ((gen_ln, 512, 256, 0), (gen_gemm1, 256, 512, 163840), (gen_attn, 256, 256, 90112), (gen_gemm2, 256, 256, 90112)):
        a = Asm()
        name, nv = g(a)
        probs = check_hazards(a.lines, name)
        for p in probs: print("HAZARD", p, file=sys.stderr)
        body.lines += a.lines
        kernels.append((name, 256 if TIMING else nv))
        launches.append(f"; @launch kernel={name} grid=({grid},1,1) block=({block},1,1) lds={lds}")
    txt = HEADER + "\n".join(launches) + "\n" + '.amdgcn_target "amdgcn-amd-amdhsa--gfx950"\n.text\n' + body.text()
    txt += '.section .rodata,"a"\n'
    for name, nv in kernels:
        txt += ".p2align 6\n" + descriptor(name, nv)
    open(out, "w").write(txt)

if __name__ == "__main__":
    main(sys.argv[1] if len(sys.argv) > 1 else "parallel_sum__mha_block__swiglu_ffn__prompt.s")
```

```python
import sys, math, struct, os
from asmlib import *

def f2h(x):
    return "0x%08x" % struct.unpack("<I", struct.pack("<f", x))[0]
E = os.environ.get
WS_KH = 4 << 20
WS_VT = 6 << 20
WS_AF = 8 << 20
WS_FL = 20 << 20
F1, FH, FO, FX = WS_FL, WS_FL + 4096, WS_FL + 8192, WS_FL + 12288
WS_ST = 21 << 20
WS_NREC = 32 << 20
LOG2E = math.log2(math.e)
QSCALE = 0.25 * LOG2E
TIMING = bool(E("TIMING"))
SPIN_MAX = 200000
NAME = "fused_kernel"

HEADER = """; Kernarg layout for this problem (80 bytes, ptrs only, base s[0:1]):
"""

def srd(a, d, base, nrec):
    a(f"s_mov_b32 s{d}, s{base}")
    a(f"s_mov_b32 s{d+1}, s{base+1}")
    a(f"s_mov_b32 s{d+2}, {nrec}")
    a(f"s_mov_b32 s{d+3}, 0x00020000")

def stamp(a, idx):
    if TIMING:
        a(f"{'s_memtime' if E('CYC') else 's_memrealtime'} s[{84+2*idx}:{85+2*idx}]")
        a("s_waitcnt lgkmcnt(0)")
def dump_stamps(a, last):
    if TIMING:
        a("s_waitcnt vmcnt(0)")
        stamp(a, last)
        a("s_add_u32 s76, s34, 0x8000000")
        a("s_addc_u32 s77, s35, 0")
        a("s_mov_b32 s78, 0x100000")
        a("s_mov_b32 s79, 0x00020000")
        a("s_lshl_b32 s80, s2, 7")
        a("s_lshl_b32 s81, s40, 5")
        a("s_add_u32 s80, s80, s81")
        a("v_mov_b32 v250, s80")
        for i in range(8):
            a(f"v_mov_b32 v252, s{84+2*i}")
            a(f"buffer_store_dword v252, v250, s[76:79], 0 offen offset:{4*i}")
            a("s_nop 1")

def round_bf16(a, v, t):
    a(f"v_cvt_pk_bf16_f32 v{t}, v{v}, v{v}")
    a(f"v_lshlrev_b32 v{v}, 16, v{t}")

def mfma(a, d, x, y, c):
    a(f"v_mfma_f32_32x32x16_bf16 v[{d}:{d+15}], v[{x}:{x+3}], v[{y}:{y+3}], " + (f"v[{c}:{c+15}]" if c is not None else "0"))

UID = [0]
def uid():
    UID[0] += 1
    return UID[0]

def get_nonce(a, vt):
    n = uid()
    a(f"v_mov_b32 v{vt+1}, 0")
    a(f"s_mov_b32 s3, {SPIN_MAX}")
    a.label(f"nonce{n}")
    a(f"buffer_load_dword v{vt}, v{vt+1}, s[56:59], 0 offen sc1")
    a("s_waitcnt vmcnt(0)")
    a(f"v_readfirstlane_b32 s83, v{vt}")
    a("s_sub_u32 s3, s3, 1")
    a("s_cmp_eq_u32 s3, 0")
    a(f"s_cbranch_scc1 nonce{n}_ok")
    a("s_cmp_eq_u32 s83, 0")
    a(f"s_cbranch_scc1 nonce{n}")
    a.label(f"nonce{n}_ok")

def publish(a, soff, vt):
    a(f"v_mov_b32 v{vt}, s83")
    a(f"v_mov_b32 v{vt+1}, 0")
    a("s_waitcnt vmcnt(0)")
    a("s_mov_b64 exec, 1")
    a(f"buffer_store_dword v{vt}, v{vt+1}, s[36:39], {soff} offen sc1")
    a("s_mov_b64 exec, -1")

def poll(a, soff, voff, vt):
    n = uid()
    a(f"s_mov_b32 s3, {SPIN_MAX}")
    a.label(f"poll{n}")
    a(f"buffer_load_dword v{vt}, v{voff}, s[36:39], {soff} offen sc1")
    a("s_waitcnt vmcnt(0)")
    a(f"v_cmp_ne_u32 vcc, s83, v{vt}")
    a(f"s_cbranch_vccz poll{n}_ok")
    a("s_sleep 1")
    a("s_sub_u32 s3, s3, 1")
    a("s_cmp_lg_u32 s3, 0")
    a(f"s_cbranch_scc1 poll{n}")
    a.label(f"poll{n}_ok")

def ln_load(a):
    srd(a, 44, 16, 2048 * 1024)
    a("s_lshl_b32 s3, s41, 7")
    a("s_lshl_b32 s4, s42, 3")
    a("s_add_u32 s3, s3, s4")
    a("s_lshl_b32 s4, s40, 1")
    a("s_add_u32 s3, s3, s4")
    a("s_lshl_b32 s3, s3, 10")
    a("v_lshlrev_b32 v2, 4, v1")
    a("buffer_load_dwordx4 v[208:211], v2, s[44:47], s3 offen")
    a("buffer_load_dwordx4 v[212:215], v2, s[44:47], s3 offen offset:1024")
    a("v_mov_b32 v247, 0")
    a("buffer_load_dword v246, v247, s[56:59], 0 offen sc1")

def ln_compute(a, LS, after_stores, nyounger):
    X = (216, 224)
    S = 232
    a("s_waitcnt vmcnt(1)")
    for r in range(2):
        for i in range(4):
            a(f"v_lshlrev_b32 v{X[r]+2*i}, 16, v{208+4*r+i}")
            a(f"v_and_b32 v{X[r]+2*i+1}, 0xffff0000, v{208+4*r+i}")
    for r in range(2):
        a(f"v_add_f32 v{S+r}, v{X[r]}, v{X[r]+1}")
        a(f"v_mul_f32 v{S+2+r}, v{X[r]}, v{X[r]}")
    for i in range(1, 8):
        for r in range(2):
            if i >= 2: a(f"v_add_f32 v{S+r}, v{S+r}, v{X[r]+i}")
            a(f"v_fmac_f32 v{S+2+r}, v{X[r]+i}, v{X[r]+i}")
    for off in (0x041F, 0x081F, 0x101F, 0x201F, 0x401F):
        for i in range(4): a(f"ds_swizzle_b32 v{S+4+i}, v{S+i} offset:{off}")
        a("s_waitcnt lgkmcnt(0)")
        for i in range(4): a(f"v_add_f32 v{S+i}, v{S+i}, v{S+4+i}")
    for i in range(4): a(f"v_mov_b32 v{S+4+i}, v{S+i}")
    a("s_nop 1")
    for i in range(4): a(f"v_permlane32_swap_b32 v{S+4+i}, v{S+i}")
    a("s_nop 1")
    for i in range(4): a(f"v_add_f32 v{S+i}, v{S+i}, v{S+4+i}")
    for i in range(4): a(f"v_mul_f32 v{S+i}, {f2h(1.0/512)}, v{S+i}")
    for r in range(2): a(f"v_fma_f32 v{S+2+r}, -v{S+r}, v{S+r}, v{S+2+r}")
    for r in range(2): a(f"v_max_f32 v{S+2+r}, 0, v{S+2+r}")
    def rnd(regs):
        for k, v in enumerate(regs): a(f"v_cvt_pk_bf16_f32 v{S+4+k}, v{v}, v{v}")
        for k, v in enumerate(regs): a(f"v_lshlrev_b32 v{v}, 16, v{S+4+k}")
    rnd((S, S + 1, S + 2, S + 3))
    for r in range(2): a(f"v_add_f32 v{S+2+r}, {f2h(1e-5)}, v{S+2+r}")
    rnd((S + 2, S + 3))
    for r in range(2): a(f"v_sqrt_f32 v{S+2+r}, v{S+2+r}")
    a("s_nop 0")
    rnd((S + 2, S + 3))
    for r in range(2): a(f"v_rcp_f32 v{S+2+r}, v{S+2+r}")
    for r in range(2):
        for i in range(8): a(f"v_sub_f32 v{X[r]+i}, v{X[r]+i}, v{S+r}")
    for r in range(2):
        for i in range(4): a(f"v_cvt_pk_bf16_f32 v{208+4*r+i}, v{X[r]+2*i}, v{X[r]+2*i+1}")
    for r in range(2):
        for i in range(4):
            a(f"v_lshlrev_b32 v{X[r]+2*i}, 16, v{208+4*r+i}")
            a(f"v_and_b32 v{X[r]+2*i+1}, 0xffff0000, v{208+4*r+i}")
    for r in range(2):
        for i in range(8): a(f"v_mul_f32 v{X[r]+i}, v{X[r]+i}, v{S+2+r}")
    for r in range(2):
        for i in range(4): a(f"v_cvt_pk_bf16_f32 v{208+4*r+i}, v{X[r]+2*i}, v{X[r]+2*i+1}")
    a("v_lshlrev_b32 v240, 7, v1")
    a("s_lshl_b32 s3, s40, 5")
    a("v_add_u32 v240, s3, v240")
    a(f"ds_write_b128 v240, v[208:211] offset:{LS}")
    a(f"ds_write_b128 v240, v[212:215] offset:{LS+16}")
    a("v_lshlrev_b32 v241, 4, v1")
    a("s_lshl_b32 s3, s40, 11")
    a("v_add_u32 v241, s3, v241")
    a("v_lshrrev_b32 v242, 3, v1")
    a("v_lshrrev_b32 v243, 1, v242")
    a("v_lshlrev_b32 v243, 10, v243")
    a("v_and_b32 v242, 1, v242")
    a("v_lshl_add_u32 v243, v242, 9, v243")
    a("v_and_b32 v242, 7, v1")
    a("v_lshl_add_u32 v243, v242, 4, v243")
    a("s_lshl_b32 s3, s41, 2")
    a("s_lshr_b32 s4, s42, 2")
    a("s_add_u32 s5, s3, s4")
    a("s_lshl_b32 s3, s5, 15")
    a("s_and_b32 s4, s42, 3")
    a("s_lshl_b32 s6, s4, 7")
    a("s_add_u32 s3, s3, s6")
    a("s_lshl_b32 s6, s40, 13")
    a("s_add_u32 s3, s3, s6")
    a("s_add_u32 s6, s3, 4096")
    a("s_waitcnt lgkmcnt(0)")
    a("s_barrier")
    a(f"ds_read_b128 v[208:211], v241 offset:{LS}")
    a(f"ds_read_b128 v[212:215], v241 offset:{LS+1024}")
    a("s_lshl_b32 s5, s5, 6")
    a("s_lshl_b32 s4, s4, 4")
    a("s_add_u32 s5, s5, s4")
    a("s_lshl_b32 s4, s40, 2")
    a("s_add_u32 s5, s5, s4")
    a(f"s_add_u32 s66, s5, {FX}")
    a("s_waitcnt lgkmcnt(1)")
    a("buffer_store_dwordx4 v[208:211], v243, s[36:39], s3 offen sc1")
    a("s_waitcnt lgkmcnt(0)")
    a("buffer_store_dwordx4 v[212:215], v243, s[36:39], s6 offen sc1")
    a("s_waitcnt vmcnt(2)")
    a("v_readfirstlane_b32 s83, v246")
    a("s_nop 3")
    a("s_cmp_lg_u32 s83, 0")
    a("s_cbranch_scc1 ln_have_nonce")
    get_nonce(a, 244)
    a.label("ln_have_nonce")
    a("v_mov_b32 v244, s83")
    a("s_waitcnt vmcnt(0)")
    a("s_mov_b64 exec, 1")
    a("buffer_store_dword v244, v247, s[36:39], s66 offen sc1")
    a("s_mov_b64 exec, -1")
    after_stores()

def poll_xn(a, vt):
    a("s_lshl_b32 s43, s41, 2")
    a("s_add_u32 s43, s43, s40")
    a("s_lshl_b32 s4, s43, 6")
    a(f"s_add_u32 s4, s4, {FX}")
    a(f"v_and_b32 v{vt+1}, 15, v1")
    a(f"v_lshlrev_b32 v{vt+1}, 2, v{vt+1}")
    poll(a, "s4", vt + 1, vt)
    a("s_lshl_b32 s70, s43, 15")
    a("s_lshl_b32 s73, s74, 12")
    a("s_add_u32 s72, s70, s73")

def rot_setup(a, add, pitch):
    a("s_and_b32 s10, s41, 7")
    a("s_and_b32 s11, s42, 3")
    a("s_lshl_b32 s11, s11, 1")
    a("s_add_u32 s10, s10, s11")
    if add: a(f"s_add_u32 s10, s10, {add}")
    a("s_and_b32 s74, s10, 7")
    if E("NOROT"): a("s_mov_b32 s74, 0")
    a(f"s_mul_i32 s11, s74, {64*pitch}")
    a("s_add_u32 s64, s64, s11")
    a("s_sub_u32 s67, 8, s74")
def w_wrap(pitch):
    return ["s_sub_u32 s67, s67, 1", "s_cmp_eq_u32 s67, 0", f"s_cselect_b32 s10, {512*pitch}, 0", "s_sub_u32 s64, s64, s10"]
X_ADV = ["s_add_u32 s73, s73, 4096", "s_and_b32 s73, s73, 32767", "s_add_u32 s72, s70, s73"]

def tr_base(a, RW, base):
    a("v_lshrrev_b32 v17, 5, v1")
    a("v_bfe_u32 v18, v1, 2, 2")
    a("v_lshl_add_u32 v18, v17, 3, v18")
    a("v_and_b32 v19, 3, v1")
    a("v_bfe_u32 v20, v1, 4, 1")
    a(f"v_lshlrev_b32 v{RW}, 6, v18")
    a(f"v_lshl_add_u32 v{RW}, v20, 5, v{RW}")
    a(f"v_lshl_add_u32 v{RW}, v19, 3, v{RW}")
    if base: a(f"v_add_u32 v{RW}, {base}, v{RW}")

XB = 8192
RB = 2048
def gemm1(a, role):
    L = "g1" + role
    A = role == "A"
    NU = 3 if A else 7
    R = 4 if A else 3
    PITCH = 3072 if A else 3584
    SB = XB + NU * 2048
    NLD = 4 if A else 6
    NST = 16
    CS, ST = 0, 1024
    SCR = RB if A else RB + SB
    VX, VXB, VW, VW3 = 2, 3, 6, 7
    RX0, RX1, RW, RM = 4, 5, 8, 9
    CX0, CX1, CW, CM, CM2 = 10, 11, 12, 13, 14
    SUM, SQ = 16, 20
    XF, WF, CSUM, ACC = 24, 32, 88, 96
    srd(a, 44, 16, 2048 * 1024)
    a("s_and_b32 s3, s40, 1")
    a("s_lshr_b32 s4, s40, 1")
    a("v_lshrrev_b32 v16, 2, v1")
    a("v_and_b32 v17, 3, v1")
    a(f"v_mul_u32_u24 v{VW}, {PITCH}, v16")
    a(f"v_lshl_add_u32 v{VW}, v17, 4, v{VW}")
    if A:
        srd(a, 48, 18, 512 * 3072)
        a("s_lshl_b32 s64, s42, 6")
        a(f"s_mul_i32 s5, s3, {16*PITCH}")
        a("s_add_u32 s64, s64, s5")
        a(f"v_add_u32 v{VW3}, 2048, v{VW}")
        a("s_lshl_b32 s5, s4, 10")
        a(f"v_add_u32 v{VW}, s5, v{VW}")
        a("s_lshl_b32 s5, s4, 11")
        a("s_lshl_b32 s6, s3, 10")
        a(f"s_add_u32 s69, s6, {RB+XB+4096}")
        a("s_add_u32 s68, s5, s6")
        a(f"s_add_u32 s68, s68, {RB+XB}")
    else:
        a("s_cmp_eq_u32 s4, 0")
        a("s_cselect_b32 s48, s24, s26")
        a("s_cselect_b32 s49, s25, s27")
        a(f"s_mov_b32 s50, {512*3584}")
        a("s_mov_b32 s51, 0x00020000")
        a("s_mul_i32 s64, s42, 224")
        a(f"s_mul_i32 s5, s3, {16*PITCH}")
        a("s_add_u32 s64, s64, s5")
        a("s_lshl_b32 s5, s4, 11")
        a("s_lshl_b32 s6, s3, 10")
        a("s_add_u32 s68, s5, s6")
        a(f"s_add_u32 s68, s68, {XB}")
        a("s_lshl_b32 s5, s4, 10")
        a(f"s_add_u32 s5, s5, {XB+12288}")
        a(f"s_add_u32 s6, s68, 8192")
        a("s_cmp_eq_u32 s3, 0")
        a("s_cselect_b32 s71, s5, s6")
        a("s_and_b32 s7, s42, 1")
        a("s_lshl_b32 s8, s7, 5")
        a(f"v_add_u32 v{VW}, s8, v{VW}")
        a("s_cmp_eq_u32 s7, 0")
        a("s_cselect_b32 s8, 192, 0")
        a("v_lshrrev_b32 v18, 1, v1")
        a("s_lshl_b32 s9, s4, 2")
        a("v_xor_b32 v18, s9, v18")
        a(f"v_mul_u32_u24 v18, {PITCH}, v18")
        a("v_and_b32 v19, 1, v1")
        a("v_lshl_add_u32 v18, v19, 4, v18")
        a("v_add_u32 v18, s8, v18")
        a(f"v_add_u32 v19, 128, v{VW}")
        a("s_cmp_eq_u32 s3, 0")
        a("s_cselect_b64 vcc, -1, 0")
        a(f"v_cndmask_b32 v{VW3}, v19, v18, vcc")
    a("s_cmp_eq_u32 s4, 0" if A else "s_cmp_eq_u32 s3, 0")
    a("s_cselect_b64 s[14:15], -1, 1")
    a("s_lshl_b32 s72, s41, 17")
    a("s_lshl_b32 s70, s40, 11")
    if A: a(f"s_add_u32 s70, s70, {RB}")
    a("s_lshl_b32 s5, s40, 5")
    a("v_add_u32 v18, s5, v16")
    a("v_lshlrev_b32 v18, 10, v18")
    a("v_lshrrev_b32 v19, 4, v1")
    a("v_xor_b32 v19, v19, v17")
    a(f"v_lshl_add_u32 v{VX}, v19, 4, v18")
    a(f"v_add_u32 v{VXB}, 16384, v{VX}")
    if not A and E("PF"):
        a("s_bfe_u32 s10, s2, 0x50003")
        a("s_lshl_b32 s11, s10, 2")
        a("s_add_u32 s11, s11, s40")
        a("s_lshl_b32 s13, s11, 13")
        a("s_and_b32 s12, s2, 1")
        a("s_lshl_b32 s12, s12, 20")
        a("s_add_u32 s13, s13, s12")
        a("v_lshlrev_b32 v30, 7, v1")
        a("buffer_load_dword v31, v30, s[44:47], s13 offen")
        a("s_bfe_u32 s12, s2, 0x20001")
        srd(a, 52, 18, 512 * 3072)
        a("s_lshl_b32 s13, s11, 2")
        a("v_lshrrev_b32 v30, 4, v1")
        a("v_add_u32 v30, s13, v30")
        a("v_mul_u32_u24 v30, 3072, v30")
        a("v_and_b32 v28, 15, v1")
        a("v_min_u32 v28, 5, v28")
        a("v_lshrrev_b32 v29, 1, v28")
        a("v_lshl_add_u32 v30, v29, 10, v30")
        a("v_and_b32 v28, 1, v28")
        a("v_lshl_add_u32 v30, v28, 7, v30")
        a("s_lshl_b32 s13, s12, 8")
        a("buffer_load_dword v31, v30, s[52:55], s13 offen")
        a("s_lshl_b32 s11, s10, 1")
        a("s_add_u32 s11, s11, s3")
        a("s_lshl_b32 s11, s11, 3")
        a("v_lshrrev_b32 v30, 3, v1")
        a("v_add_u32 v30, s11, v30")
        a("v_mul_u32_u24 v30, 3584, v30")
        a("v_and_b32 v28, 7, v1")
        a("v_lshl_add_u32 v30, v28, 7, v30")
        a("s_mul_i32 s12, s12, 896")
        a("buffer_load_dword v31, v30, s[48:51], s12 offen")
        a("s_waitcnt vmcnt(0)")
    a("s_and_b32 s10, s41, 7")
    a("s_add_u32 s11, s10, s42")
    a("s_and_b32 s11, s11, 3")
    if E("NOROT"): a("s_mov_b32 s11, 0")
    if A:
        a("s_mov_b32 s67, s11")
        a(f"s_mul_i32 s12, s11, {128*PITCH}")
        a("s_add_u32 s64, s64, s12")
        a("s_lshl_b32 s12, s11, 8")
        a("s_add_u32 s72, s72, s12")
    else:
        a("s_lshl_b32 s11, s11, 2")
        a("s_lshr_b32 s10, s10, 2")
        a("s_add_u32 s11, s11, s10")
        a("s_add_u32 s11, s11, 2")
        if E("NOROT"): a("s_mov_b32 s11, 0")
        a("s_mov_b32 s67, s11")
        a(f"s_mul_i32 s12, s11, {32*PITCH}")
        a("s_add_u32 s64, s64, s12")
        a("s_lshl_b32 s12, s11, 6")
        a("s_add_u32 s72, s72, s12")
    def load_list(slot):
        g = []
        if A:
            o = slot * SB
            xi = 64 * slot
            g.append(([f"s_add_u32 m0, s70, {o-xi}"], f"buffer_load_dwordx4 v{VX}, s[44:47], s72 offen offset:{xi} lds", []))
            g.append(([f"s_add_u32 m0, s70, {o+1024-xi}"], f"buffer_load_dwordx4 v{VXB}, s[44:47], s72 offen offset:{xi} lds", []))
            g.append(([f"s_add_u32 m0, s68, {o}"], f"buffer_load_dwordx4 v{VW}, s[48:51], s64 offen lds", []))
            g.append(([f"s_add_u32 m0, s69, {o}"], f"s_mov_b64 exec, s[14:15]\nbuffer_load_dwordx4 v{VW3}, s[48:51], s64 offen lds\ns_mov_b64 exec, -1",
                      [f"s_add_u32 s64, s64, {32*PITCH}"] + (["s_add_u32 s72, s72, 256", "s_add_u32 s67, s67, 1", "s_cmp_eq_u32 s67, 4", f"s_cselect_b32 s10, {512*PITCH}, 0",
                        "s_cselect_b32 s11, 1024, 0", "s_sub_u32 s64, s64, s10", "s_sub_u32 s72, s72, s11"] if slot == 3 else [])))
        else:
            g.append((["s_add_u32 m0, s73, s70"], f"buffer_load_dwordx4 v{VX}, s[44:47], s72 offen lds", []))
            g.append((["s_add_u32 m0, m0, 1024"], f"buffer_load_dwordx4 v{VXB}, s[44:47], s72 offen lds", ["s_add_u32 s72, s72, 64"]))
            g.append((["s_add_u32 m0, s73, s68"], f"buffer_load_dwordx4 v{VW}, s[48:51], s64 offen lds", []))
            g.append(([f"s_add_u32 m0, m0, {4096-64}"], f"buffer_load_dwordx4 v{VW}, s[48:51], s64 offen offset:64 lds", []))
            g.append(([f"s_add_u32 m0, m0, {4096-64}"], f"buffer_load_dwordx4 v{VW}, s[48:51], s64 offen offset:128 lds", []))
            g.append((["s_add_u32 m0, s73, s71"], f"s_mov_b64 exec, s[14:15]\nbuffer_load_dwordx4 v{VW3}, s[48:51], s64 offen lds\ns_mov_b64 exec, -1",
                      [f"s_add_u32 s64, s64, {32*PITCH}", "s_add_u32 s67, s67, 1", "s_cmp_eq_u32 s67, 16", f"s_cselect_b32 s10, {512*PITCH}, 0",
                       "s_cselect_b32 s11, 1024, 0", "s_sub_u32 s64, s64, s10", "s_sub_u32 s72, s72, s11", f"s_add_u32 s73, s73, {SB}", f"s_cmp_eq_u32 s73, {RB+R*SB}", f"s_cselect_b32 s73, {RB}, s73"]))
        return g
    if not A: a(f"s_mov_b32 s73, {RB}")
    for st in range(R - 1):
        for pre, dma, post in load_list(st if A else None):
            for i in pre: a(i)
            a("s_nop 0")
            a(dma)
            for i in post: a(i)
    a("v_and_b32 v16, 31, v1")
    a("v_lshrrev_b32 v17, 5, v1")
    a("v_bfe_u32 v18, v16, 2, 2")
    a("v_xor_b32 v18, v18, v17")
    a("v_lshlrev_b32 v19, 6, v16")
    a(f"v_lshl_add_u32 v{RX0}, v18, 4, v19")
    a(f"v_add_u32 v{RX0}, s70, v{RX0}")
    a(f"v_xor_b32 v{RX1}, 32, v{RX0}")
    a("v_bfe_u32 v18, v1, 2, 2")
    a("v_lshl_add_u32 v18, v17, 3, v18")
    a("v_and_b32 v19, 3, v1")
    a("v_bfe_u32 v20, v1, 4, 1")
    a(f"v_lshlrev_b32 v{RW}, 6, v18")
    a(f"v_lshl_add_u32 v{RW}, v20, 5, v{RW}")
    a(f"v_lshl_add_u32 v{RW}, v19, 3, v{RW}")
    a(f"v_add_u32 v{RW}, {XB + (RB if A else 0)}, v{RW}")
    if not A:
        a("v_lshlrev_b32 v21, 2, v20")
        a("v_xor_b32 v21, v21, v18")
        a(f"v_lshlrev_b32 v{RM}, 5, v21")
        a(f"v_lshl_add_u32 v{RM}, v20, 10, v{RM}")
        a(f"v_lshl_add_u32 v{RM}, v19, 3, v{RM}")
        a(f"v_add_u32 v{RM}, {XB+12288}, v{RM}")
    for i in range(NU * 16): a(f"v_mov_b32 v{ACC+i}, 0")
    for i in range(NU): a(f"v_mov_b32 v{CSUM+i}, 0")
    for i in range(8): a(f"v_mov_b32 v{SUM+i}, 0")
    a("s_mov_b32 s82, 0x3f803f80")
    stamp(a, 1)
    a0 = a
    class Filt:
        def __call__(self, s):
            if E("NODMA") and " lds" in s: return
            if E("NOMFMA") and "v_mfma" in s: return
            if E("NODOT") and "v_dot2c" in s: return
            if E("NOXRD") and "ds_read_b128" in s: return
            if E("NOWRD") and "ds_read_b64_tr" in s: return
            if E("NOBAR") and "s_barrier" in s: return
            a0(s)
        def __getattr__(self, n): return getattr(a0, n)
    a = Filt()
    NB = 4 if A else 2
    FW = NU * 4
    XFb = lambda b: (XF + 4 * b) if not A else (160 + 16 * b)
    WFb = lambda b: (WF + FW * b) if not A else (164 + 16 * b)
    def rd_all(kk, slot, b):
        o = slot * SB
        a(f"ds_read_b128 v[{XFb(b)}:{XFb(b)+3}], v{RX0 if kk==0 else RX1} offset:{o}")
        for u in range(NU):
            r = WFb(b) + u * 4
            a(f"ds_read_b64_tr_b16 v[{r}:{r+1}], v{RW} offset:{o+u*2048+kk*1024}")
            a(f"ds_read_b64_tr_b16 v[{r+2}:{r+3}], v{RW} offset:{o+u*2048+kk*1024+256}")
    def rd_x(kk):
        a(f"ds_read_b128 v[{XF+4*kk}:{XF+4*kk+3}], v{CX0 if kk==0 else CX1}")
    def rd_w(kk, u):
        b = WF + kk * FW + u * 4
        if u == 6:
            a(f"ds_read_b64_tr_b16 v[{b}:{b+1}], v{CM} offset:{kk*512}")
            a(f"ds_read_b64_tr_b16 v[{b+2}:{b+3}], v{CM2} offset:{kk*512}")
        else:
            a(f"ds_read_b64_tr_b16 v[{b}:{b+1}], v{CW} offset:{u*2048+kk*1024}")
            a(f"ds_read_b64_tr_b16 v[{b+2}:{b+3}], v{CW} offset:{u*2048+kk*1024+256}")
    def mf(b, u):
        x, w, d = XFb(b), WFb(b) + u * 4, ACC + u * 16
        if A and u == 2: mfma(a, d, x, w, d)
        else: mfma(a, d, w, x, d)
    def dots(b):
        x = XFb(b)
        for i in range(4):
            a(f"v_dot2c_f32_bf16 v{SUM+i}, s82, v{x+i}")
            a(f"v_dot2c_f32_bf16 v{SQ+i}, v{x+i}, v{x+i}")
    def colsum(bufs, smod):
        n = uid()
        if smod is None:
            a("s_and_b32 s3, s75, 3")
            a("s_cmp_lg_u32 s3, s40")
        else:
            a(f"s_cmp_lg_u32 s40, {smod}")
        a(f"s_cbranch_scc1 nocs{n}")
        for b in bufs:
            for i in range(4):
                for u in range(NU):
                    a(f"v_dot2c_f32_bf16 v{CSUM+u}, s82, v{WFb(b) + u*4 + i}")
        a.label(f"nocs{n}")
    if A:
        def rd_list(kk, slot, b):
            o = slot * SB
            r_ = [f"ds_read_b128 v[{XFb(b)}:{XFb(b)+3}], v{RX0 if kk==0 else RX1} offset:{o}"]
            for u in range(NU):
                r = WFb(b) + u * 4
                r_.append(f"ds_read_b64_tr_b16 v[{r}:{r+1}], v{RW} offset:{o+u*2048+kk*1024}")
                r_.append(f"ds_read_b64_tr_b16 v[{r+2}:{r+3}], v{RW} offset:{o+u*2048+kk*1024+256}")
            return r_
        def body(slot, ld, vmw, first=False, last=False):
            b0, b1 = (2 * slot) % 4, (2 * slot + 1) % 4
            p0, p1 = (b0 + 2) % 4, (b1 + 2) % 4
            if not last:
                a(f"s_waitcnt vmcnt({vmw})")
                a("s_barrier")
            if not first:
                dots(p0); dots(p1)
                colsum((p0, p1), (slot - 1) % 4)
            LL = load_list((slot + R - 1) % R) if ld else []
            for kk, b, nb in ((0, b0, p0), (1, b1, p1)):
                RL = rd_list(kk, (slot + 1) % R, nb) if not last else []
                a(f"s_waitcnt lgkmcnt({7 if (kk == 0 or not last) else 0})")
                for u in range(NU):
                    l = LL[2 * kk + u] if (ld and u < 2) else None
                    if l:
                        for i in l[0]: a(i)
                    mf(b, u)
                    for i in RL[(0, 3, 5)[u]:(3, 5, 7)[u]]: a(i)
                    if l:
                        a(l[1])
                        for i in l[2]: a(i)
            if last:
                a.nop(8)
                dots(b0); dots(b1)
                colsum((b0, b1), slot)
        a(f"s_waitcnt vmcnt({(R-2)*NLD})")
        a("s_barrier")
        rd_all(0, 0, 0)
        rd_all(1, 0, 1)
        W1 = (R - 3) * NLD
        body(0, True, W1, first=True)
        if E("ITER"):
            stamp(a, 3)
            for it in range(3):
                for slot in (1, 2, 3, 0):
                    body(slot, True, W1)
                stamp(a, 4 + it)
        else:
            a("s_mov_b32 s75, 3")
            a.raw(".p2align 6")
            a.label(f"{L}_loop")
            for slot in (1, 2, 3, 0):
                body(slot, True, W1)
            a("s_sub_u32 s75, s75, 1")
            a("s_cmp_lg_u32 s75, 0")
            a(f"s_cbranch_scc1 {L}_loop")
        body(1, False, NLD)
        body(2, False, 0)
        body(3, False, 0, last=True)
    else:
        def body(ld, vmw):
            rd_x(0)
            for u in range(NU): rd_w(0, u)
            LL = load_list(None) if ld else []
            li = 0
            for kk in range(2):
                if kk == 0: rd_x(1)
                for u in range(NU):
                    dm = ld and u % 2 == 1
                    if kk == 0:
                        rd_w(1, u)
                        if u % 2 == 0: a(f"s_waitcnt lgkmcnt({15 if u == 6 else 13})")
                    elif u % 2 == 0:
                        a(f"s_waitcnt lgkmcnt({max(0, 2*(NU-2-u))})")
                    if dm:
                        for i in LL[li][0]: a(i)
                    mf(kk, u)
                    if dm:
                        a(LL[li][1])
                        for i in LL[li][2]: a(i)
                        li += 1
            a(f"s_add_u32 s74, s74, {SB}")
            a(f"s_cmp_eq_u32 s74, {RB+R*SB}")
            a(f"s_cselect_b32 s74, {RB}, s74")
            if vmw is not None: a(f"s_waitcnt vmcnt({vmw})")
            a("s_setprio 2")
            colsum((0, 1), None)
            a("s_add_u32 s75, s75, 1")
            if vmw is not None:
                addrs()
                a("s_setprio 0")
                a("s_barrier")
        def addrs():
            a(f"v_add_u32 v{CX0}, s74, v{RX0}")
            a(f"v_add_u32 v{CW}, s74, v{RW}")
            a(f"v_add_u32 v{CM}, s74, v{RM}")
            a(f"v_add_u32 v{CX1}, s74, v{RX1}")
            a(f"v_xor_b32 v{CM2}, 128, v{CM}")
        a(f"s_mov_b32 s74, {RB}")
        addrs()
        a("s_setprio 0")
        a("s_mov_b32 s75, 0")
        a(f"s_waitcnt vmcnt({NLD})")
        a("s_barrier")
        a.raw(".p2align 6")
        a.label(f"{L}_loop")
        body(True, NLD)
        a(f"s_cmp_lt_u32 s75, {NST-2}")
        a(f"s_cbranch_scc1 {L}_loop")
        body(False, 0)
        body(False, None)
    a = a0
    stamp(a, 2)
    T = 208
    a("v_lshlrev_b32 v12, 2, v1")
    a(f"s_mul_i32 s3, s40, {NU*256}")
    a("v_add_u32 v12, s3, v12")
    a("v_and_b32 v10, 31, v1")
    a("v_lshlrev_b32 v11, 2, v10")
    for u in range(NU):
        a(f"ds_write_b32 v12, v{CSUM+u} offset:{SCR+u*256}")
    a("s_lshl_b32 s43, s41, 2")
    a("s_add_u32 s43, s43, s40")
    a("s_lshl_b32 s60, s42, 14")
    a("s_lshl_b32 s61, s43, 8")
    a("s_add_u32 s60, s60, s61")
    a(f"s_add_u32 s60, s60, {WS_ST}")
    a("v_lshlrev_b32 v15, 3, v10")
    if A:
        a(f"v_add_f32 v{SUM}, v{SUM}, v{SUM+1}")
        a(f"v_add_f32 v{SUM+2}, v{SUM+2}, v{SUM+3}")
        a(f"v_add_f32 v{SQ}, v{SQ}, v{SQ+1}")
        a(f"v_add_f32 v{SQ+2}, v{SQ+2}, v{SQ+3}")
        a(f"v_add_f32 v{SUM}, v{SUM}, v{SUM+2}")
        a(f"v_add_f32 v{SQ}, v{SQ}, v{SQ+2}")
    else:
        get_nonce(a, T)
        a("s_lshl_b32 s4, s42, 8")
        a("s_lshl_b32 s5, s43, 2")
        a("s_add_u32 s4, s4, s5")
        a(f"s_add_u32 s4, s4, {F1}")
        a(f"v_mov_b32 v{T+1}, 0")
        poll(a, "s4", T + 1, T)
        a(f"buffer_load_dwordx2 v[{SUM}:{SUM+1}], v15, s[36:39], s60 offen sc1")
    a("v_lshrrev_b32 v13, 5, v0")
    a("v_lshlrev_b32 v13, 8, v13")
    a("v_add_u32 v13, v13, v11")
    if A:
        a(f"v_mov_b32 v{T}, v{SUM}")
        a(f"v_mov_b32 v{T+1}, v{SQ}")
    a("s_waitcnt lgkmcnt(0)")
    a("s_barrier")
    for w in range(4):
        a(f"ds_read2_b32 v[{T+40+2*w}:{T+41+2*w}], v13 offset0:{0} offset1:{32}" if False else
          f"ds_read_b32 v{T+40+2*w}, v13 offset:{SCR+w*NU*256}")
        a(f"ds_read_b32 v{T+41+2*w}, v13 offset:{SCR+w*NU*256+128}")
    if A:
        a(f"v_permlane32_swap_b32 v{T}, v{SUM}")
        a(f"v_permlane32_swap_b32 v{T+1}, v{SQ}")
        a("s_nop 1")
        a(f"v_add_f32 v{SUM}, v{SUM}, v{T}")
        a(f"v_add_f32 v{SQ}, v{SQ}, v{T+1}")
        a(f"v_mul_f32 v{SUM}, {f2h(1.0/512)}, v{SUM}")
        a(f"v_mul_f32 v{SQ}, {f2h(1.0/512)}, v{SQ}")
        a(f"v_fma_f32 v{SQ}, -v{SUM}, v{SUM}, v{SQ}")
        a(f"v_max_f32 v{SQ}, 0, v{SQ}")
        round_bf16(a, SUM, T)
        round_bf16(a, SQ, T)
        a(f"v_add_f32 v{SQ}, {f2h(1e-5)}, v{SQ}")
        round_bf16(a, SQ, T)
        a(f"v_sqrt_f32 v{SQ}, v{SQ}")
        a("s_nop 0")
        round_bf16(a, SQ, T)
        a(f"v_rcp_f32 v{SQ}, v{SQ}")
        a("s_nop 0")
        a(f"v_mov_b32 v{SUM+1}, v{SQ}")
        a(f"buffer_store_dwordx2 v[{SUM}:{SUM+1}], v15, s[36:39], s60 offen sc1")
    a("v_lshrrev_b32 v29, 5, v1")
    a("s_waitcnt lgkmcnt(0)")
    for i in range(1, 8):
        a(f"v_add_f32 v{T+40}, v{T+40}, v{T+40+i}")
    a("v_lshlrev_b32 v13, 2, v0")
    a(f"v_cmp_gt_u32 vcc, {NU*32}, v0")
    a("s_and_saveexec_b64 s[8:9], vcc")
    a(f"ds_write_b32 v13, v{T+40} offset:{CS}")
    a("s_mov_b64 exec, s[8:9]")
    if A:
        a("s_lshl_b32 s3, s40, 8")
        a("v_add_u32 v24, s3, v11")
        a(f"ds_write_b32 v24, v{SUM} offset:{ST}")
        a(f"ds_write_b32 v24, v{SQ} offset:{ST+128}")
    a("v_lshlrev_b32 v25, 4, v29")
    a("s_waitcnt lgkmcnt(0)")
    a("s_barrier")
    CSV = WF
    def load_cs(u, dst):
        for j in range(4):
            a(f"ds_read_b128 v[{dst+4*j}:{dst+4*j+3}], v25 offset:{CS+u*128+j*32}")
    def ln_T(u, cs, scale_reg):
        d = ACC + u * 16
        for i in range(16):
            a(f"v_fma_f32 v{d+i}, -v{SUM}, v{cs+i}, v{d+i}")
        for i in range(16):
            a(f"v_mul_f32 v{d+i}, v{d+i}, v{scale_reg}")
    P = 64
    if A:
        load_cs(1, CSV + 16)
        a(f"ds_read_b32 v{T+2}, v11 offset:{CS+256}")
        a("s_lshl_b32 s3, s40, 8")
        a("v_add_u32 v24, s3, v25")
        for j in range(4):
            a(f"ds_read_b128 v[{T+8+4*j}:{T+11+4*j}], v24 offset:{ST+j*32}")
            a(f"ds_read_b128 v[{T+24+4*j}:{T+27+4*j}], v24 offset:{ST+128+j*32}")
        load_cs(0, CSV)
        a(f"v_mul_f32 v{T+3}, {f2h(QSCALE)}, v{SQ}")
        a("v_lshlrev_b32 v26, 5, v10")
        a("v_add_u32 v26, v26, v25")
        a("v_bfe_u32 v27, v1, 4, 1")
        a("v_lshlrev_b32 v27, 16, v27")
        a("v_lshl_add_u32 v27, v29, 8, v27")
        a("v_and_b32 v28, 15, v1")
        a("v_lshl_add_u32 v27, v28, 4, v27")
        a("s_lshl_b32 s3, s42, 17")
        a("s_lshl_b32 s4, s43, 10")
        a("s_add_u32 s3, s3, s4")
        a(f"s_add_u32 s6, s3, {WS_KH}")
        a(f"s_add_u32 s7, s3, {WS_KH+65536}")
        a(f"s_add_u32 s8, s3, {WS_VT}")
        a("s_waitcnt lgkmcnt(13)")
        d = ACC + 16
        ln_T(1, CSV + 16, SQ)
        for i in range(8):
            a(f"v_cvt_pk_bf16_f32 v{P+8+i}, v{d+2*i}, v{d+2*i+1}")
        a(f"buffer_store_dwordx4 v[{P+8}:{P+11}], v26, s[36:39], s6 offen sc1")
        a(f"buffer_store_dwordx4 v[{P+12}:{P+15}], v26, s[36:39], s7 offen sc1")
        a("s_waitcnt lgkmcnt(4)")
        d = ACC + 32
        for i in range(16):
            a(f"v_fma_f32 v{d+i}, -v{T+8+i}, v{T+2}, v{d+i}")
        for i in range(16):
            a(f"v_mul_f32 v{d+i}, v{d+i}, v{T+24+i}")
        for i in range(8):
            a(f"v_cvt_pk_bf16_f32 v{P+16+i}, v{d+2*i}, v{d+2*i+1}")
        a(f"buffer_store_dwordx4 v[{P+16}:{P+19}], v27, s[36:39], s8 offen sc1")
        a(f"buffer_store_dwordx4 v[{P+20}:{P+23}], v27, s[36:39], s8 offen offset:512 sc1")
        a("s_waitcnt lgkmcnt(0)")
        d = ACC
        ln_T(0, CSV, T + 3)
        for i in range(8):
            a(f"v_cvt_pk_bf16_f32 v{P+i}, v{d+2*i}, v{d+2*i+1}")
        a("v_lshlrev_b32 v29, 4, v1")
        a("s_lshl_b32 s3, s40, 11")
        a("v_add_u32 v30, s3, v29")
        a(f"ds_write_b128 v30, v[{P}:{P+3}] offset:{SCR+4096}")
        a(f"ds_write_b128 v30, v[{P+4}:{P+7}] offset:{SCR+4096+1024}")
        get_nonce(a, T)
        a("s_lshl_b32 s4, s42, 8")
        a("s_lshl_b32 s5, s43, 2")
        a("s_add_u32 s4, s4, s5")
        a(f"s_add_u32 s4, s4, {F1}")
        publish(a, "s4", T)
        a("s_waitcnt lgkmcnt(0)")
        a("s_barrier")
        return SCR + 4096
    else:
        a("v_lshlrev_b32 v26, 4, v1")
        a("s_mul_i32 s3, s43, 144")
        a("s_mul_i32 s4, s42, 7")
        a("s_add_u32 s3, s3, s4")
        a("s_add_u32 s3, s3, 32")
        a("s_and_b32 s7, s42, 1")
        a("s_add_u32 s4, s3, s7")
        a("s_cmp_eq_u32 s7, 0")
        a("s_cselect_b32 s5, 6, 0")
        a("s_add_u32 s5, s3, s5")
        a("s_lshl_b32 s4, s4, 10")
        a(f"s_add_u32 s4, s4, {WS_AF}")
        a("s_lshl_b32 s5, s5, 10")
        a(f"s_add_u32 s5, s5, {WS_AF}")
        a(f"s_add_u32 s6, s4, 4096")
        a(f"s_mov_b32 s9, {f2h(-LOG2E)}")
        def silu_mul(g, u_, n, dst):
            for i in range(n): a(f"v_mul_f32 v{T+i}, s9, v{g+i}")
            for i in range(n): a(f"v_exp_f32 v{T+i}, v{T+i}")
            for i in range(n): a(f"v_mul_f32 v{g+i}, v{g+i}, v{u_+i}")
            for i in range(n): a(f"v_add_f32 v{T+i}, 1.0, v{T+i}")
            for i in range(n): a(f"v_rcp_f32 v{T+i}, v{T+i}")
            a("s_nop 0")
            for i in range(n): a(f"v_mul_f32 v{g+i}, v{g+i}, v{T+i}")
            for i in range(n // 2): a(f"v_cvt_pk_bf16_f32 v{dst+i}, v{g+2*i}, v{g+2*i+1}")
        load_cs(0, CSV); load_cs(1, CSV + 16)
        a("s_waitcnt vmcnt(0)")
        a(f"v_mov_b32 v{SQ}, v{SUM+1}")
        for p in range(3):
            a("s_waitcnt lgkmcnt(0)")
            ln_T(2 * p, CSV, SQ)
            ln_T(2 * p + 1, CSV + 16, SQ)
            if p < 2:
                load_cs(2 * p + 2, CSV); load_cs(2 * p + 3, CSV + 16)
            else:
                load_cs(6, CSV)
            silu_mul(ACC + 32 * p, ACC + 32 * p + 16, 16, P + 8 * p)
            so, im = ("s4", 2048 * p) if p < 2 else ("s6", 0)
            a(f"buffer_store_dwordx4 v[{P+8*p}:{P+8*p+3}], v26, s[36:39], {so} offen offset:{im} sc1")
            a(f"buffer_store_dwordx4 v[{P+8*p+4}:{P+8*p+7}], v26, s[36:39], {so} offen offset:{im+1024} sc1")
        a("s_waitcnt lgkmcnt(0)")
        ln_T(6, CSV, SQ)
        silu_mul(ACC + 96, ACC + 104, 8, P + 24)
        a(f"buffer_store_dwordx4 v[{P+24}:{P+27}], v26, s[36:39], s5 offen sc1")
        a("s_lshl_b32 s4, s43, 6")
        a("s_lshl_b32 s5, s42, 2")
        a("s_add_u32 s4, s4, s5")
        a(f"s_add_u32 s4, s4, {FH}")
        publish(a, "s4", T)
        a("s_barrier")


def gemm1A(a):
    SB, NS = 6144, 13
    VW, VW3, RW, RW2 = 6, 7, 8, 9
    WF, ACC, XN = 16, 64, 112
    srd(a, 48, 18, 512 * 3072)
    a("s_and_b32 s3, s40, 1")
    a("s_lshr_b32 s4, s40, 1")
    a("v_lshrrev_b32 v16, 2, v1")
    a("v_and_b32 v17, 3, v1")
    a(f"v_mul_u32_u24 v{VW}, 3072, v16")
    a(f"v_lshl_add_u32 v{VW}, v17, 4, v{VW}")
    a("s_lshl_b32 s64, s42, 6")
    a(f"s_mul_i32 s5, s3, {16*3072}")
    a("s_add_u32 s64, s64, s5")
    a(f"v_add_u32 v{VW3}, 2048, v{VW}")
    a("s_lshl_b32 s5, s4, 10")
    a(f"v_add_u32 v{VW}, s5, v{VW}")
    a("s_lshl_b32 s5, s4, 11")
    a("s_lshl_b32 s6, s3, 10")
    a("s_add_u32 s69, s6, 4096")
    a("s_add_u32 s68, s5, s6")
    a("s_cmp_eq_u32 s4, 0")
    a("s_cselect_b32 s14, -1, 0")
    a("s_cselect_b32 s15, 0, -1")
    rot_setup(a, 1, 3072)
    def loadW(st):
        o = (st % NS) * SB
        a(f"s_add_u32 m0, s68, {o}")
        a("s_nop 0")
        a(f"buffer_load_dwordx4 v{VW}, s[48:51], s64 offen lds")
        a(f"s_add_u32 m0, s69, {o}")
        a("s_mov_b64 exec, s[14:15]")
        a(f"buffer_load_dwordx4 v{VW3}, s[48:51], s64 offen lds")
        a("s_mov_b64 exec, -1")
        a(f"s_add_u32 s64, s64, {32*3072}")
        if st % 2 == 1:
            for i in w_wrap(3072): a(i)
    for st in range(NS): loadW(st)
    tr_base(a, RW, 0)
    a(f"v_add_u32 v{RW2}, {7*SB}, v{RW}")
    for i in range(48): a(f"v_mov_b32 v{ACC+i}, 0")
    a("v_lshlrev_b32 v2, 4, v1")
    get_nonce(a, 240)
    poll_xn(a, 240)
    stamp(a, 1)
    for ks in range(32):
        if ks and ks % 4 == 0:
            for i in X_ADV: a(i)
        a(f"buffer_load_dwordx4 v[{XN+4*ks}:{XN+4*ks+3}], v2, s[36:39], s72 offen offset:{(ks%4)*1024} sc1")
    a("s_barrier")
    def rd(ks):
        st, kk = ks // 2, ks % 2
        sl = st % NS
        base, o = (RW, sl * SB) if sl < 7 else (RW2, (sl - 7) * SB)
        out = []
        for u in range(3):
            r = WF + (ks % 4) * 12 + u * 4
            out.append(f"ds_read_b64_tr_b16 v[{r}:{r+1}], v{base} offset:{o+u*2048+kk*1024}")
            out.append(f"ds_read_b64_tr_b16 v[{r+2}:{r+3}], v{base} offset:{o+u*2048+kk*1024+256}")
        return out
    for i in rd(0) + rd(1): a(i)
    extra = 0
    for ks in range(32):
        if ks == 8:
            a("s_barrier")
            for st in range(NS, 16): loadW(st)
            extra = 6
        if ks == 24:
            a("s_waitcnt vmcnt(0)")
            a("s_barrier")
        elif ks < 24:
            a(f"s_waitcnt vmcnt({31-ks+extra})")
        a(f"s_waitcnt lgkmcnt({6 if ks < 31 else 0})")
        RL = rd(ks + 2) if ks + 2 < 32 else []
        x = XN + 4 * ks
        for u in range(3):
            w, d = WF + (ks % 4) * 12 + u * 4, ACC + u * 16
            if u == 2: mfma(a, d, x, w, d)
            else: mfma(a, d, w, x, d)
            for i in RL[2*u:2*u+2]: a(i)
    stamp(a, 2)
    P = 16
    a("v_and_b32 v10, 31, v1")
    a("v_lshrrev_b32 v11, 5, v1")
    a("v_lshlrev_b32 v12, 5, v10")
    a("v_lshl_add_u32 v12, v11, 4, v12")
    a("v_bfe_u32 v13, v1, 4, 1")
    a("v_lshlrev_b32 v13, 16, v13")
    a("v_lshl_add_u32 v13, v11, 8, v13")
    a("v_and_b32 v14, 15, v1")
    a("v_lshl_add_u32 v13, v14, 4, v13")
    a("s_lshl_b32 s3, s42, 17")
    a("s_lshl_b32 s4, s43, 10")
    a("s_add_u32 s3, s3, s4")
    a(f"s_add_u32 s6, s3, {WS_KH}")
    a(f"s_add_u32 s7, s3, {WS_KH+65536}")
    a(f"s_add_u32 s8, s3, {WS_VT}")
    a(f"s_mov_b32 s9, {f2h(QSCALE)}")
    for i in range(8): a(f"v_cvt_pk_bf16_f32 v{P+8+i}, v{ACC+16+2*i}, v{ACC+17+2*i}")
    a(f"buffer_store_dwordx4 v[{P+8}:{P+11}], v12, s[36:39], s6 offen sc1")
    a(f"buffer_store_dwordx4 v[{P+12}:{P+15}], v12, s[36:39], s7 offen sc1")
    for i in range(8): a(f"v_cvt_pk_bf16_f32 v{P+16+i}, v{ACC+32+2*i}, v{ACC+33+2*i}")
    a(f"buffer_store_dwordx4 v[{P+16}:{P+19}], v13, s[36:39], s8 offen sc1")
    a(f"buffer_store_dwordx4 v[{P+20}:{P+23}], v13, s[36:39], s8 offen offset:512 sc1")
    for i in range(16): a(f"v_mul_f32 v{ACC+i}, s9, v{ACC+i}")
    for i in range(8): a(f"v_cvt_pk_bf16_f32 v{P+i}, v{ACC+2*i}, v{ACC+2*i+1}")
    QL = 5 * SB
    a("v_lshlrev_b32 v29, 4, v1")
    a("s_lshl_b32 s3, s40, 11")
    a("v_add_u32 v30, s3, v29")
    a(f"ds_write_b128 v30, v[{P}:{P+3}] offset:{QL}")
    a(f"ds_write_b128 v30, v[{P+4}:{P+7}] offset:{QL+1024}")
    a("s_lshl_b32 s4, s42, 8")
    a("s_lshl_b32 s5, s43, 2")
    a("s_add_u32 s4, s4, s5")
    a(f"s_add_u32 s4, s4, {F1}")
    publish(a, "s4", 240)
    a("s_waitcnt lgkmcnt(0)")
    a("s_barrier")
    return QL

def gemm1B(a):
    NU, R, PITCH, SB, NLD = 7, 4, 3584, 14336, 6
    VW, VW3, RW, RM, RM2 = 6, 7, 8, 9, 10
    XN, WF, ACC = 12, 44, 100
    ln_load(a)
    a("s_and_b32 s3, s40, 1")
    a("s_lshr_b32 s4, s40, 1")
    a("v_lshrrev_b32 v16, 2, v1")
    a("v_and_b32 v17, 3, v1")
    a(f"v_mul_u32_u24 v{VW}, {PITCH}, v16")
    a(f"v_lshl_add_u32 v{VW}, v17, 4, v{VW}")
    a("s_cmp_eq_u32 s4, 0")
    a("s_cselect_b32 s48, s24, s26")
    a("s_cselect_b32 s49, s25, s27")
    a(f"s_mov_b32 s50, {512*3584}")
    a("s_mov_b32 s51, 0x00020000")
    a("s_mul_i32 s64, s42, 224")
    a(f"s_mul_i32 s5, s3, {16*PITCH}")
    a("s_add_u32 s64, s64, s5")
    a("s_lshl_b32 s5, s4, 11")
    a("s_lshl_b32 s6, s3, 10")
    a("s_add_u32 s68, s5, s6")
    a("s_lshl_b32 s5, s4, 10")
    a("s_add_u32 s5, s5, 12288")
    a("s_add_u32 s6, s68, 8192")
    a("s_cmp_eq_u32 s3, 0")
    a("s_cselect_b32 s71, s5, s6")
    a("s_cselect_b64 s[14:15], -1, 1")
    a("s_and_b32 s7, s42, 1")
    a("s_lshl_b32 s8, s7, 5")
    a(f"v_add_u32 v{VW}, s8, v{VW}")
    a("s_cmp_eq_u32 s7, 0")
    a("s_cselect_b32 s8, 192, 0")
    a("v_lshrrev_b32 v18, 1, v1")
    a("s_lshl_b32 s9, s4, 2")
    a("v_xor_b32 v18, s9, v18")
    a(f"v_mul_u32_u24 v18, {PITCH}, v18")
    a("v_and_b32 v19, 1, v1")
    a("v_lshl_add_u32 v18, v19, 4, v18")
    a("v_add_u32 v18, s8, v18")
    a(f"v_add_u32 v19, 128, v{VW}")
    a("s_cmp_eq_u32 s3, 0")
    a("s_cselect_b64 vcc, -1, 0")
    a(f"v_cndmask_b32 v{VW3}, v19, v18, vcc")
    def wlist(slot):
        o = slot * SB
        g = []
        for i in range(3):
            g.append(([f"s_add_u32 m0, s68, {o+i*(4096-64)}"], f"buffer_load_dwordx4 v{VW}, s[48:51], s64 offen offset:{64*i} lds", []))
        g.append(([f"s_add_u32 m0, s71, {o}"], f"s_mov_b64 exec, s[14:15]\nbuffer_load_dwordx4 v{VW3}, s[48:51], s64 offen lds\ns_mov_b64 exec, -1",
                  [f"s_add_u32 s64, s64, {32*PITCH}"] + (w_wrap(PITCH) if slot % 2 == 1 else [])))
        return g
    def xlist(slot):
        g = []
        for kk in range(2):
            r = XN + (2 * slot + kk) * 4
            g.append(([], f"buffer_load_dwordx4 v[{r}:{r+3}], v2, s[36:39], s72 offen offset:{((2*slot+kk)%4)*1024} sc1",
                      X_ADV if (kk == 1 and slot % 2 == 1) else []))
        return g
    def emit(g):
        for pre, ins, post in g:
            for i in pre: a(i)
            if pre: a("s_nop 0")
            a(ins)
            for i in post: a(i)
    rot_setup(a, 0, PITCH)
    ln_compute(a, 3 * SB, lambda: [emit(wlist(st)) for st in range(R - 1)], 4 * (R - 1))
    stamp(a, 1)
    tr_base(a, RW, 0)
    a("v_lshlrev_b32 v21, 2, v20")
    a("v_xor_b32 v21, v21, v18")
    a(f"v_lshlrev_b32 v{RM}, 5, v21")
    a(f"v_lshl_add_u32 v{RM}, v20, 10, v{RM}")
    a(f"v_lshl_add_u32 v{RM}, v19, 3, v{RM}")
    a(f"v_add_u32 v{RM}, 12288, v{RM}")
    a(f"v_xor_b32 v{RM2}, 128, v{RM}")
    for i in range(NU * 16): a(f"v_mov_b32 v{ACC+i}, 0")
    a("s_setprio 0")
    poll_xn(a, 240)
    for st in range(R - 1): emit(xlist(st))
    def rd_w(kk, slot, u):
        b, o = WF + kk * 28 + u * 4, slot * SB
        if u == 6:
            return [f"ds_read_b64_tr_b16 v[{b}:{b+1}], v{RM} offset:{o+kk*512}", f"ds_read_b64_tr_b16 v[{b+2}:{b+3}], v{RM2} offset:{o+kk*512}"]
        return [f"ds_read_b64_tr_b16 v[{b}:{b+1}], v{RW} offset:{o+u*2048+kk*1024}", f"ds_read_b64_tr_b16 v[{b+2}:{b+3}], v{RW} offset:{o+u*2048+kk*1024+256}"]
    def body(slot, ld, vmw, last=False):
        LL = (wlist((slot + 3) % 4) + xlist((slot + 3) % 4)) if ld else []
        li = 0
        for kk in range(2):
            if kk == 1 and not last:
                a(f"s_waitcnt vmcnt({vmw})")
                a("s_barrier")
            x = XN + (2 * slot + kk) * 4
            for u in range(NU):
                nxt = rd_w(1, slot, u) if kk == 0 else ([] if last else rd_w(0, (slot + 1) % 4, u))
                if u % 2 == 0:
                    rest = max(0, 2 * (NU - 2 - u))
                    a(f"s_waitcnt lgkmcnt({rest + (2*u if (kk == 0 or not last) else 0)})")
                l = LL[li] if (ld and kk == 1 and u >= 1) else None
                if l:
                    for i in l[0]: a(i)
                mfma(a, ACC + u * 16, WF + kk * 28 + u * 4, x, ACC + u * 16)
                for i in nxt: a(i)
                if l:
                    a(l[1])
                    for i in l[2]: a(i)
                    li += 1
    stamp(a, 3 if E("BSTAMP") else 7)
    a0 = a
    class Filt:
        def __call__(self, s):
            if E("NODMA") and " lds" in s: return
            if E("NOX") and "sc1" in s: return
            if E("NOMFMA") and "v_mfma" in s: return
            if E("NOWRD") and "ds_read_b64_tr" in s: return
            if E("NOBAR") and "s_barrier" in s: return
            a0(s)
        def __getattr__(self, n): return getattr(a0, n)
    a = Filt()
    a("s_waitcnt vmcnt(4)")
    a("s_barrier")
    for u in range(NU):
        for i in rd_w(0, 0, u): a(i)
    body(0, True, 2)
    body(1, True, NLD)
    body(2, True, NLD)
    body(3, True, NLD)
    a("s_mov_b32 s75, 2")
    a.raw(".p2align 6")
    a.label("g1B_loop")
    for slot in range(4): body(slot, True, NLD)
    a("s_sub_u32 s75, s75, 1")
    a("s_cmp_lg_u32 s75, 0")
    a("s_cbranch_scc1 g1B_loop")
    body(0, True, NLD)
    body(1, False, NLD)
    body(2, False, 0)
    body(3, False, 0, last=True)
    a = a0
    stamp(a, 2)
    a("s_setprio 2")
    T, P = 212, 44
    a("v_lshlrev_b32 v2, 4, v1")
    a("s_mul_i32 s3, s43, 144")
    a("s_mul_i32 s4, s42, 7")
    a("s_add_u32 s3, s3, s4")
    a("s_add_u32 s3, s3, 32")
    a("s_and_b32 s7, s42, 1")
    a("s_add_u32 s4, s3, s7")
    a("s_cmp_eq_u32 s7, 0")
    a("s_cselect_b32 s5, 6, 0")
    a("s_add_u32 s5, s3, s5")
    a("s_lshl_b32 s4, s4, 10")
    a(f"s_add_u32 s4, s4, {WS_AF}")
    a("s_lshl_b32 s5, s5, 10")
    a(f"s_add_u32 s5, s5, {WS_AF}")
    a(f"s_add_u32 s6, s4, 4096")
    a(f"s_mov_b32 s9, {f2h(-LOG2E)}")
    def silu_mul(g, u_, n, dst):
        for i in range(n): a(f"v_mul_f32 v{T+i}, s9, v{g+i}")
        for i in range(n): a(f"v_exp_f32 v{T+i}, v{T+i}")
        for i in range(n): a(f"v_mul_f32 v{g+i}, v{g+i}, v{u_+i}")
        for i in range(n): a(f"v_add_f32 v{T+i}, 1.0, v{T+i}")
        for i in range(n): a(f"v_rcp_f32 v{T+i}, v{T+i}")
        a("s_nop 0")
        for i in range(n): a(f"v_mul_f32 v{g+i}, v{g+i}, v{T+i}")
        for i in range(n // 2): a(f"v_cvt_pk_bf16_f32 v{dst+i}, v{g+2*i}, v{g+2*i+1}")
    for p in range(3):
        silu_mul(ACC + 32 * p, ACC + 32 * p + 16, 16, P + 8 * p)
        so, im = ("s4", 2048 * p) if p < 2 else ("s6", 0)
        a(f"buffer_store_dwordx4 v[{P+8*p}:{P+8*p+3}], v2, s[36:39], {so} offen offset:{im} sc1")
        a(f"buffer_store_dwordx4 v[{P+8*p+4}:{P+8*p+7}], v2, s[36:39], {so} offen offset:{im+1024} sc1")
    silu_mul(ACC + 96, ACC + 104, 8, P + 24)
    a(f"buffer_store_dwordx4 v[{P+24}:{P+27}], v2, s[36:39], s5 offen sc1")
    a("s_lshl_b32 s4, s43, 6")
    a("s_lshl_b32 s5, s42, 2")
    a("s_add_u32 s4, s4, s5")
    a(f"s_add_u32 s4, s4, {FH}")
    publish(a, "s4", T)
    a("s_barrier")

RESCALE_T = 30
BIAS = 80
def attention(a, QL):
    name = "at"
    Q = {"A": 4, "B": 8}
    NEG = {"A": 16, "B": 32}
    S = {"A": 48, "B": 64}
    O = {"A": 80, "B": 96}
    P = {"A": 112, "B": 120}
    NR = int(E("NR", "8"))
    RING, T0 = 128, 128 + 12 * NR
    Kf = lambda s: RING + 12 * s
    V0 = lambda s: RING + 12 * s + 4
    V1 = lambda s: RING + 12 * s + 8
    mf = lambda d, x, y, c: mfma(a, d, x, y, c)
    a("s_lshr_b32 s3, s40, 1")
    a("s_lshl_b32 s60, s42, 1")
    a("s_add_u32 s60, s60, s3")
    a("s_and_b32 s4, s40, 1")
    a("s_lshl_b32 s61, s41, 1")
    a("s_add_u32 s61, s61, s4")
    a("s_lshl_b32 s4, s4, 12")
    a("s_lshl_b32 s3, s3, 10")
    a("s_add_u32 s3, s3, s4")
    a("v_add_u32 v2, s3, v29")
    a(f"ds_read_b128 v[{Q['A']}:{Q['A']+3}], v2 offset:{QL}")
    a(f"ds_read_b128 v[{Q['B']}:{Q['B']+3}], v2 offset:{QL+2048}")
    a("s_lshl_b32 s3, s60, 16")
    a(f"s_add_u32 s3, s3, {WS_KH}")
    a("s_add_u32 s44, s34, s3")
    a("s_addc_u32 s45, s35, 0")
    a("s_mov_b32 s46, 65536")
    a("s_mov_b32 s47, 0x00020000")
    a(f"s_add_u32 s48, s44, {WS_VT-WS_KH}")
    a("s_addc_u32 s49, s45, 0")
    a("s_mov_b32 s50, 65536")
    a("s_mov_b32 s51, 0x00020000")
    a("v_and_b32 v12, 31, v1")
    a("v_lshrrev_b32 v13, 5, v1")
    a("v_lshlrev_b32 v2, 5, v12")
    a("v_lshl_add_u32 v2, v13, 4, v2")
    a("v_lshlrev_b32 v3, 8, v13")
    a("v_and_b32 v14, 15, v1")
    a("v_lshl_add_u32 v3, v14, 4, v3")
    a("s_mov_b32 s62, 0x0000ffff")
    a("s_mov_b32 s63, 0x0000ffff")
    a("v_mov_b32 v14, 0x3f803f80")
    a("v_cmp_eq_u32 vcc, 16, v12")
    a("v_lshlrev_b32 v15, 2, v1")
    a("s_lshl_b32 s4, s42, 8")
    a("v_cndmask_b32 v14, 0, v14, vcc")
    for s in range(NR):
        for i in range(8):
            a(f"v_mov_b32 v{V0(s)+i}, v14")
    for X in "AB":
        for i in range(16): a(f"v_mov_b32 v{O[X]+i}, 0")
        for i in range(8): a(f"v_mov_b32 v{P[X]+i}, 0")
    a(f"s_mov_b32 s64, {f2h(2.0**RESCALE_T)}")
    a("s_mov_b32 s65, 0")
    a(f"s_add_u32 s4, s4, {F1}")
    poll(a, "s4", 15, T0)
    stamp(a, 4)
    a("s_setprio 1")
    def loads(slot, soff, imm):
        a(f"buffer_load_dwordx4 v[{Kf(slot)}:{Kf(slot)+3}], v2, s[44:47], {soff} offen offset:{imm} sc1")
        a("s_mov_b64 exec, s[62:63]")
        a(f"buffer_load_dwordx4 v[{V0(slot)}:{V0(slot)+3}], v3, s[48:51], {soff} offen offset:{imm} sc1")
        a(f"buffer_load_dwordx4 v[{V1(slot)}:{V1(slot)+3}], v3, s[48:51], {soff} offen offset:{imm+512} sc1")
        a("s_mov_b64 exec, -1")
    a("s_movk_i32 s66, 4096")
    for t in range(NR - 1):
        loads(t, "0" if t < 4 else "s66", (t % 4) * 1024)
    a(f"s_waitcnt vmcnt({3*(NR-1)-4}) lgkmcnt(0)")
    for X in "AB":
        mf(S[X], Kf(0), Q[X], None)
        mf(NEG[X], Kf(1), Q[X], None)
    a.nop(14)
    for X in "AB":
        m = T0
        a(f"v_max3_f32 v{m}, v{S[X]}, v{S[X]+1}, v{S[X]+2}")
        for i in range(3, 15, 2):
            a(f"v_max3_f32 v{m}, v{m}, v{S[X]+i}, v{S[X]+i+1}")
        a(f"v_max3_f32 v{m}, v{m}, v{S[X]+15}, v{NEG[X]}")
        for i in range(1, 15, 2):
            a(f"v_max3_f32 v{m}, v{m}, v{NEG[X]+i}, v{NEG[X]+i+1}")
        a(f"v_max_f32 v{m}, v{m}, v{NEG[X]+15}")
        a(f"v_mov_b32 v{m+1}, v{m}")
        a("s_nop 1")
        a(f"v_permlane32_swap_b32 v{m+1}, v{m}")
        a("s_nop 1")
        a(f"v_max_f32 v{m}, v{m}, v{m+1}")
        for i in range(16):
            a(f"v_sub_f32 v{NEG[X]+i}, {f2h(-float(BIAS))}, v{m}")
    a("s_nop 1")
    mf(S["A"], Kf(0), Q["A"], NEG["A"])
    a(f"s_movk_i32 s66, {(NR-1)*1024}")
    a(f"s_movk_i32 s68, {(NR-1)*1024+4096}")
    a(f"s_mov_b32 s67, {64//NR}")
    a.nop(10)
    a.raw(".p2align 6")
    a.label(f"{name}_loop")
    def half(X, tt):
        Y = "B" if X == "A" else "A"
        x, p = S[X], P[X]
        e = lambda i: a(f"v_exp_f32 v{x+i}, v{x+i}")
        c = lambda i: a(f"v_cvt_pk_bf16_f32 v{p+i}, v{x+2*i}, v{x+2*i+1}")
        e(0); e(1)
        ty = (tt - 1) % NR if X == "A" else tt
        mf(O[Y], V1(ty), P[Y] + 4, O[Y])
        if X == "A":
            loads((tt + NR - 1) % NR, "s66" if tt < 4 else "s68", (tt % 4) * 1024)
        e(2); e(3); c(0); e(4); e(5); c(1)
        if X == "B":
            a(f"s_waitcnt vmcnt({3*(NR-2)})")
        tk = tt if X == "A" else (tt + 1) % NR
        mf(S[Y], Kf(tk), Q[Y], NEG[Y])
        e(6); e(7); c(2); e(8); c(3); e(9); e(10)
        mf(O[X], V0(tt), p, O[X])
        c(4); e(11); e(12); c(5); e(13); e(14); e(15); c(6); c(7)
        if (X == "A" and tt == 1) or (X == "B" and tt == NR - 1):
            a(f"v_cmp_nge_f32 vcc, s64, v{O[Y]+8}")
            a(f"s_cbranch_vccnz {name}_rare{Y}")
            a.label(f"{name}_ret{Y}")
    for tt in range(NR):
        half("A", tt)
        half("B", tt)
    a(f"s_add_u32 s66, s66, {NR*1024}")
    if NR > 4: a(f"s_add_u32 s68, s68, {NR*1024}")
    a("s_sub_u32 s67, s67, 1")
    a("s_cmp_lg_u32 s67, 0")
    a(f"s_cbranch_scc1 {name}_loop")
    a("s_nop 1")
    mf(O["B"], V1(NR - 1), P["B"] + 4, O["B"])
    a.label(f"{name}_fin")
    stamp(a, 5)
    a.nop(14)
    a(f"v_mov_b32 v{T0}, 0")
    for X in "AB":
        for i in range(9):
            a(f"v_fma_f32 v{T0}, v{O[X]+i}, 0, v{T0}")
    a(f"v_cmp_u_f32 vcc, v{T0}, v{T0}")
    a("s_cmp_eq_u32 s65, 0")
    a("s_cselect_b64 s[4:5], vcc, 0")
    a("s_cmp_lg_u64 s[4:5], 0")
    a(f"s_cbranch_scc1 {name}_safe")
    a("s_mul_i32 s4, s61, 288")
    a("s_add_u32 s4, s4, s60")
    a("s_lshl_b32 s4, s4, 10")
    a(f"s_add_u32 s4, s4, {WS_AF}")
    a(f"s_add_u32 s5, s4, {144*1024}")
    a("v_lshlrev_b32 v12, 4, v1")
    for X in "AB":
        l = O[X] + 8
        a(f"v_mov_b32 v{T0}, v{l}")
        a("s_nop 1")
        a(f"v_permlane32_swap_b32 v{T0}, v{l}")
        a("s_nop 1")
        a(f"v_rcp_f32 v{T0}, v{T0}")
        a("s_nop 0")
        for i in range(8):
            a(f"v_mul_f32 v{O[X]+i}, v{O[X]+i}, v{T0}")
        for i in range(4):
            a(f"v_cvt_pk_bf16_f32 v{P[X]+i}, v{O[X]+2*i}, v{O[X]+2*i+1}")
        a(f"buffer_store_dwordx4 v[{P[X]}:{P[X]+3}], v12, s[36:39], {'s4' if X=='A' else 's5'} offen sc1")
    a("s_lshl_b32 s4, s61, 7")
    a("s_lshl_b32 s5, s60, 2")
    a("s_add_u32 s4, s4, s5")
    a(f"s_add_u32 s4, s4, {FO}")
    publish(a, "s4", T0)
    dump_stamps(a, 6)
    a("s_endpgm")
    for Y in "AB":
        a.label(f"{name}_rare{Y}")
        a.nop(16)
        l = O[Y] + 8
        a(f"v_mov_b32 v{T0+2}, 0x207")
        a(f"v_cmp_class_f32 vcc, v{l}, v{T0+2}")
        a(f"s_cbranch_vccnz {name}_safe")
        a(f"v_frexp_exp_i32_f32 v{T0}, v{l}")
        a(f"v_add_u32 v{T0}, {BIAS}, v{T0}")
        a(f"v_max_i32 v{T0}, 0, v{T0}")
        a(f"v_mov_b32 v{T0+1}, v{T0}")
        a("s_nop 1")
        a(f"v_permlane32_swap_b32 v{T0}, v{T0+1}")
        a("s_nop 1")
        a(f"v_cvt_f32_i32 v{T0+1}, v{T0}")
        a(f"v_sub_u32 v{T0}, 0, v{T0}")
        for i in range(9): a(f"v_ldexp_f32 v{O[Y]+i}, v{O[Y]+i}, v{T0}")
        for i in range(16): a(f"v_sub_f32 v{NEG[Y]+i}, v{NEG[Y]+i}, v{T0+1}")
        for i in range(16): a(f"v_sub_f32 v{S[Y]+i}, v{S[Y]+i}, v{T0+1}")
        a("s_nop 1")
        a(f"s_branch {name}_ret{Y}")
    a.label(f"{name}_safe")
    a("s_waitcnt vmcnt(0)")
    a.nop(16)
    a("s_mov_b32 s65, 1")
    M = {"A": NEG["A"], "B": NEG["B"]}
    for X in "AB":
        for i in range(16): a(f"v_mov_b32 v{O[X]+i}, 0")
        a(f"v_mov_b32 v{M[X]}, 0xff800000")
    a("s_mov_b32 s66, 0")
    a("s_mov_b32 s67, 64")
    a.label(f"{name}_sloop")
    loads(0, "s66", 0)
    a("s_waitcnt vmcnt(0)")
    for X in "AB":
        mf(S[X], Kf(0), Q[X], None)
    a.nop(16)
    for X in "AB":
        x, p, m = S[X], P[X], M[X]
        a(f"v_max3_f32 v{T0}, v{x}, v{x+1}, v{x+2}")
        for i in range(3, 15, 2):
            a(f"v_max3_f32 v{T0}, v{T0}, v{x+i}, v{x+i+1}")
        a(f"v_max_f32 v{T0}, v{T0}, v{x+15}")
        a(f"v_mov_b32 v{T0+1}, v{T0}")
        a("s_nop 1")
        a(f"v_permlane32_swap_b32 v{T0+1}, v{T0}")
        a("s_nop 1")
        a(f"v_max3_f32 v{T0}, v{T0}, v{T0+1}, v{m}")
        a(f"v_sub_f32 v{T0+1}, v{m}, v{T0}")
        a(f"v_exp_f32 v{T0+1}, v{T0+1}")
        a(f"v_mov_b32 v{m}, v{T0}")
        for i in range(9): a(f"v_mul_f32 v{O[X]+i}, v{O[X]+i}, v{T0+1}")
        for i in range(16): a(f"v_sub_f32 v{x+i}, v{x+i}, v{T0}")
        for i in range(16): a(f"v_exp_f32 v{x+i}, v{x+i}")
        a("s_nop 0")
        for i in range(8): a(f"v_cvt_pk_bf16_f32 v{p+i}, v{x+2*i}, v{x+2*i+1}")
        a("s_nop 1")
        mf(O[X], V0(0), p, O[X])
        mf(O[X], V1(0), p + 4, O[X])
    a.nop(16)
    a("s_add_u32 s66, s66, 1024")
    a("s_sub_u32 s67, s67, 1")
    a("s_cmp_lg_u32 s67, 0")
    a(f"s_cbranch_scc1 {name}_sloop")
    a(f"s_branch {name}_fin")

class VMQ:
    def __init__(self, a): self.a, self.q = a, []
    def issue(self, tag): self.q.append(tag)
    def wait(self, tags):
        idx = max(i for i, t in enumerate(self.q) if t in tags)
        self.a(f"s_waitcnt vmcnt({len(self.q)-1-idx})")
    def drained(self): self.q = []

def gemm2(a):
    D, NH, NK = 8, 28, 36
    ACC, AR, WF = 64, 128, 32
    a("s_and_b32 s3, s2, 7")
    a("s_bfe_u32 s4, s2, 0x50003")
    a("s_lshl_b32 s5, s3, 2")
    a("s_and_b32 s6, s4, 3")
    a("s_add_u32 s41, s5, s6")
    a("s_lshr_b32 s42, s4, 2")
    srd(a, 44, 20, 512 * 1024)
    srd(a, 48, 28, 1792 * 1024)
    a(f"s_mul_i32 s53, s40, {NH*16384}")
    a("s_lshl_b32 s52, s40, 17")
    a("s_mul_i32 s54, s41, 288")
    a(f"s_mul_i32 s5, s40, {NH}")
    a("s_add_u32 s5, s5, s54")
    a("s_add_u32 s5, s5, 32")
    a("s_lshl_b32 s5, s5, 10")
    a(f"s_add_u32 s60, s5, {WS_AF}")
    a(f"s_add_u32 s61, s60, {144*1024}")
    a("s_lshl_b32 s5, s40, 3")
    a("s_add_u32 s5, s5, s54")
    a("s_lshl_b32 s5, s5, 10")
    a(f"s_add_u32 s62, s5, {WS_AF}")
    a(f"s_add_u32 s63, s62, {144*1024}")
    a(f"s_mul_i32 s56, s40, {D*2048}")
    a("v_lshlrev_b32 v2, 4, v1")
    a("v_lshrrev_b32 v3, 5, v1")
    a("v_lshlrev_b32 v4, 2, v3")
    a("v_bfe_u32 v5, v1, 2, 2")
    a("v_add_u32 v4, v4, v5")
    a("v_lshlrev_b32 v4, 10, v4")
    a("v_bfe_u32 v6, v1, 4, 1")
    a("v_lshl_add_u32 v4, v6, 6, v4")
    a("v_and_b32 v7, 3, v1")
    a("v_lshl_add_u32 v4, v7, 4, v4")
    a("s_lshl_b32 s57, s42, 7")
    a("v_add_u32 v4, s57, v4")
    a("v_add_u32 v9, 8192, v4")
    a("v_lshlrev_b32 v8, 9, v3")
    a("v_lshl_add_u32 v8, v5, 6, v8")
    a("v_lshl_add_u32 v8, v6, 5, v8")
    a("v_lshl_add_u32 v8, v7, 3, v8")
    a("v_add_u32 v8, s56, v8")
    q = VMQ(a)
    def loadW(i):
        s = i % D
        sr_, so = ("s[48:51]", "s53") if i < NH else ("s[44:47]", "s52")
        a(f"s_add_u32 m0, s56, {s*2048}")
        a("s_nop 0")
        a(f"buffer_load_dwordx4 v4, {sr_}, {so} offen lds"); q.issue(("W", i))
        a(f"s_add_u32 m0, s56, {s*2048+1024}")
        a("s_nop 0")
        a(f"buffer_load_dwordx4 v9, {sr_}, {so} offen lds"); q.issue(("W", i))
        a(f"s_add_u32 {so}, {so}, 16384")
    def loadA(i):
        r = AR + (i % D) * 8
        j = i if i < NH else i - NH
        s0, s1 = ("s60", "s61") if i < NH else ("s62", "s63")
        a(f"buffer_load_dwordx4 v[{r}:{r+3}], v2, s[36:39], {s0} offen offset:{(j%4)*1024} sc1"); q.issue(("A", i))
        a(f"buffer_load_dwordx4 v[{r+4}:{r+7}], v2, s[36:39], {s1} offen offset:{(j%4)*1024} sc1"); q.issue(("A", i))
        if j % 4 == 3:
            a(f"s_add_u32 {s0}, {s0}, 4096")
            a(f"s_add_u32 {s1}, {s1}, 4096")
    for i in range(D): loadW(i)
    for i in range(64): a(f"v_mov_b32 v{ACC+i}, 0")
    a("v_and_b32 v10, 3, v1")
    a("v_lshlrev_b32 v10, 2, v10")
    a("v_bfe_u32 v11, v1, 2, 1")
    a("v_lshl_add_u32 v10, v11, 6, v10")
    a("s_lshl_b32 s4, s41, 7")
    a("s_lshl_b32 s5, s40, 4")
    a("s_add_u32 s4, s4, s5")
    a(f"s_add_u32 s4, s4, {FH}")
    a("s_setprio 0")
    poll(a, "s4", 10, 12); q.drained()
    stamp(a, 4)
    for i in range(D): loadA(i)
    def rd(i):
        s = i % D
        for u in range(2):
            b = WF + (i % 2) * 8 + u * 4
            a(f"ds_read_b64_tr_b16 v[{b}:{b+1}], v8 offset:{s*2048+u*256}")
            a(f"ds_read_b64_tr_b16 v[{b+2}:{b+3}], v8 offset:{s*2048+1024+u*256}")
    rd(0)
    for i in range(NK):
        if i == NH:
            a("v_and_b32 v10, 7, v1")
            a("v_lshlrev_b32 v10, 2, v10")
            a("s_lshl_b32 s4, s41, 7")
            a("s_lshl_b32 s5, s40, 5")
            a("s_add_u32 s4, s4, s5")
            a(f"s_add_u32 s4, s4, {FO}")
            stamp(a, 5)
            poll(a, "s4", 10, 12); q.drained()
            stamp(a, 6)
            for j in range(NH, NK): loadA(j)
        tags = [("A", i)] + ([("W", i + 1)] if i + 1 < NK else [])
        tags = [t for t in tags if t in q.q]
        if tags: q.wait(tags)
        if i + 1 < NK:
            rd(i + 1)
            a("s_waitcnt lgkmcnt(4)")
        else:
            a("s_waitcnt lgkmcnt(0)")
        r = AR + (i % D) * 8
        for t in range(2):
            for u in range(2):
                w = WF + (i % 2) * 8 + u * 4
                d = ACC + (t * 2 + u) * 16
                mfma(a, d, w, r + 4 * t, d)
        if i + D < NK:
            loadW(i + D)
            if i + D < NH: loadA(i + D)
    PITCH = 272
    a("s_setprio 2")
    a("s_barrier")
    a("v_and_b32 v9, 31, v1")
    a(f"v_mul_u32_u24 v9, {PITCH}, v9")
    a("v_lshl_add_u32 v9, v3, 4, v9")
    a(f"s_mul_i32 s56, s40, {64*PITCH}")
    a("v_add_u32 v9, s56, v9")
    a("v_lshrrev_b32 v10, 3, v0")
    a("v_and_b32 v11, 7, v0")
    a("s_lshl_b32 s57, s41, 6")
    a("v_add_u32 v12, s57, v10")
    a("v_lshlrev_b32 v12, 10, v12")
    a("v_lshl_add_u32 v12, v11, 4, v12")
    a("s_lshl_b32 s57, s42, 7")
    a("v_add_u32 v12, s57, v12")
    srd(a, 44, 16, 2048 * 1024)
    srd(a, 48, 30, 2048 * 1024)
    a("s_mov_b32 s58, 32768")
    a("buffer_load_dwordx4 v[16:19], v12, s[44:47], 0 offen")
    a("buffer_load_dwordx4 v[20:23], v12, s[44:47], s58 offen")
    for t in range(2):
        for u in range(2):
            d = ACC + (t * 2 + u) * 16
            for j in range(4):
                a(f"ds_write_b128 v9, v[{d+4*j}:{d+4*j+3}] offset:{t*32*PITCH + u*128 + j*32}")
    a(f"v_mul_u32_u24 v13, {PITCH}, v10")
    a("v_lshl_add_u32 v13, v11, 5, v13")
    a("s_waitcnt lgkmcnt(0)")
    a("s_barrier")
    for it in range(2):
        for w in range(4):
            b = AR + (it * 4 + w) * 8
            off = w * 64 * PITCH + it * 32 * PITCH
            a(f"ds_read_b128 v[{b}:{b+3}], v13 offset:{off}")
            a(f"ds_read_b128 v[{b+4}:{b+7}], v13 offset:{off+16}")
    a("s_waitcnt vmcnt(0)")
    for it in range(2):
        xs = 16 + 4 * it
        for i in range(4):
            a(f"v_lshlrev_b32 v{24+it*8+2*i}, 16, v{xs+i}")
            a(f"v_and_b32 v{25+it*8+2*i}, 0xffff0000, v{xs+i}")
    for it in range(2):
        a(f"s_waitcnt lgkmcnt({8*(1-it)})")
        for w in range(4):
            b = AR + (it * 4 + w) * 8
            for i in range(8):
                a(f"v_add_f32 v{24+it*8+i}, v{24+it*8+i}, v{b+i}")
        for i in range(4):
            a(f"v_cvt_pk_bf16_f32 v{40+it*4+i}, v{24+it*8+2*i}, v{25+it*8+2*i}")
        a(f"buffer_store_dwordx4 v[{40+it*4}:{43+it*4}], v12, s[48:51], {'0' if it==0 else 's58'} offen")
    dump_stamps(a, 7)
    a("s_endpgm")

def gen(a):
    a.raw(f".globl {NAME}")
    a.raw(".p2align 8")
    a.raw(f".type {NAME},@function")
    a.label(NAME)
    a("s_cmp_ge_u32 s2, 512")
    a(f"s_cbranch_scc1 {NAME}_done")
    a("s_load_dwordx16 s[16:31], s[0:1], 0")
    a("s_load_dwordx4 s[32:35], s[0:1], 64")
    a("s_memrealtime s[10:11]")
    a("v_and_b32 v1, 63, v0")
    a("v_lshrrev_b32 v2, 6, v0")
    a("s_and_b32 s3, s2, 7")
    a("v_readfirstlane_b32 s40, v2")
    a("s_bfe_u32 s4, s2, 0x50003")
    a("s_and_b32 s5, s3, 1")
    a("s_lshl_b32 s5, s5, 3")
    a("s_and_b32 s6, s4, 7")
    a("s_add_u32 s41, s5, s6")
    a("s_lshr_b32 s5, s3, 1")
    a("s_lshl_b32 s5, s5, 2")
    a("s_lshr_b32 s6, s4, 3")
    a("s_add_u32 s42, s5, s6")
    a("s_waitcnt lgkmcnt(0)")
    stamp(a, 0)
    srd(a, 36, 34, WS_NREC)
    srd(a, 56, 32, 256)
    a("s_cmp_ge_u32 s2, 256")
    a(f"s_cbranch_scc1 {NAME}_B")
    a("s_setprio 2")
    a("s_or_b32 s3, s2, s40")
    a("s_cmp_lg_u32 s3, 0")
    a(f"s_cbranch_scc1 {NAME}_A")
    a("s_or_b32 s10, s10, 1")
    a("v_mov_b32 v2, s10")
    a("v_mov_b32 v3, 0")
    a("s_mov_b64 exec, 1")
    a("buffer_store_dword v2, v3, s[56:59], 0 offen sc1")
    a("s_mov_b64 exec, -1")
    a("s_waitcnt vmcnt(0)")
    a.label(f"{NAME}_A")
    if E("ONLY_B"): a("s_endpgm")
    QL = gemm1A(a) if E("A_XN") else gemm1(a, "A")
    if not E("ITER"): stamp(a, 3)
    if E("ONLY_G1"):
        dump_stamps(a, 7 if E("ITER") else 4)
        a("s_endpgm")
    attention(a, QL)
    a.label(f"{NAME}_B")
    if E("ONLY_A"): a("s_endpgm")
    a("s_setprio 3")
    gemm1B(a)
    if not E("BSTAMP"): stamp(a, 3)
    if E("ONLY_G1"):
        dump_stamps(a, 4)
        a("s_endpgm")
    gemm2(a)
    a.label(f"{NAME}_done")
    a("s_endpgm")

if __name__ == "__main__":
    out = sys.argv[1] if len(sys.argv) > 1 else "v3.s"
    a = Asm()
    gen(a)
    for p in check_hazards(a.lines, NAME): print("HAZARD", p, file=sys.stderr)
    txt = HEADER + f"; @launch kernel={NAME} grid=(512,1,1) block=(256,1,1) lds=81920\n" + '.amdgcn_target "amdgcn-amd-amdhsa--gfx950"\n.text\n' + a.text()
    txt += f""".section .rodata,"a"
.p2align 6
.amdhsa_kernel {NAME}
  .amdhsa_next_free_vgpr 256
  .amdhsa_next_free_sgpr 102
  .amdhsa_accum_offset 256
  .amdhsa_group_segment_fixed_size 0
  .amdhsa_kernarg_size 80
  .amdhsa_user_sgpr_count 2
  .amdhsa_user_sgpr_kernarg_segment_ptr 1
  .amdhsa_system_sgpr_workgroup_id_x 1
.end_amdhsa_kernel
"""
    open(out, "w").write(txt)
```

```python
import sys, math, struct, os
from asmlib import *

def f2h(x):
    return "0x%08x" % struct.unpack("<I", struct.pack("<f", x))[0]
E = os.environ.get
WS_KH = 4 << 20
WS_VT = 6 << 20
WS_AF = 8 << 20
WS_FL = 20 << 20
F1, FH, FO, FX = WS_FL, WS_FL + 4096, WS_FL + 8192, WS_FL + 12288
WS_ST = 21 << 20
WS_NREC = 32 << 20
LOG2E = math.log2(math.e)
QSCALE = 0.25 * LOG2E
TIMING = bool(E("TIMING"))
SPIN_MAX = 200000
NAME = "parallel_sum__mha_block__swiglu_ffn__prompt_kernel" if E("FINAL") else "fused_kernel"

HEADER = """; Kernarg layout for this problem (80 bytes, ptrs only, base s[0:1]):
"""

def srd(a, d, base, nrec):
    a(f"s_mov_b32 s{d}, s{base}")
    a(f"s_mov_b32 s{d+1}, s{base+1}")
    a(f"s_mov_b32 s{d+2}, {nrec}")
    a(f"s_mov_b32 s{d+3}, 0x00020000")

def stamp(a, idx):
    if TIMING:
        a(f"{'s_memtime' if E('CYC') else 's_memrealtime'} s[{84+2*idx}:{85+2*idx}]")
        a("s_waitcnt lgkmcnt(0)")
def dump_stamps(a, last):
    if TIMING:
        a("s_waitcnt vmcnt(0)")
        stamp(a, last)
        a("s_add_u32 s76, s34, 0x8000000")
        a("s_addc_u32 s77, s35, 0")
        a("s_mov_b32 s78, 0x100000")
        a("s_mov_b32 s79, 0x00020000")
        a("s_lshl_b32 s80, s2, 7")
        a("s_lshl_b32 s81, s40, 5")
        a("s_add_u32 s80, s80, s81")
        a("v_mov_b32 v250, s80")
        for i in range(8):
            a(f"v_mov_b32 v252, s{84+2*i}")
            a(f"buffer_store_dword v252, v250, s[76:79], 0 offen offset:{4*i}")
            a("s_nop 1")

def round_bf16(a, v, t):
    a(f"v_cvt_pk_bf16_f32 v{t}, v{v}, v{v}")
    a(f"v_lshlrev_b32 v{v}, 16, v{t}")

def mfma(a, d, x, y, c):
    a(f"v_mfma_f32_32x32x16_bf16 v[{d}:{d+15}], v[{x}:{x+3}], v[{y}:{y+3}], " + (f"v[{c}:{c+15}]" if c is not None else "0"))

class VMQ:
    def __init__(self, a): self.a, self.q = a, []
    def issue(self, tag): self.q.append(tag)
    def wait(self, tags):
        idx = max(i for i, t in enumerate(self.q) if t in tags)
        self.a(f"s_waitcnt vmcnt({len(self.q)-1-idx})")
    def drained(self): self.q = []

UID = [0]
def uid():
    UID[0] += 1
    return UID[0]

def get_nonce(a, vt):
    n = uid()
    a(f"v_mov_b32 v{vt+1}, 0")
    a(f"s_mov_b32 s3, {SPIN_MAX}")
    a.label(f"nonce{n}")
    a(f"buffer_load_dword v{vt}, v{vt+1}, s[56:59], 0 offen sc1")
    a("s_waitcnt vmcnt(0)")
    a(f"v_readfirstlane_b32 s83, v{vt}")
    a("s_sub_u32 s3, s3, 1")
    a("s_cmp_eq_u32 s3, 0")
    a(f"s_cbranch_scc1 nonce{n}_ok")
    a("s_cmp_eq_u32 s83, 0")
    a(f"s_cbranch_scc1 nonce{n}")
    a.label(f"nonce{n}_ok")

def publish(a, soff, vt):
    a(f"v_mov_b32 v{vt}, s83")
    a(f"v_mov_b32 v{vt+1}, 0")
    a("s_waitcnt vmcnt(0)")
    a("s_mov_b64 exec, 1")
    a(f"buffer_store_dword v{vt}, v{vt+1}, s[36:39], {soff} offen sc1")
    a("s_mov_b64 exec, -1")

def poll(a, soff, nflags, vt):
    n = uid()
    a("s_cmp_lg_u32 s40, 0")
    a(f"s_cbranch_scc1 poll{n}_ok")
    a(f"v_and_b32 v{vt+1}, {nflags-1}, v1")
    a(f"v_lshlrev_b32 v{vt+1}, 2, v{vt+1}")
    a(f"s_mov_b32 s3, {SPIN_MAX}")
    a.label(f"poll{n}")
    a(f"buffer_load_dword v{vt}, v{vt+1}, s[36:39], {soff} offen sc1")
    a("s_waitcnt vmcnt(0)")
    a(f"v_cmp_ne_u32 vcc, s83, v{vt}")
    a(f"s_cbranch_vccz poll{n}_ok")
    a(f"s_sleep {E('SLEEP', '4')}")
    a("s_sub_u32 s3, s3, 1")
    a("s_cmp_lg_u32 s3, 0")
    a(f"s_cbranch_scc1 poll{n}")
    a.label(f"poll{n}_ok")
    a("s_waitcnt vmcnt(0)")
    a("s_barrier")

def ln_load(a):
    srd(a, 44, 16, 2048 * 1024)
    a("s_lshl_b32 s3, s41, 7")
    a("s_lshl_b32 s4, s42, 3")
    a("s_add_u32 s3, s3, s4")
    a("s_lshl_b32 s4, s40, 1")
    a("s_add_u32 s3, s3, s4")
    a("s_lshl_b32 s3, s3, 10")
    a("s_mov_b32 s65, s3")
    a("v_lshlrev_b32 v2, 4, v1")
    a("buffer_load_dwordx4 v[208:211], v2, s[44:47], s3 offen")
    a("buffer_load_dwordx4 v[212:215], v2, s[44:47], s3 offen offset:1024")
    a("v_mov_b32 v247, 0")
    a("buffer_load_dword v246, v247, s[56:59], 0 offen sc1")

def ln_compute(a, LS, after_stores, nyounger, mid=None):
    X = (216, 224)
    S = 232
    a(f"s_waitcnt vmcnt({1+nyounger})")
    if E("LNST"): stamp(a, 2)
    if mid:
        a("s_waitcnt vmcnt(0)")
        mid()
    for r in range(2):
        for i in range(4):
            a(f"v_lshlrev_b32 v{X[r]+2*i}, 16, v{208+4*r+i}")
            a(f"v_and_b32 v{X[r]+2*i+1}, 0xffff0000, v{208+4*r+i}")
    for r in range(2):
        a(f"v_add_f32 v{S+r}, v{X[r]}, v{X[r]+1}")
        a(f"v_mul_f32 v{S+2+r}, v{X[r]}, v{X[r]}")
    for i in range(1, 8):
        for r in range(2):
            if i >= 2: a(f"v_add_f32 v{S+r}, v{S+r}, v{X[r]+i}")
            a(f"v_fmac_f32 v{S+2+r}, v{X[r]+i}, v{X[r]+i}")
    for off in (0x041F, 0x081F, 0x101F, 0x201F, 0x401F):
        for i in range(4): a(f"ds_swizzle_b32 v{S+4+i}, v{S+i} offset:{off}")
        a("s_waitcnt lgkmcnt(0)")
        for i in range(4): a(f"v_add_f32 v{S+i}, v{S+i}, v{S+4+i}")
    for i in range(4): a(f"v_mov_b32 v{S+4+i}, v{S+i}")
    a("s_nop 1")
    for i in range(4): a(f"v_permlane32_swap_b32 v{S+4+i}, v{S+i}")
    a("s_nop 1")
    for i in range(4): a(f"v_add_f32 v{S+i}, v{S+i}, v{S+4+i}")
    for i in range(4): a(f"v_mul_f32 v{S+i}, {f2h(1.0/512)}, v{S+i}")
    for r in range(2): a(f"v_fma_f32 v{S+2+r}, -v{S+r}, v{S+r}, v{S+2+r}")
    for r in range(2): a(f"v_max_f32 v{S+2+r}, 0, v{S+2+r}")
    def rnd(regs):
        for k, v in enumerate(regs): a(f"v_cvt_pk_bf16_f32 v{S+4+k}, v{v}, v{v}")
        for k, v in enumerate(regs): a(f"v_lshlrev_b32 v{v}, 16, v{S+4+k}")
    rnd((S, S + 1, S + 2, S + 3))
    for r in range(2): a(f"v_add_f32 v{S+2+r}, {f2h(1e-5)}, v{S+2+r}")
    rnd((S + 2, S + 3))
    for r in range(2): a(f"v_sqrt_f32 v{S+2+r}, v{S+2+r}")
    a("s_nop 0")
    rnd((S + 2, S + 3))
    for r in range(2): a(f"v_rcp_f32 v{S+2+r}, v{S+2+r}")
    for r in range(2):
        for i in range(8): a(f"v_sub_f32 v{X[r]+i}, v{X[r]+i}, v{S+r}")
    for r in range(2):
        for i in range(4): a(f"v_cvt_pk_bf16_f32 v{208+4*r+i}, v{X[r]+2*i}, v{X[r]+2*i+1}")
    for r in range(2):
        for i in range(4):
            a(f"v_lshlrev_b32 v{X[r]+2*i}, 16, v{208+4*r+i}")
            a(f"v_and_b32 v{X[r]+2*i+1}, 0xffff0000, v{208+4*r+i}")
    for r in range(2):
        for i in range(8): a(f"v_mul_f32 v{X[r]+i}, v{X[r]+i}, v{S+2+r}")
    for r in range(2):
        for i in range(4): a(f"v_cvt_pk_bf16_f32 v{208+4*r+i}, v{X[r]+2*i}, v{X[r]+2*i+1}")
    a("v_lshlrev_b32 v240, 7, v1")
    a("s_lshl_b32 s3, s40, 5")
    a("v_add_u32 v240, s3, v240")
    a(f"ds_write_b128 v240, v[208:211] offset:{LS}")
    a(f"ds_write_b128 v240, v[212:215] offset:{LS+16}")
    a("v_lshlrev_b32 v241, 4, v1")
    a("s_lshl_b32 s3, s40, 11")
    a("v_add_u32 v241, s3, v241")
    a("v_lshrrev_b32 v242, 3, v1")
    a("v_lshrrev_b32 v243, 1, v242")
    a("v_lshlrev_b32 v243, 10, v243")
    a("v_and_b32 v242, 1, v242")
    a("v_lshl_add_u32 v243, v242, 9, v243")
    a("v_and_b32 v242, 7, v1")
    a("v_lshl_add_u32 v243, v242, 4, v243")
    a("s_lshl_b32 s3, s41, 2")
    a("s_lshr_b32 s4, s42, 2")
    a("s_add_u32 s5, s3, s4")
    a("s_lshl_b32 s3, s5, 15")
    a("s_and_b32 s4, s42, 3")
    a("s_lshl_b32 s6, s4, 7")
    a("s_add_u32 s3, s3, s6")
    a("s_lshl_b32 s6, s40, 13")
    a("s_add_u32 s3, s3, s6")
    a("s_add_u32 s6, s3, 4096")
    a("s_waitcnt lgkmcnt(0)")
    if E("LNST"): stamp(a, 3)
    a("s_barrier")
    a(f"ds_read_b128 v[208:211], v241 offset:{LS}")
    a(f"ds_read_b128 v[212:215], v241 offset:{LS+1024}")
    a("s_lshl_b32 s5, s5, 6")
    a("s_lshl_b32 s4, s4, 4")
    a("s_add_u32 s5, s5, s4")
    a("s_lshl_b32 s4, s40, 2")
    a("s_add_u32 s5, s5, s4")
    a(f"s_add_u32 s66, s5, {FX}")
    a("s_waitcnt lgkmcnt(1)")
    a("buffer_store_dwordx4 v[208:211], v243, s[36:39], s3 offen sc1")
    a("s_waitcnt lgkmcnt(0)")
    a("buffer_store_dwordx4 v[212:215], v243, s[36:39], s6 offen sc1")
    a(f"v_mov_b32 v{S+4}, v{S}")
    a(f"v_mov_b32 v{S+5}, v{S+2}")
    a(f"v_mov_b32 v{S+6}, v{S+1}")
    a(f"v_mov_b32 v{S+7}, v{S+3}")
    a("s_lshr_b32 s3, s65, 7")
    a(f"s_add_u32 s3, s3, {WS_ST}")
    a("s_mov_b64 exec, 1")
    a(f"buffer_store_dwordx4 v[{S+4}:{S+7}], v247, s[36:39], s3 offen sc1")
    a("s_mov_b64 exec, -1")
    a("s_waitcnt vmcnt(3)")
    a("v_readfirstlane_b32 s83, v246")
    a("s_nop 3")
    a("s_cmp_lg_u32 s83, 0")
    a("s_cbranch_scc1 ln_have_nonce")
    get_nonce(a, 244)
    a.label("ln_have_nonce")
    a("v_mov_b32 v244, s83")
    if E("LNST"): stamp(a, 4)
    a("s_waitcnt vmcnt(0)")
    if E("LNST"): stamp(a, 5)
    a("s_mov_b64 exec, 1")
    a("buffer_store_dword v244, v247, s[36:39], s66 offen sc1")
    a("s_mov_b64 exec, -1")
    after_stores()

def poll_xn(a, vt):
    a("s_lshl_b32 s43, s41, 2")
    a("s_add_u32 s43, s43, s40")
    a("s_lshl_b32 s4, s41, 8")
    a(f"s_add_u32 s4, s4, {FX}")
    poll(a, "s4", 64, vt)
    a("s_lshl_b32 s70, s43, 15")
    a("s_lshl_b32 s73, s74, 12")
    a("s_add_u32 s72, s70, s73")

def rot_setup(a, add, pitch):
    a("s_and_b32 s10, s41, 7")
    a("s_and_b32 s11, s42, 3")
    a("s_lshl_b32 s11, s11, 1")
    a("s_add_u32 s10, s10, s11")
    if add: a(f"s_add_u32 s10, s10, {add}")
    a("s_and_b32 s74, s10, 7")
    if E("NOROT"): a("s_mov_b32 s74, 0")
    a(f"s_mul_i32 s11, s74, {64*pitch}")
    a("s_add_u32 s64, s64, s11")
    a("s_sub_u32 s67, 8, s74")
def w_wrap(pitch):
    return ["s_sub_u32 s67, s67, 1", "s_cmp_eq_u32 s67, 0", f"s_cselect_b32 s10, {512*pitch}, 0", "s_sub_u32 s64, s64, s10"]
X_ADV = ["s_add_u32 s73, s73, 4096", "s_and_b32 s73, s73, 32767", "s_add_u32 s72, s70, s73"]

def tr_base(a, RW, base):
    a("v_lshrrev_b32 v17, 5, v1")
    a("v_bfe_u32 v18, v1, 2, 2")
    a("v_lshl_add_u32 v18, v17, 3, v18")
    a("v_and_b32 v19, 3, v1")
    a("v_bfe_u32 v20, v1, 4, 1")
    a(f"v_lshlrev_b32 v{RW}, 6, v18")
    a(f"v_lshl_add_u32 v{RW}, v20, 5, v{RW}")
    a(f"v_lshl_add_u32 v{RW}, v19, 3, v{RW}")
    if base: a(f"v_add_u32 v{RW}, {base}, v{RW}")

def gemm1A(a):
    SB, NS = 6144, 13
    VW, VW3, RW, RW2 = 6, 7, 8, 9
    WF, ACC, XN = 16, 64, 112
    srd(a, 48, 18, 512 * 3072)
    a("s_and_b32 s3, s40, 1")
    a("s_lshr_b32 s4, s40, 1")
    a("v_lshrrev_b32 v16, 2, v1")
    a("v_and_b32 v17, 3, v1")
    a(f"v_mul_u32_u24 v{VW}, 3072, v16")
    a(f"v_lshl_add_u32 v{VW}, v17, 4, v{VW}")
    a("s_lshl_b32 s64, s42, 6")
    a(f"s_mul_i32 s5, s3, {16*3072}")
    a("s_add_u32 s64, s64, s5")
    a(f"v_add_u32 v{VW3}, 2048, v{VW}")
    a("s_lshl_b32 s5, s4, 10")
    a(f"v_add_u32 v{VW}, s5, v{VW}")
    a("s_lshl_b32 s5, s4, 11")
    a("s_lshl_b32 s6, s3, 10")
    a("s_add_u32 s69, s6, 4096")
    a("s_add_u32 s68, s5, s6")
    a("s_cmp_eq_u32 s4, 0")
    a("s_cselect_b32 s14, -1, 0")
    a("s_cselect_b32 s15, 0, -1")
    rot_setup(a, 1, 3072)
    def loadW(st):
        o = (st % NS) * SB
        a(f"s_add_u32 m0, s68, {o}")
        a("s_nop 0")
        a(f"buffer_load_dwordx4 v{VW}, s[48:51], s64 offen lds")
        a(f"s_add_u32 m0, s69, {o}")
        a("s_mov_b64 exec, s[14:15]")
        a(f"buffer_load_dwordx4 v{VW3}, s[48:51], s64 offen lds")
        a("s_mov_b64 exec, -1")
        a(f"s_add_u32 s64, s64, {32*3072}")
        if st % 2 == 1:
            for i in w_wrap(3072): a(i)
    tr_base(a, RW, 0)
    a(f"v_add_u32 v{RW2}, {7*SB}, v{RW}")
    for i in range(48): a(f"v_mov_b32 v{ACC+i}, 0")
    a("v_lshlrev_b32 v2, 4, v1")
    if E("AW0"):
        for st in range(NS): loadW(st)
        get_nonce(a, 240)
    else:
        get_nonce(a, 240)
        for st in range(NS): loadW(st)
    poll_xn(a, 240)
    stamp(a, 1)
    XA = int(E("XA", "10"))
    q = VMQ(a)
    def loadX(ks):
        if ks and ks % 4 == 0:
            for i in X_ADV: a(i)
        a(f"buffer_load_dwordx4 v[{XN+4*ks}:{XN+4*ks+3}], v2, s[36:39], s72 offen offset:{(ks%4)*1024} sc1")
        q.issue(("x", ks))
    for ks in range(XA): loadX(ks)
    def rd(ks):
        st, kk = ks // 2, ks % 2
        sl = st % NS
        base, o = (RW, sl * SB) if sl < 7 else (RW2, (sl - 7) * SB)
        out = []
        for u in range(3):
            r = WF + (ks % 4) * 12 + u * 4
            out.append(f"ds_read_b64_tr_b16 v[{r}:{r+1}], v{base} offset:{o+u*2048+kk*1024}")
            out.append(f"ds_read_b64_tr_b16 v[{r+2}:{r+3}], v{base} offset:{o+u*2048+kk*1024+256}")
        return out
    for i in rd(0) + rd(1): a(i)
    extra = 0
    for ks in range(32):
        if ks == 8:
            a("s_barrier")
            for st in range(NS, 16):
                loadW(st); q.issue("w"); q.issue("w")
        if ks + XA < 32: loadX(ks + XA)
        if ks == 24:
            q.wait(["w", ("x", ks)])
            a("s_barrier")
        else:
            q.wait([("x", ks)])
        a(f"s_waitcnt lgkmcnt({6 if ks < 31 else 0})")
        RL = rd(ks + 2) if ks + 2 < 32 else []
        x = XN + 4 * ks
        for u in range(3):
            w, d = WF + (ks % 4) * 12 + u * 4, ACC + u * 16
            if u == 2: mfma(a, d, x, w, d)
            else: mfma(a, d, w, x, d)
            for i in RL[2*u:2*u+2]: a(i)
    stamp(a, 2)
    P = 16
    a("v_and_b32 v10, 31, v1")
    a("v_lshrrev_b32 v11, 5, v1")
    a("v_lshlrev_b32 v12, 4, v1")
    a("v_bfe_u32 v13, v1, 4, 1")
    a("v_lshlrev_b32 v13, 16, v13")
    a("v_lshl_add_u32 v13, v11, 8, v13")
    a("v_and_b32 v14, 15, v1")
    a("v_lshl_add_u32 v13, v14, 4, v13")
    a("s_lshl_b32 s3, s42, 17")
    a("s_lshl_b32 s4, s43, 10")
    a("s_add_u32 s3, s3, s4")
    a(f"s_add_u32 s6, s3, {WS_KH}")
    a(f"s_add_u32 s7, s3, {WS_KH+65536}")
    a(f"s_add_u32 s8, s3, {WS_VT}")
    a(f"s_mov_b32 s9, {f2h(QSCALE)}")
    for i in range(8): a(f"v_cvt_pk_bf16_f32 v{P+8+i}, v{ACC+16+2*i}, v{ACC+17+2*i}")
    a(f"buffer_store_dwordx4 v[{P+8}:{P+11}], v12, s[36:39], s6 offen sc1")
    a(f"buffer_store_dwordx4 v[{P+12}:{P+15}], v12, s[36:39], s7 offen sc1")
    for i in range(8): a(f"v_cvt_pk_bf16_f32 v{P+16+i}, v{ACC+32+2*i}, v{ACC+33+2*i}")
    a(f"buffer_store_dwordx4 v[{P+16}:{P+19}], v13, s[36:39], s8 offen sc1")
    a(f"buffer_store_dwordx4 v[{P+20}:{P+23}], v13, s[36:39], s8 offen offset:512 sc1")
    for i in range(16): a(f"v_mul_f32 v{ACC+i}, s9, v{ACC+i}")
    for i in range(8): a(f"v_cvt_pk_bf16_f32 v{P+i}, v{ACC+2*i}, v{ACC+2*i+1}")
    QL = 5 * SB
    a("v_lshlrev_b32 v29, 4, v1")
    a("s_lshl_b32 s3, s40, 11")
    a("v_add_u32 v30, s3, v29")
    a(f"ds_write_b128 v30, v[{P}:{P+3}] offset:{QL}")
    a(f"ds_write_b128 v30, v[{P+4}:{P+7}] offset:{QL+1024}")
    a("s_lshl_b32 s4, s42, 8")
    a("s_lshl_b32 s5, s43, 2")
    a("s_add_u32 s4, s4, s5")
    a(f"s_add_u32 s4, s4, {F1}")
    publish(a, "s4", 240)
    a("s_waitcnt lgkmcnt(0)")
    a("s_barrier")
    return QL

def gemm1B(a):
    NU, R, PITCH, SB, NLD = 7, 4, 3584, 14336, 6
    VW, VW3, RW, RM, RM2 = 6, 7, 8, 9, 10
    XN, WF, ACC = 12, 44, 100
    ln_load(a)
    a("s_and_b32 s3, s40, 1")
    a("s_lshr_b32 s4, s40, 1")
    a("v_lshrrev_b32 v16, 2, v1")
    a("v_and_b32 v17, 3, v1")
    a(f"v_mul_u32_u24 v{VW}, {PITCH}, v16")
    a(f"v_lshl_add_u32 v{VW}, v17, 4, v{VW}")
    a("s_cmp_eq_u32 s4, 0")
    a("s_cselect_b32 s48, s24, s26")
    a("s_cselect_b32 s49, s25, s27")
    a(f"s_mov_b32 s50, {512*3584}")
    a("s_mov_b32 s51, 0x00020000")
    a("s_mul_i32 s64, s42, 224")
    a(f"s_mul_i32 s5, s3, {16*PITCH}")
    a("s_add_u32 s64, s64, s5")
    a("s_lshl_b32 s5, s4, 11")
    a("s_lshl_b32 s6, s3, 10")
    a("s_add_u32 s68, s5, s6")
    a("s_lshl_b32 s5, s4, 10")
    a("s_add_u32 s5, s5, 12288")
    a("s_add_u32 s6, s68, 8192")
    a("s_cmp_eq_u32 s3, 0")
    a("s_cselect_b32 s71, s5, s6")
    a("s_cselect_b64 s[14:15], -1, 1")
    a("s_and_b32 s7, s42, 1")
    a("s_lshl_b32 s8, s7, 5")
    a(f"v_add_u32 v{VW}, s8, v{VW}")
    a("s_cmp_eq_u32 s7, 0")
    a("s_cselect_b32 s8, 192, 0")
    a("v_lshrrev_b32 v18, 1, v1")
    a("s_lshl_b32 s9, s4, 2")
    a("v_xor_b32 v18, s9, v18")
    a(f"v_mul_u32_u24 v18, {PITCH}, v18")
    a("v_and_b32 v19, 1, v1")
    a("v_lshl_add_u32 v18, v19, 4, v18")
    a("v_add_u32 v18, s8, v18")
    a(f"v_add_u32 v19, 128, v{VW}")
    a("s_cmp_eq_u32 s3, 0")
    a("s_cselect_b64 vcc, -1, 0")
    a(f"v_cndmask_b32 v{VW3}, v19, v18, vcc")
    def wlist(slot):
        o = slot * SB
        g = []
        for i in range(3):
            g.append(([f"s_add_u32 m0, s68, {o+i*(4096-64)}"], f"buffer_load_dwordx4 v{VW}, s[48:51], s64 offen offset:{64*i} lds", []))
        g.append(([f"s_add_u32 m0, s71, {o}"], f"s_mov_b64 exec, s[14:15]\nbuffer_load_dwordx4 v{VW3}, s[48:51], s64 offen lds\ns_mov_b64 exec, -1",
                  [f"s_add_u32 s64, s64, {32*PITCH}"] + (w_wrap(PITCH) if slot % 2 == 1 else [])))
        return g
    def xlist(slot):
        g = []
        for kk in range(2):
            r = XN + (2 * slot + kk) * 4
            g.append(([], f"buffer_load_dwordx4 v[{r}:{r+3}], v2, s[36:39], s72 offen offset:{((2*slot+kk)%4)*1024} sc1",
                      X_ADV if (kk == 1 and slot % 2 == 1) else []))
        return g
    def emit(g):
        for pre, ins, post in g:
            for i in pre: a(i)
            if pre: a("s_nop 0")
            a(ins)
            for i in post: a(i)
    rot_setup(a, 0, PITCH)
    if E("WMID"):
        ln_compute(a, 3 * SB, lambda: None, 0, mid=lambda: [emit(wlist(st)) for st in range(R - 1)])
    elif E("WFIRST"):
        for st in range(R - 1): emit(wlist(st))
        ln_compute(a, 3 * SB, lambda: None, 4 * (R - 1))
    else:
        ln_compute(a, 3 * SB, lambda: [emit(wlist(st)) for st in range(R - 1)], 0)
    stamp(a, 1)
    if E("LNONLY"): a("s_endpgm")
    tr_base(a, RW, 0)
    a("v_lshlrev_b32 v21, 2, v20")
    a("v_xor_b32 v21, v21, v18")
    a(f"v_lshlrev_b32 v{RM}, 5, v21")
    a(f"v_lshl_add_u32 v{RM}, v20, 10, v{RM}")
    a(f"v_lshl_add_u32 v{RM}, v19, 3, v{RM}")
    a(f"v_add_u32 v{RM}, 12288, v{RM}")
    a(f"v_xor_b32 v{RM2}, 128, v{RM}")
    for i in range(NU * 16): a(f"v_mov_b32 v{ACC+i}, 0")
    a(f"s_setprio {E('PB1', '0')}")
    poll_xn(a, 240)
    for st in range(R - 1): emit(xlist(st))
    def rd_w(kk, slot, u):
        b, o = WF + kk * 28 + u * 4, slot * SB
        if u == 6:
            return [f"ds_read_b64_tr_b16 v[{b}:{b+1}], v{RM} offset:{o+kk*512}", f"ds_read_b64_tr_b16 v[{b+2}:{b+3}], v{RM2} offset:{o+kk*512}"]
        return [f"ds_read_b64_tr_b16 v[{b}:{b+1}], v{RW} offset:{o+u*2048+kk*1024}", f"ds_read_b64_tr_b16 v[{b+2}:{b+3}], v{RW} offset:{o+u*2048+kk*1024+256}"]
    def body(slot, ld, vmw, last=False):
        LL = (wlist((slot + 3) % 4) + xlist((slot + 3) % 4)) if ld else []
        li = 0
        for kk in range(2):
            if kk == 1 and not last:
                a(f"s_waitcnt vmcnt({vmw})")
                a("s_barrier")
            x = XN + (2 * slot + kk) * 4
            for u in range(NU):
                nxt = rd_w(1, slot, u) if kk == 0 else ([] if last else rd_w(0, (slot + 1) % 4, u))
                if u % 2 == 0:
                    rest = max(0, 2 * (NU - 2 - u))
                    a(f"s_waitcnt lgkmcnt({rest + (2*u if (kk == 0 or not last) else 0)})")
                l = LL[li] if (ld and kk == 1 and u >= 1) else None
                if l:
                    for i in l[0]: a(i)
                mfma(a, ACC + u * 16, WF + kk * 28 + u * 4, x, ACC + u * 16)
                for i in nxt: a(i)
                if l:
                    a(l[1])
                    for i in l[2]: a(i)
                    li += 1
    stamp(a, 3 if E("BSTAMP") else 7)
    if E("LNST"):
        dump_stamps(a, 6)
        a("s_endpgm")
    a0 = a
    class Filt:
        def __call__(self, s):
            if E("NODMA") and " lds" in s: return
            if E("NOX") and "sc1" in s: return
            if E("NOMFMA") and "v_mfma" in s: return
            if E("NOWRD") and "ds_read_b64_tr" in s: return
            if E("NOBAR") and "s_barrier" in s: return
            a0(s)
        def __getattr__(self, n): return getattr(a0, n)
    a = Filt()
    a("s_waitcnt vmcnt(4)")
    a("s_barrier")
    for u in range(NU):
        for i in rd_w(0, 0, u): a(i)
    body(0, True, 2)
    body(1, True, NLD)
    body(2, True, NLD)
    body(3, True, NLD)
    a("s_mov_b32 s75, 2")
    a.raw(".p2align 6")
    a.label("g1B_loop")
    for slot in range(4): body(slot, True, NLD)
    a("s_sub_u32 s75, s75, 1")
    a("s_cmp_lg_u32 s75, 0")
    a("s_cbranch_scc1 g1B_loop")
    body(0, True, NLD)
    body(1, False, NLD)
    body(2, False, 0)
    body(3, False, 0, last=True)
    a = a0
    stamp(a, 2)
    a(f"s_setprio {E('PEPI', '0')}")
    T, P = 212, 44
    a("v_lshlrev_b32 v2, 4, v1")
    a("s_mul_i32 s3, s43, 144")
    a("s_mul_i32 s4, s42, 7")
    a("s_add_u32 s3, s3, s4")
    a("s_add_u32 s3, s3, 32")
    a("s_and_b32 s7, s42, 1")
    a("s_add_u32 s4, s3, s7")
    a("s_cmp_eq_u32 s7, 0")
    a("s_cselect_b32 s5, 6, 0")
    a("s_add_u32 s5, s3, s5")
    a("s_lshl_b32 s4, s4, 10")
    a(f"s_add_u32 s4, s4, {WS_AF}")
    a("s_lshl_b32 s5, s5, 10")
    a(f"s_add_u32 s5, s5, {WS_AF}")
    a(f"s_add_u32 s6, s4, 4096")
    a(f"s_mov_b32 s9, {f2h(-LOG2E)}")
    def silu_mul(g, u_, n, dst):
        for i in range(n): a(f"v_mul_f32 v{T+i}, s9, v{g+i}")
        for i in range(n): a(f"v_exp_f32 v{T+i}, v{T+i}")
        for i in range(n): a(f"v_mul_f32 v{g+i}, v{g+i}, v{u_+i}")
        for i in range(n): a(f"v_add_f32 v{T+i}, 1.0, v{T+i}")
        for i in range(n): a(f"v_rcp_f32 v{T+i}, v{T+i}")
        a("s_nop 0")
        for i in range(n): a(f"v_mul_f32 v{g+i}, v{g+i}, v{T+i}")
        for i in range(n // 2): a(f"v_cvt_pk_bf16_f32 v{dst+i}, v{g+2*i}, v{g+2*i+1}")
    for p in range(3):
        silu_mul(ACC + 32 * p, ACC + 32 * p + 16, 16, P + 8 * p)
        so, im = ("s4", 2048 * p) if p < 2 else ("s6", 0)
        a(f"buffer_store_dwordx4 v[{P+8*p}:{P+8*p+3}], v2, s[36:39], {so} offen offset:{im} sc1")
        a(f"buffer_store_dwordx4 v[{P+8*p+4}:{P+8*p+7}], v2, s[36:39], {so} offen offset:{im+1024} sc1")
    silu_mul(ACC + 96, ACC + 104, 8, P + 24)
    a(f"buffer_store_dwordx4 v[{P+24}:{P+27}], v2, s[36:39], s5 offen sc1")
    a("s_lshl_b32 s4, s43, 6")
    a("s_lshl_b32 s5, s42, 2")
    a("s_add_u32 s4, s4, s5")
    a(f"s_add_u32 s4, s4, {FH}")
    publish(a, "s4", T)
    a("s_barrier")

RESCALE_T = 30
BIAS = 80
def attention(a, QL):
    name = "at"
    Q = {"A": 4, "B": 8}
    NEG = {"A": 16, "B": 32}
    S = {"A": 48, "B": 64}
    O = {"A": 80, "B": 96}
    P = {"A": 112, "B": 120}
    RING, T0 = 128, 160
    NR = 2
    TP = 2112
    GB = 8 * TP
    Kf = lambda s: RING + 12 * s
    V0 = lambda s: RING + 12 * s + 4
    V1 = lambda s: RING + 12 * s + 8
    AK, AV0, AV1, VD = 2, 3, 12, 13
    mf = lambda d, x, y, c: mfma(a, d, x, y, c)
    a("s_lshr_b32 s3, s40, 1")
    a("s_lshl_b32 s60, s42, 1")
    a("s_add_u32 s60, s60, s3")
    a("s_and_b32 s4, s40, 1")
    a("s_lshl_b32 s61, s41, 1")
    a("s_add_u32 s61, s61, s4")
    a("s_lshl_b32 s5, s4, 12")
    a("s_lshl_b32 s6, s3, 10")
    a("s_add_u32 s5, s5, s6")
    a("v_add_u32 v2, s5, v29")
    a(f"ds_read_b128 v[{Q['A']}:{Q['A']+3}], v2 offset:{QL}")
    a(f"ds_read_b128 v[{Q['B']}:{Q['B']+3}], v2 offset:{QL+2048}")
    a("s_lshl_b32 s5, s60, 16")
    a(f"s_add_u32 s5, s5, {WS_KH}")
    a("s_add_u32 s44, s34, s5")
    a("s_addc_u32 s45, s35, 0")
    a("s_mov_b32 s46, 65536")
    a("s_mov_b32 s47, 0x00020000")
    a(f"s_add_u32 s48, s44, {WS_VT-WS_KH}")
    a("s_addc_u32 s49, s45, 0")
    a("s_mov_b32 s50, 65536")
    a("s_mov_b32 s51, 0x00020000")
    a("s_cmp_eq_u32 s4, 0")
    a("s_cselect_b32 s52, s44, s48")
    a("s_cselect_b32 s53, s45, s49")
    a("s_mov_b32 s54, 65536")
    a("s_mov_b32 s55, 0x00020000")
    a(f"s_mul_i32 s70, s3, {2*GB}")
    a("s_lshl_b32 s71, s4, 10")
    a("s_add_u32 s71, s71, s70")
    a(f"v_mov_b32 v{VD}, v29")
    a("v_and_b32 v14, 31, v1")
    a("v_lshrrev_b32 v15, 5, v1")
    a(f"v_add_u32 v{AK}, s70, v29")
    a(f"v_lshlrev_b32 v{AV0}, 8, v15")
    a(f"v_lshl_add_u32 v{AV0}, v14, 4, v{AV0}")
    a(f"v_add_u32 v{AV0}, 1024, v{AV0}")
    a(f"v_add_u32 v{AV1}, 512, v{AV0}")
    a(f"v_mov_b32 v{T0}, 2064")
    a(f"v_mov_b32 v{T0+1}, 2048")
    a("v_cmp_eq_u32 vcc, 16, v14")
    a(f"v_mov_b32 v{T0+4}, 0x3f803f80")
    a(f"v_and_b32 v{T0+2}, 1, v1")
    a(f"v_cndmask_b32 v{T0}, v{T0}, v{T0+1}, vcc")
    a("v_cmp_gt_u32 vcc, 16, v14")
    a(f"v_lshrrev_b32 v{T0+3}, 1, v1")
    a(f"v_mul_u32_u24 v{T0+3}, {TP}, v{T0+3}")
    a(f"v_cndmask_b32 v{AV0}, v{T0}, v{AV0}, vcc")
    a(f"v_cndmask_b32 v{AV1}, v{T0}, v{AV1}, vcc")
    a(f"v_add_u32 v{AV0}, s70, v{AV0}")
    a(f"v_add_u32 v{AV1}, s70, v{AV1}")
    a(f"v_cmp_eq_u32 vcc, 0, v{T0+2}")
    a(f"v_lshl_add_u32 v{T0+3}, v{T0+2}, 4, v{T0+3}")
    a("s_lshl_b32 s4, s42, 8")
    a(f"v_cndmask_b32 v{T0+4}, 0, v{T0+4}, vcc")
    for i in range(1, 4): a(f"v_mov_b32 v{T0+4+i}, v{T0+4}")
    for X in "AB":
        for i in range(16): a(f"v_mov_b32 v{O[X]+i}, 0")
        for i in range(8): a(f"v_mov_b32 v{P[X]+i}, 0")
    for i in range(4): a(f"v_mov_b32 v{V1(1)+i}, 0")
    a(f"s_mov_b32 s64, {f2h(2.0**RESCALE_T)}")
    a("s_mov_b32 s65, 0")
    a(f"s_add_u32 s4, s4, {F1}")
    a("s_waitcnt lgkmcnt(0)")
    a("s_barrier")
    a(f"ds_write_b128 v{T0+3}, v[{T0+4}:{T0+7}] offset:2048")
    poll(a, "s4", 64, T0)
    stamp(a, 4)
    a("s_setprio 1")
    a("s_and_b32 s66, s41, 7")
    a("s_lshl_b32 s66, s66, 13")
    def dma(t, bufoff):
        a(f"s_add_u32 m0, {bufoff}, {t*TP - (t%4)*1024}")
        return f"buffer_load_dwordx4 v{VD}, s[52:55], {'s66' if t < 4 else 's68'} offen offset:{(t%4)*1024} sc1 lds"
    def next_group():
        a("s_add_u32 s66, s66, 8192")
        a("s_and_b32 s66, s66, 65535")
    a(f"s_add_u32 s72, s71, {GB}")
    a("s_add_u32 s68, s66, 4096")
    for t in range(8):
        i = dma(t, "s71")
        a("s_nop 0")
        a(i)
    next_group()
    a("s_add_u32 s68, s66, 4096")
    i = dma(0, "s72")
    a("s_nop 0")
    a(i)
    a("s_waitcnt vmcnt(1) lgkmcnt(0)")
    a("s_barrier")
    def reads(slot, t):
        a(f"ds_read_b128 v[{Kf(slot)}:{Kf(slot)+3}], v{AK} offset:{t*TP}")
        a(f"ds_read_b128 v[{V0(slot)}:{V0(slot)+3}], v{AV0} offset:{t*TP}")
        a(f"ds_read_b128 v[{V1(slot)}:{V1(slot)+3}], v{AV1} offset:{t*TP}")
    a(f"ds_read_b128 v[{Kf(1)}:{Kf(1)+3}], v{AK} offset:{TP}")
    reads(0, 0)
    a("s_waitcnt lgkmcnt(2)")
    for X in "AB":
        mf(S[X], Kf(0), Q[X], None)
        mf(NEG[X], Kf(1), Q[X], None)
    a.nop(14)
    for X in "AB":
        m = T0
        a(f"v_max3_f32 v{m}, v{S[X]}, v{S[X]+1}, v{S[X]+2}")
        for i in range(3, 15, 2):
            a(f"v_max3_f32 v{m}, v{m}, v{S[X]+i}, v{S[X]+i+1}")
        a(f"v_max3_f32 v{m}, v{m}, v{S[X]+15}, v{NEG[X]}")
        for i in range(1, 15, 2):
            a(f"v_max3_f32 v{m}, v{m}, v{NEG[X]+i}, v{NEG[X]+i+1}")
        a(f"v_max_f32 v{m}, v{m}, v{NEG[X]+15}")
        a(f"v_mov_b32 v{m+1}, v{m}")
        a("s_nop 1")
        a(f"v_permlane32_swap_b32 v{m+1}, v{m}")
        a("s_nop 1")
        a(f"v_max_f32 v{m}, v{m}, v{m+1}")
        for i in range(16):
            a(f"v_sub_f32 v{NEG[X]+i}, {f2h(-float(BIAS))}, v{m}")
    a("s_waitcnt lgkmcnt(0)")
    mf(S["A"], Kf(0), Q["A"], NEG["A"])
    a("s_mov_b32 s67, 8")
    a(f"s_mov_b32 s73, {GB}")
    a("s_and_b32 s74, s41, 7")
    a("s_add_u32 s74, s74, 2")
    a.nop(8)
    if E("ATST"): stamp(a, 4)
    a.raw(".p2align 6")
    a.label(f"{name}_loop")
    def half(X, tt):
        Y = "B" if X == "A" else "A"
        x, p = S[X], P[X]
        e = lambda i: a(f"v_exp_f32 v{x+i}, v{x+i}")
        c = lambda i: a(f"v_cvt_pk_bf16_f32 v{p+i}, v{x+2*i}, v{x+2*i+1}")
        e(0); e(1)
        ty = (tt - 1) % NR if X == "A" else tt % NR
        mf(O[Y], V1(ty), P[Y] + 4, O[Y])
        if X == "A":
            if tt == 7:
                a("s_waitcnt vmcnt(0)")
                a("s_barrier")
                a(f"v_add_u32 v{AK}, s73, v{AK}")
                a(f"v_add_u32 v{AV0}, s73, v{AV0}")
                a(f"v_add_u32 v{AV1}, s73, v{AV1}")
                a("s_sub_u32 s73, 0, s73")
                a("s_and_b32 s66, s74, 7")
                a("s_lshl_b32 s66, s66, 13")
                a("s_cmp_gt_u32 s67, 2")
                a("s_cselect_b32 s66, s66, s75")
                a("s_add_u32 s68, s66, 4096")
                a("s_add_u32 s74, s74, 1")
                reads((tt + 1) % NR, 0)
            else:
                reads((tt + 1) % NR, tt + 1)
        d = None
        k = {("B", 7): 0, ("A", 0): 1, ("B", 0): 2, ("A", 1): 3, ("B", 1): 4, ("A", 2): 5, ("B", 2): 6, ("A", 3): 7}.get((X, tt))
        e(2); e(3); c(0)
        if k is not None: d = dma(k, "s71" if k == 0 else "s72")
        e(4)
        if d: a(d)
        e(5); c(1)
        if X == "B":
            a("s_waitcnt lgkmcnt(0)")
        tk = tt % NR if X == "A" else (tt + 1) % NR
        mf(S[Y], Kf(tk), Q[Y], NEG[Y])
        e(6); e(7); c(2); e(8); c(3); e(9); e(10)
        mf(O[X], V0(tt % NR), p, O[X])
        c(4); e(11); e(12); c(5); e(13); e(14); e(15); c(6); c(7)
        if (X == "A" and tt == 5) or (X == "B" and tt == 5):
            a(f"v_cmp_nge_f32 vcc, s64, v{O[Y]+8}")
            a(f"s_cbranch_vccnz {name}_rare{Y}")
            a.label(f"{name}_ret{Y}")
    a("s_brev_b32 s75, 1")
    a0 = a
    class Filt:
        def __call__(self, s):
            if E("ATNOBAR") and "s_barrier" in s: return
            if E("ATNODMA") and " lds" in s: return
            if E("ATNORD") and "ds_read" in s: return
            if E("ATNOCHK") and ("v_cmp_nge" in s or "vccnz" in s): return
            a0(s)
        def __getattr__(self, n): return getattr(a0, n)
    a = Filt()
    for tt in range(8):
        half("A", tt)
        half("B", tt)
    a = a0
    a("s_mov_b32 s3, s71")
    a("s_mov_b32 s71, s72")
    a("s_mov_b32 s72, s3")
    a("s_sub_u32 s67, s67, 1")
    a("s_cmp_lg_u32 s67, 0")
    a(f"s_cbranch_scc1 {name}_loop")
    a("s_nop 1")
    mf(O["B"], V1(1), P["B"] + 4, O["B"])
    a("s_cmp_lg_u32 s65, 0")
    a(f"s_cbranch_scc1 {name}_safe")
    a.label(f"{name}_fin")
    stamp(a, 5)
    a.nop(14)
    a(f"v_mov_b32 v{T0}, 0")
    for X in "AB":
        for i in range(9):
            a(f"v_fma_f32 v{T0}, v{O[X]+i}, 0, v{T0}")
    a(f"v_cmp_u_f32 vcc, v{T0}, v{T0}")
    a("s_cmp_eq_u32 s65, 0")
    a("s_cselect_b64 s[4:5], vcc, 0")
    a("s_cmp_lg_u64 s[4:5], 0")
    a(f"s_cbranch_scc1 {name}_safe")
    a("s_mul_i32 s4, s61, 288")
    a("s_add_u32 s4, s4, s60")
    a("s_lshl_b32 s4, s4, 10")
    a(f"s_add_u32 s4, s4, {WS_AF}")
    a(f"s_add_u32 s5, s4, {144*1024}")
    a("v_lshlrev_b32 v12, 4, v1")
    for X in "AB":
        l = O[X] + 8
        a(f"v_mov_b32 v{T0}, v{l}")
        a("s_nop 1")
        a(f"v_permlane32_swap_b32 v{T0}, v{l}")
        a("s_nop 1")
        a(f"v_rcp_f32 v{T0}, v{T0}")
        a("s_nop 0")
        for i in range(8):
            a(f"v_mul_f32 v{O[X]+i}, v{O[X]+i}, v{T0}")
        for i in range(4):
            a(f"v_cvt_pk_bf16_f32 v{P[X]+i}, v{O[X]+2*i}, v{O[X]+2*i+1}")
        a(f"buffer_store_dwordx4 v[{P[X]}:{P[X]+3}], v12, s[36:39], {'s4' if X=='A' else 's5'} offen sc1")
    a("s_lshl_b32 s4, s61, 7")
    a("s_lshl_b32 s5, s60, 2")
    a("s_add_u32 s4, s4, s5")
    a(f"s_add_u32 s4, s4, {FO}")
    publish(a, "s4", T0)
    dump_stamps(a, 6)
    a("s_endpgm")
    for Y in "AB":
        a.label(f"{name}_rare{Y}")
        a.nop(16)
        l = O[Y] + 8
        a(f"v_mov_b32 v{T0+2}, 0x207")
        a(f"v_cmp_class_f32 vcc, v{l}, v{T0+2}")
        a("s_cmp_lg_u64 vcc, 0")
        a("s_cselect_b32 s65, 1, s65")
        a(f"s_cbranch_scc1 {name}_ret{Y}")
        a(f"v_frexp_exp_i32_f32 v{T0}, v{l}")
        a(f"v_add_u32 v{T0}, {BIAS}, v{T0}")
        a(f"v_max_i32 v{T0}, 0, v{T0}")
        a(f"v_mov_b32 v{T0+1}, v{T0}")
        a("s_nop 1")
        a(f"v_permlane32_swap_b32 v{T0}, v{T0+1}")
        a("s_nop 1")
        a(f"v_cvt_f32_i32 v{T0+1}, v{T0}")
        a(f"v_sub_u32 v{T0}, 0, v{T0}")
        for i in range(9): a(f"v_ldexp_f32 v{O[Y]+i}, v{O[Y]+i}, v{T0}")
        for i in range(16): a(f"v_sub_f32 v{NEG[Y]+i}, v{NEG[Y]+i}, v{T0+1}")
        for i in range(16): a(f"v_sub_f32 v{S[Y]+i}, v{S[Y]+i}, v{T0+1}")
        a("s_nop 1")
        a(f"s_branch {name}_ret{Y}")
    a.label(f"{name}_safe")
    a("s_waitcnt vmcnt(0) lgkmcnt(0)")
    a.nop(16)
    a("s_mov_b32 s65, 2")
    a("v_and_b32 v14, 31, v1")
    a("v_lshrrev_b32 v15, 5, v1")
    a("v_lshlrev_b32 v3, 8, v15")
    a("v_lshl_add_u32 v3, v14, 4, v3")
    a("v_mov_b32 v15, 0x3f803f80")
    a("v_cmp_eq_u32 vcc, 16, v14")
    a("s_mov_b32 s62, 0x0000ffff")
    a("s_mov_b32 s63, 0x0000ffff")
    a("v_cndmask_b32 v15, 0, v15, vcc")
    for i in range(8): a(f"v_mov_b32 v{V0(0)+i}, v15")
    def loads(slot, soff, imm):
        a(f"buffer_load_dwordx4 v[{Kf(slot)}:{Kf(slot)+3}], v{VD}, s[44:47], {soff} offen offset:{imm} sc1")
        a("s_mov_b64 exec, s[62:63]")
        a(f"buffer_load_dwordx4 v[{V0(slot)}:{V0(slot)+3}], v3, s[48:51], {soff} offen offset:{imm} sc1")
        a(f"buffer_load_dwordx4 v[{V1(slot)}:{V1(slot)+3}], v3, s[48:51], {soff} offen offset:{imm+512} sc1")
        a("s_mov_b64 exec, -1")
    M = {"A": NEG["A"], "B": NEG["B"]}
    for X in "AB":
        for i in range(16): a(f"v_mov_b32 v{O[X]+i}, 0")
        a(f"v_mov_b32 v{M[X]}, 0xff800000")
    a("s_mov_b32 s66, 0")
    a("s_mov_b32 s67, 64")
    a.label(f"{name}_sloop")
    loads(0, "s66", 0)
    a("s_waitcnt vmcnt(0)")
    for X in "AB":
        mf(S[X], Kf(0), Q[X], None)
    a.nop(16)
    for X in "AB":
        x, p, m = S[X], P[X], M[X]
        a(f"v_max3_f32 v{T0}, v{x}, v{x+1}, v{x+2}")
        for i in range(3, 15, 2):
            a(f"v_max3_f32 v{T0}, v{T0}, v{x+i}, v{x+i+1}")
        a(f"v_max_f32 v{T0}, v{T0}, v{x+15}")
        a(f"v_mov_b32 v{T0+1}, v{T0}")
        a("s_nop 1")
        a(f"v_permlane32_swap_b32 v{T0+1}, v{T0}")
        a("s_nop 1")
        a(f"v_max3_f32 v{T0}, v{T0}, v{T0+1}, v{m}")
        a(f"v_sub_f32 v{T0+1}, v{m}, v{T0}")
        a(f"v_exp_f32 v{T0+1}, v{T0+1}")
        a(f"v_mov_b32 v{m}, v{T0}")
        for i in range(9): a(f"v_mul_f32 v{O[X]+i}, v{O[X]+i}, v{T0+1}")
        for i in range(16): a(f"v_sub_f32 v{x+i}, v{x+i}, v{T0}")
        for i in range(16): a(f"v_exp_f32 v{x+i}, v{x+i}")
        a("s_nop 0")
        for i in range(8): a(f"v_cvt_pk_bf16_f32 v{p+i}, v{x+2*i}, v{x+2*i+1}")
        a("s_nop 1")
        mf(O[X], V0(0), p, O[X])
        mf(O[X], V1(0), p + 4, O[X])
    a.nop(16)
    a("s_add_u32 s66, s66, 1024")
    a("s_sub_u32 s67, s67, 1")
    a("s_cmp_lg_u32 s67, 0")
    a(f"s_cbranch_scc1 {name}_sloop")
    a(f"s_branch {name}_fin")

def attention_direct(a, QL):
    name = "at"
    Q = {"A": 4, "B": 8}
    NEG = {"A": 16, "B": 32}
    S = {"A": 48, "B": 64}
    O = {"A": 80, "B": 96}
    P = {"A": 112, "B": 120}
    NR = int(E("NR", "8"))
    RING, T0 = 128, 128 + 12 * NR
    Kf = lambda s: RING + 12 * s
    V0 = lambda s: RING + 12 * s + 4
    V1 = lambda s: RING + 12 * s + 8
    mf = lambda d, x, y, c: mfma(a, d, x, y, c)
    a("s_lshr_b32 s3, s40, 1")
    a("s_lshl_b32 s60, s42, 1")
    a("s_add_u32 s60, s60, s3")
    a("s_and_b32 s4, s40, 1")
    a("s_lshl_b32 s61, s41, 1")
    a("s_add_u32 s61, s61, s4")
    a("s_lshl_b32 s4, s4, 12")
    a("s_lshl_b32 s3, s3, 10")
    a("s_add_u32 s3, s3, s4")
    a("v_add_u32 v2, s3, v29")
    a(f"ds_read_b128 v[{Q['A']}:{Q['A']+3}], v2 offset:{QL}")
    a(f"ds_read_b128 v[{Q['B']}:{Q['B']+3}], v2 offset:{QL+2048}")
    a("s_lshl_b32 s3, s60, 16")
    a(f"s_add_u32 s3, s3, {WS_KH}")
    a("s_add_u32 s44, s34, s3")
    a("s_addc_u32 s45, s35, 0")
    a("s_mov_b32 s46, 65536")
    a("s_mov_b32 s47, 0x00020000")
    a(f"s_add_u32 s48, s44, {WS_VT-WS_KH}")
    a("s_addc_u32 s49, s45, 0")
    a("s_mov_b32 s50, 65536")
    a("s_mov_b32 s51, 0x00020000")
    a("v_and_b32 v12, 31, v1")
    a("v_lshrrev_b32 v13, 5, v1")
    a("v_lshlrev_b32 v2, 4, v1")
    a("v_lshlrev_b32 v3, 8, v13")
    a("v_and_b32 v14, 15, v1")
    a("v_lshl_add_u32 v3, v14, 4, v3")
    a("s_mov_b32 s62, 0x0000ffff")
    a("s_mov_b32 s63, 0x0000ffff")
    a("v_mov_b32 v14, 0x3f803f80")
    a("v_cmp_eq_u32 vcc, 16, v12")
    a("v_lshlrev_b32 v15, 2, v1")
    a("s_lshl_b32 s4, s42, 8")
    a("v_cndmask_b32 v14, 0, v14, vcc")
    for s in range(NR):
        for i in range(8):
            a(f"v_mov_b32 v{V0(s)+i}, v14")
    for X in "AB":
        for i in range(16): a(f"v_mov_b32 v{O[X]+i}, 0")
        for i in range(8): a(f"v_mov_b32 v{P[X]+i}, 0")
    a(f"s_mov_b32 s64, {f2h(2.0**RESCALE_T)}")
    a("s_mov_b32 s65, 0")
    a(f"s_add_u32 s4, s4, {F1}")
    poll(a, "s4", 64, T0)
    stamp(a, 4)
    a("s_setprio 1")
    def loads(slot, soff, imm):
        a(f"buffer_load_dwordx4 v[{Kf(slot)}:{Kf(slot)+3}], v2, s[44:47], {soff} offen offset:{imm} sc1")
        a("s_mov_b64 exec, s[62:63]")
        a(f"buffer_load_dwordx4 v[{V0(slot)}:{V0(slot)+3}], v3, s[48:51], {soff} offen offset:{imm} sc1")
        a(f"buffer_load_dwordx4 v[{V1(slot)}:{V1(slot)+3}], v3, s[48:51], {soff} offen offset:{imm+512} sc1")
        a("s_mov_b64 exec, -1")
    assert NR == 8
    a("s_and_b32 s69, s41, 7")
    a("s_lshl_b32 s69, s69, 13")
    if E("NOKROT"): a("s_mov_b32 s69, 0")
    a("s_add_u32 s66, s69, 4096")
    for t in range(NR - 1):
        loads(t, "s69" if t < 4 else "s66", (t % 4) * 1024)
    a(f"s_waitcnt vmcnt({3*(NR-1)-4}) lgkmcnt(0)")
    for X in "AB":
        mf(S[X], Kf(0), Q[X], None)
        mf(NEG[X], Kf(1), Q[X], None)
    a.nop(14)
    for X in "AB":
        m = T0
        a(f"v_max3_f32 v{m}, v{S[X]}, v{S[X]+1}, v{S[X]+2}")
        for i in range(3, 15, 2):
            a(f"v_max3_f32 v{m}, v{m}, v{S[X]+i}, v{S[X]+i+1}")
        a(f"v_max3_f32 v{m}, v{m}, v{S[X]+15}, v{NEG[X]}")
        for i in range(1, 15, 2):
            a(f"v_max3_f32 v{m}, v{m}, v{NEG[X]+i}, v{NEG[X]+i+1}")
        a(f"v_max_f32 v{m}, v{m}, v{NEG[X]+15}")
        a(f"v_mov_b32 v{m+1}, v{m}")
        a("s_nop 1")
        a(f"v_permlane32_swap_b32 v{m+1}, v{m}")
        a("s_nop 1")
        a(f"v_max_f32 v{m}, v{m}, v{m+1}")
        for i in range(16):
            a(f"v_sub_f32 v{NEG[X]+i}, {f2h(-float(BIAS))}, v{m}")
    a("s_nop 1")
    mf(S["A"], Kf(0), Q["A"], NEG["A"])
    a("s_add_u32 s66, s69, 7168")
    a("s_add_u32 s68, s69, 8192")
    a("s_and_b32 s68, s68, 65535")
    a("s_add_u32 s69, s68, 4096")
    a(f"s_mov_b32 s67, {64//NR}")
    a.nop(10)
    a.raw(".p2align 6")
    a.label(f"{name}_loop")
    def half(X, tt):
        Y = "B" if X == "A" else "A"
        x, p = S[X], P[X]
        e = lambda i: a(f"v_exp_f32 v{x+i}, v{x+i}")
        c = lambda i: a(f"v_cvt_pk_bf16_f32 v{p+i}, v{x+2*i}, v{x+2*i+1}")
        e(0); e(1)
        ty = (tt - 1) % NR if X == "A" else tt
        mf(O[Y], V1(ty), P[Y] + 4, O[Y])
        if X == "A":
            loads((tt + NR - 1) % NR, "s66" if tt == 0 else ("s68" if tt < 5 else "s69"), 0 if tt == 0 else ((tt - 1) % 4) * 1024)
        e(2); e(3); c(0); e(4); e(5); c(1)
        if X == "B":
            a(f"s_waitcnt vmcnt({3*(NR-2)})")
        tk = tt if X == "A" else (tt + 1) % NR
        mf(S[Y], Kf(tk), Q[Y], NEG[Y])
        e(6); e(7); c(2); e(8); c(3); e(9); e(10)
        mf(O[X], V0(tt), p, O[X])
        c(4); e(11); e(12); c(5); e(13); e(14); e(15); c(6); c(7)
        if (X == "A" and tt == 1) or (X == "B" and tt == NR - 1):
            a(f"v_cmp_nge_f32 vcc, s64, v{O[Y]+8}")
            a(f"s_cbranch_vccnz {name}_rare{Y}")
            a.label(f"{name}_ret{Y}")
    for tt in range(NR):
        half("A", tt)
        half("B", tt)
    a("s_add_u32 s66, s68, 7168")
    a("s_add_u32 s68, s68, 8192")
    a("s_and_b32 s68, s68, 65535")
    a("s_add_u32 s69, s68, 4096")
    a("s_sub_u32 s67, s67, 1")
    a("s_cmp_lg_u32 s67, 0")
    a(f"s_cbranch_scc1 {name}_loop")
    a("s_nop 1")
    mf(O["B"], V1(NR - 1), P["B"] + 4, O["B"])
    a.label(f"{name}_fin")
    stamp(a, 5)
    a.nop(14)
    a(f"v_mov_b32 v{T0}, 0")
    for X in "AB":
        for i in range(9):
            a(f"v_fma_f32 v{T0}, v{O[X]+i}, 0, v{T0}")
    a(f"v_cmp_u_f32 vcc, v{T0}, v{T0}")
    a("s_cmp_eq_u32 s65, 0")
    a("s_cselect_b64 s[4:5], vcc, 0")
    a("s_cmp_lg_u64 s[4:5], 0")
    a(f"s_cbranch_scc1 {name}_safe")
    a("s_mul_i32 s4, s61, 288")
    a("s_add_u32 s4, s4, s60")
    a("s_lshl_b32 s4, s4, 10")
    a(f"s_add_u32 s4, s4, {WS_AF}")
    a(f"s_add_u32 s5, s4, {144*1024}")
    a("v_lshlrev_b32 v12, 4, v1")
    for X in "AB":
        l = O[X] + 8
        a(f"v_mov_b32 v{T0}, v{l}")
        a("s_nop 1")
        a(f"v_permlane32_swap_b32 v{T0}, v{l}")
        a("s_nop 1")
        a(f"v_rcp_f32 v{T0}, v{T0}")
        a("s_nop 0")
        for i in range(8):
            a(f"v_mul_f32 v{O[X]+i}, v{O[X]+i}, v{T0}")
        for i in range(4):
            a(f"v_cvt_pk_bf16_f32 v{P[X]+i}, v{O[X]+2*i}, v{O[X]+2*i+1}")
        a(f"buffer_store_dwordx4 v[{P[X]}:{P[X]+3}], v12, s[36:39], {'s4' if X=='A' else 's5'} offen sc1")
    a("s_lshl_b32 s4, s61, 7")
    a("s_lshl_b32 s5, s60, 2")
    a("s_add_u32 s4, s4, s5")
    a(f"s_add_u32 s4, s4, {FO}")
    publish(a, "s4", T0)
    dump_stamps(a, 6)
    a("s_endpgm")
    for Y in "AB":
        a.label(f"{name}_rare{Y}")
        a.nop(16)
        l = O[Y] + 8
        a(f"v_mov_b32 v{T0+2}, 0x207")
        a(f"v_cmp_class_f32 vcc, v{l}, v{T0+2}")
        a(f"s_cbranch_vccnz {name}_safe")
        a(f"v_frexp_exp_i32_f32 v{T0}, v{l}")
        a(f"v_add_u32 v{T0}, {BIAS}, v{T0}")
        a(f"v_max_i32 v{T0}, 0, v{T0}")
        a(f"v_mov_b32 v{T0+1}, v{T0}")
        a("s_nop 1")
        a(f"v_permlane32_swap_b32 v{T0}, v{T0+1}")
        a("s_nop 1")
        a(f"v_cvt_f32_i32 v{T0+1}, v{T0}")
        a(f"v_sub_u32 v{T0}, 0, v{T0}")
        for i in range(9): a(f"v_ldexp_f32 v{O[Y]+i}, v{O[Y]+i}, v{T0}")
        for i in range(16): a(f"v_sub_f32 v{NEG[Y]+i}, v{NEG[Y]+i}, v{T0+1}")
        for i in range(16): a(f"v_sub_f32 v{S[Y]+i}, v{S[Y]+i}, v{T0+1}")
        a("s_nop 1")
        a(f"s_branch {name}_ret{Y}")
    a.label(f"{name}_safe")
    a("s_waitcnt vmcnt(0)")
    a.nop(16)
    a("s_mov_b32 s65, 1")
    M = {"A": NEG["A"], "B": NEG["B"]}
    for X in "AB":
        for i in range(16): a(f"v_mov_b32 v{O[X]+i}, 0")
        a(f"v_mov_b32 v{M[X]}, 0xff800000")
    a("s_mov_b32 s66, 0")
    a("s_mov_b32 s67, 64")
    a.label(f"{name}_sloop")
    loads(0, "s66", 0)
    a("s_waitcnt vmcnt(0)")
    for X in "AB":
        mf(S[X], Kf(0), Q[X], None)
    a.nop(16)
    for X in "AB":
        x, p, m = S[X], P[X], M[X]
        a(f"v_max3_f32 v{T0}, v{x}, v{x+1}, v{x+2}")
        for i in range(3, 15, 2):
            a(f"v_max3_f32 v{T0}, v{T0}, v{x+i}, v{x+i+1}")
        a(f"v_max_f32 v{T0}, v{T0}, v{x+15}")
        a(f"v_mov_b32 v{T0+1}, v{T0}")
        a("s_nop 1")
        a(f"v_permlane32_swap_b32 v{T0+1}, v{T0}")
        a("s_nop 1")
        a(f"v_max3_f32 v{T0}, v{T0}, v{T0+1}, v{m}")
        a(f"v_sub_f32 v{T0+1}, v{m}, v{T0}")
        a(f"v_exp_f32 v{T0+1}, v{T0+1}")
        a(f"v_mov_b32 v{m}, v{T0}")
        for i in range(9): a(f"v_mul_f32 v{O[X]+i}, v{O[X]+i}, v{T0+1}")
        for i in range(16): a(f"v_sub_f32 v{x+i}, v{x+i}, v{T0}")
        for i in range(16): a(f"v_exp_f32 v{x+i}, v{x+i}")
        a("s_nop 0")
        for i in range(8): a(f"v_cvt_pk_bf16_f32 v{p+i}, v{x+2*i}, v{x+2*i+1}")
        a("s_nop 1")
        mf(O[X], V0(0), p, O[X])
        mf(O[X], V1(0), p + 4, O[X])
    a.nop(16)
    a("s_add_u32 s66, s66, 1024")
    a("s_sub_u32 s67, s67, 1")
    a("s_cmp_lg_u32 s67, 0")
    a(f"s_cbranch_scc1 {name}_sloop")
    a(f"s_branch {name}_fin")

def gemm2(a0):
    class Filt:
        def __call__(self, s):
            if E("G2NOMFMA") and "v_mfma" in s: return
            if E("G2NOLD") and ("buffer_load_dwordx4" in s): return
            if E("G2NORD") and ("ds_read_b64_tr" in s): return
            a0(s)
        def __getattr__(self, n): return getattr(a0, n)
    a = Filt()
    if E("NOG2"):
        dump_stamps(a0, 7)
        a0("s_endpgm")
    D, NH, NK = 8, 28, 36
    ACC, AR, WF = 64, 128, 32
    a("s_and_b32 s3, s2, 7")
    a("s_bfe_u32 s4, s2, 0x50003")
    a("s_lshl_b32 s5, s3, 2")
    a("s_and_b32 s6, s4, 3")
    a("s_add_u32 s41, s5, s6")
    a("s_lshr_b32 s42, s4, 2")
    srd(a, 44, 20, 512 * 1024)
    srd(a, 48, 28, 1792 * 1024)
    a(f"s_mul_i32 s53, s40, {NH*16384}")
    a("s_lshl_b32 s52, s40, 17")
    a("s_mul_i32 s54, s41, 288")
    a(f"s_mul_i32 s5, s40, {NH}")
    a("s_add_u32 s5, s5, s54")
    a("s_add_u32 s5, s5, 32")
    a("s_lshl_b32 s5, s5, 10")
    a(f"s_add_u32 s60, s5, {WS_AF}")
    a(f"s_add_u32 s61, s60, {144*1024}")
    a("s_lshl_b32 s5, s40, 3")
    a("s_add_u32 s5, s5, s54")
    a("s_lshl_b32 s5, s5, 10")
    a(f"s_add_u32 s62, s5, {WS_AF}")
    a(f"s_add_u32 s63, s62, {144*1024}")
    a(f"s_mul_i32 s56, s40, {D*2048}")
    a("s_and_b32 s5, s41, 3")
    a("s_lshl_b32 s5, s5, 1")
    a("s_add_u32 s5, s5, s42")
    a("s_cmp_ge_u32 s5, 7")
    a("s_cselect_b32 s6, 7, 0")
    a("s_sub_u32 s5, s5, s6")
    if E("NOHROT"): a("s_mov_b32 s5, 0")
    a("s_lshl_b32 s6, s5, 16")
    a("s_add_u32 s53, s53, s6")
    a("s_lshl_b32 s6, s5, 12")
    a("s_add_u32 s60, s60, s6")
    a("s_add_u32 s61, s61, s6")
    a("s_sub_u32 s64, 7, s5")
    a("s_mov_b32 s65, s64")
    a("v_lshlrev_b32 v2, 4, v1")
    a("v_lshrrev_b32 v3, 5, v1")
    a("v_lshlrev_b32 v4, 2, v3")
    a("v_bfe_u32 v5, v1, 2, 2")
    a("v_add_u32 v4, v4, v5")
    a("v_lshlrev_b32 v4, 10, v4")
    a("v_bfe_u32 v6, v1, 4, 1")
    a("v_lshl_add_u32 v4, v6, 6, v4")
    a("v_and_b32 v7, 3, v1")
    a("v_lshl_add_u32 v4, v7, 4, v4")
    a("s_lshl_b32 s57, s42, 7")
    a("v_add_u32 v4, s57, v4")
    a("v_add_u32 v9, 8192, v4")
    a("v_lshlrev_b32 v8, 9, v3")
    a("v_lshl_add_u32 v8, v5, 6, v8")
    a("v_lshl_add_u32 v8, v6, 5, v8")
    a("v_lshl_add_u32 v8, v7, 3, v8")
    a("v_add_u32 v8, s56, v8")
    q = VMQ(a)
    def loadW(i):
        s = i % D
        sr_, so = ("s[48:51]", "s53") if i < NH else ("s[44:47]", "s52")
        a(f"s_add_u32 m0, s56, {s*2048}")
        a("s_nop 0")
        a(f"buffer_load_dwordx4 v4, {sr_}, {so} offen lds"); q.issue(("W", i))
        a(f"s_add_u32 m0, s56, {s*2048+1024}")
        a("s_nop 0")
        a(f"buffer_load_dwordx4 v9, {sr_}, {so} offen lds"); q.issue(("W", i))
        a(f"s_add_u32 {so}, {so}, 16384")
        if i < NH and i % 4 == 3:
            a("s_sub_u32 s64, s64, 1")
            a("s_cmp_eq_u32 s64, 0")
            a(f"s_cselect_b32 s6, {NH*16384}, 0")
            a("s_sub_u32 s53, s53, s6")
    def loadA(i):
        r = AR + (i % D) * 8
        j = i if i < NH else i - NH
        s0, s1 = ("s60", "s61") if i < NH else ("s62", "s63")
        a(f"buffer_load_dwordx4 v[{r}:{r+3}], v2, s[36:39], {s0} offen offset:{(j%4)*1024} sc1"); q.issue(("A", i))
        a(f"buffer_load_dwordx4 v[{r+4}:{r+7}], v2, s[36:39], {s1} offen offset:{(j%4)*1024} sc1"); q.issue(("A", i))
        if j % 4 == 3:
            a(f"s_add_u32 {s0}, {s0}, 4096")
            a(f"s_add_u32 {s1}, {s1}, 4096")
            if i < NH:
                a("s_sub_u32 s65, s65, 1")
                a("s_cmp_eq_u32 s65, 0")
                a(f"s_cselect_b32 s6, {NH*1024}, 0")
                a("s_sub_u32 s60, s60, s6")
                a("s_sub_u32 s61, s61, s6")
    for i in range(D): loadW(i)
    for i in range(64): a(f"v_mov_b32 v{ACC+i}, 0")
    a("s_lshl_b32 s66, s41, 7")
    a(f"s_add_u32 s4, s66, {FH}")
    a(f"s_setprio {E('PB2', '0')}")
    poll(a, "s4", 32, 12); q.drained()
    stamp(a, 4)
    for i in range(D): loadA(i)
    def rd(i):
        s = i % D
        for u in range(2):
            b = WF + (i % 2) * 8 + u * 4
            a(f"ds_read_b64_tr_b16 v[{b}:{b+1}], v8 offset:{s*2048+u*256}")
            a(f"ds_read_b64_tr_b16 v[{b+2}:{b+3}], v8 offset:{s*2048+1024+u*256}")
    rd(0)
    for i in range(NK):
        if i == NH:
            a(f"s_add_u32 s4, s66, {FO}")
            stamp(a, 5)
            poll(a, "s4", 32, 12); q.drained()
            stamp(a, 6)
            for j in range(NH, NK): loadA(j)
        tags = [("A", i)] + ([("W", i + 1)] if i + 1 < NK else [])
        tags = [t for t in tags if t in q.q]
        if tags: q.wait(tags)
        if i + 1 < NK:
            rd(i + 1)
            a("s_waitcnt lgkmcnt(4)")
        else:
            a("s_waitcnt lgkmcnt(0)")
        r = AR + (i % D) * 8
        for t in range(2):
            for u in range(2):
                w = WF + (i % 2) * 8 + u * 4
                d = ACC + (t * 2 + u) * 16
                mfma(a, d, w, r + 4 * t, d)
        if i + D < NK:
            loadW(i + D)
            if i + D < NH: loadA(i + D)
    PITCH = 272
    a("s_setprio 2")
    a("s_barrier")
    a("v_and_b32 v9, 31, v1")
    a(f"v_mul_u32_u24 v9, {PITCH}, v9")
    a("v_lshl_add_u32 v9, v3, 4, v9")
    a(f"s_mul_i32 s56, s40, {64*PITCH}")
    a("v_add_u32 v9, s56, v9")
    a("v_lshrrev_b32 v10, 3, v0")
    a("v_and_b32 v11, 7, v0")
    a("s_lshl_b32 s57, s41, 6")
    a("v_add_u32 v12, s57, v10")
    a("v_lshlrev_b32 v12, 10, v12")
    a("v_lshl_add_u32 v12, v11, 4, v12")
    a("s_lshl_b32 s57, s42, 7")
    a("v_add_u32 v12, s57, v12")
    srd(a, 44, 16, 2048 * 1024)
    srd(a, 48, 30, 2048 * 1024)
    a("s_mov_b32 s58, 32768")
    a("buffer_load_dwordx4 v[16:19], v12, s[44:47], 0 offen")
    a("buffer_load_dwordx4 v[20:23], v12, s[44:47], s58 offen")
    for t in range(2):
        for u in range(2):
            d = ACC + (t * 2 + u) * 16
            for j in range(4):
                a(f"ds_write_b128 v9, v[{d+4*j}:{d+4*j+3}] offset:{t*32*PITCH + u*128 + j*32}")
    a(f"v_mul_u32_u24 v13, {PITCH}, v10")
    a("v_lshl_add_u32 v13, v11, 5, v13")
    a("s_waitcnt lgkmcnt(0)")
    a("s_barrier")
    for it in range(2):
        for w in range(4):
            b = AR + (it * 4 + w) * 8
            off = w * 64 * PITCH + it * 32 * PITCH
            a(f"ds_read_b128 v[{b}:{b+3}], v13 offset:{off}")
            a(f"ds_read_b128 v[{b+4}:{b+7}], v13 offset:{off+16}")
    a("s_waitcnt vmcnt(0)")
    for it in range(2):
        xs = 16 + 4 * it
        for i in range(4):
            a(f"v_lshlrev_b32 v{24+it*8+2*i}, 16, v{xs+i}")
            a(f"v_and_b32 v{25+it*8+2*i}, 0xffff0000, v{xs+i}")
    for it in range(2):
        a(f"s_waitcnt lgkmcnt({8*(1-it)})")
        for w in range(4):
            b = AR + (it * 4 + w) * 8
            for i in range(8):
                a(f"v_add_f32 v{24+it*8+i}, v{24+it*8+i}, v{b+i}")
        for i in range(4):
            a(f"v_cvt_pk_bf16_f32 v{40+it*4+i}, v{24+it*8+2*i}, v{25+it*8+2*i}")
        a(f"buffer_store_dwordx4 v[{40+it*4}:{43+it*4}], v12, s[48:51], {'0' if it==0 else 's58'} offen")
    dump_stamps(a, 7)
    a("s_endpgm")

def gen(a):
    a.raw(f".globl {NAME}")
    a.raw(".p2align 8")
    a.raw(f".type {NAME},@function")
    a.label(NAME)
    a("s_cmp_ge_u32 s2, 512")
    a(f"s_cbranch_scc1 {NAME}_done")
    a("s_load_dwordx16 s[16:31], s[0:1], 0")
    a("s_load_dwordx4 s[32:35], s[0:1], 64")
    a("s_memrealtime s[10:11]")
    a("v_and_b32 v1, 63, v0")
    a("v_lshrrev_b32 v2, 6, v0")
    a("s_and_b32 s3, s2, 7")
    a("v_readfirstlane_b32 s40, v2")
    a("s_bfe_u32 s4, s2, 0x50003")
    a("s_and_b32 s5, s3, 1")
    a("s_lshl_b32 s5, s5, 3")
    a("s_and_b32 s6, s4, 7")
    a("s_add_u32 s41, s5, s6")
    a("s_lshr_b32 s5, s3, 1")
    a("s_lshl_b32 s5, s5, 2")
    a("s_lshr_b32 s6, s4, 3")
    a("s_add_u32 s42, s5, s6")
    a("s_waitcnt lgkmcnt(0)")
    stamp(a, 0)
    srd(a, 36, 34, WS_NREC)
    srd(a, 56, 32, 256)
    a("s_cmp_ge_u32 s2, 256")
    a(f"s_cbranch_scc1 {NAME}_B")
    a("s_setprio 2")
    a("s_or_b32 s3, s2, s40")
    a("s_cmp_lg_u32 s3, 0")
    a(f"s_cbranch_scc1 {NAME}_A")
    a("s_or_b32 s10, s10, 1")
    a("v_mov_b32 v2, s10")
    a("v_mov_b32 v3, 0")
    a("s_mov_b64 exec, 1")
    a("buffer_store_dword v2, v3, s[56:59], 0 offen sc1")
    a("s_mov_b64 exec, -1")
    a("s_waitcnt vmcnt(0)")
    a.label(f"{NAME}_A")
    if E("ONLY_B"): a("s_endpgm")
    QL = gemm1A(a)
    if not E("ITER"): stamp(a, 3)
    if E("ONLY_G1"):
        dump_stamps(a, 7 if E("ITER") else 4)
        a("s_endpgm")
    (attention_direct if E("ATT_DIRECT") else attention)(a, QL)
    a.label(f"{NAME}_B")
    if E("ONLY_A"): a("s_endpgm")
    a("s_setprio 3")
    gemm1B(a)
    if not E("BSTAMP"): stamp(a, 3)
    if E("ONLY_G1"):
        dump_stamps(a, 4)
        a("s_endpgm")
    gemm2(a)
    a.label(f"{NAME}_done")
    a("s_endpgm")

if __name__ == "__main__":
    out = sys.argv[1] if len(sys.argv) > 1 else "v3.s"
    a = Asm()
    gen(a)
    for p in check_hazards(a.lines, NAME): print("HAZARD", p, file=sys.stderr)
    txt = HEADER + ("; @launch grid=(512,1,1) block=(256,1,1) lds=81920\n" if E("FINAL") else f"; @launch kernel={NAME} grid=(512,1,1) block=(256,1,1) lds=81920\n") + '.amdgcn_target "amdgcn-amd-amdhsa--gfx950"\n.text\n' + a.text()
    txt += f""".section .rodata,"a"
.p2align 6
.amdhsa_kernel {NAME}
  .amdhsa_next_free_vgpr 256
  .amdhsa_next_free_sgpr 102
  .amdhsa_accum_offset 256
  .amdhsa_group_segment_fixed_size 0
  .amdhsa_kernarg_size 80
  .amdhsa_user_sgpr_count 2
  .amdhsa_user_sgpr_kernarg_segment_ptr 1
  .amdhsa_system_sgpr_workgroup_id_x 1
.end_amdhsa_kernel
"""
    open(out, "w").write(txt)
```

```python
import sys, math, struct, os
from asmlib import *

def f2h(x):
    return "0x%08x" % struct.unpack("<I", struct.pack("<f", x))[0]
E = os.environ.get
WS_KH = 4 << 20
WS_VT = 6 << 20
WS_AF = 8 << 20
WS_FL = 20 << 20
F1, FH, FO, FX = WS_FL, WS_FL + 4096, WS_FL + 8192, WS_FL + 12288
WS_ST = 21 << 20
WS_NREC = 32 << 20
LOG2E = math.log2(math.e)
QSCALE = 0.25 * LOG2E
TIMING = bool(E("TIMING"))
SPIN_MAX = 200000
NAME = "parallel_sum__mha_block__swiglu_ffn__prompt_kernel" if E("FINAL") else "fused_kernel"

HEADER = """; Kernarg layout for this problem (80 bytes, ptrs only, base s[0:1]):
"""

def srd(a, d, base, nrec):
    a(f"s_mov_b32 s{d}, s{base}")
    a(f"s_mov_b32 s{d+1}, s{base+1}")
    a(f"s_mov_b32 s{d+2}, {nrec}")
    a(f"s_mov_b32 s{d+3}, 0x00020000")

def stamp(a, idx):
    if TIMING:
        a(f"{'s_memtime' if E('CYC') else 's_memrealtime'} s[{84+2*idx}:{85+2*idx}]")
        a("s_waitcnt lgkmcnt(0)")
def dump_stamps(a, last):
    if TIMING:
        a("s_waitcnt vmcnt(0)")
        stamp(a, last)
        a("s_add_u32 s76, s34, 0x8000000")
        a("s_addc_u32 s77, s35, 0")
        a("s_mov_b32 s78, 0x100000")
        a("s_mov_b32 s79, 0x00020000")
        a("s_lshl_b32 s80, s2, 7")
        a("s_lshl_b32 s81, s40, 5")
        a("s_add_u32 s80, s80, s81")
        a("v_mov_b32 v250, s80")
        for i in range(8):
            a(f"v_mov_b32 v252, s{84+2*i}")
            a(f"buffer_store_dword v252, v250, s[76:79], 0 offen offset:{4*i}")
            a("s_nop 1")

def round_bf16(a, v, t):
    a(f"v_cvt_pk_bf16_f32 v{t}, v{v}, v{v}")
    a(f"v_lshlrev_b32 v{v}, 16, v{t}")

def mfma(a, d, x, y, c):
    a(f"v_mfma_f32_32x32x16_bf16 v[{d}:{d+15}], v[{x}:{x+3}], v[{y}:{y+3}], " + (f"v[{c}:{c+15}]" if c is not None else "0"))

class VMQ:
    def __init__(self, a): self.a, self.q = a, []
    def issue(self, tag): self.q.append(tag)
    def wait(self, tags):
        idx = max(i for i, t in enumerate(self.q) if t in tags)
        self.a(f"s_waitcnt vmcnt({len(self.q)-1-idx})")
    def drained(self): self.q = []

UID = [0]
def uid():
    UID[0] += 1
    return UID[0]

def get_nonce(a, vt):
    n = uid()
    a(f"v_mov_b32 v{vt+1}, 0")
    a(f"s_mov_b32 s3, {SPIN_MAX}")
    a.label(f"nonce{n}")
    a(f"buffer_load_dword v{vt}, v{vt+1}, s[56:59], 0 offen sc1")
    a("s_waitcnt vmcnt(0)")
    a(f"v_readfirstlane_b32 s83, v{vt}")
    a("s_sub_u32 s3, s3, 1")
    a("s_cmp_eq_u32 s3, 0")
    a(f"s_cbranch_scc1 nonce{n}_ok")
    a("s_cmp_eq_u32 s83, 0")
    a(f"s_cbranch_scc1 nonce{n}")
    a.label(f"nonce{n}_ok")

def publish(a, soff, vt):
    a(f"v_mov_b32 v{vt}, s83")
    a(f"v_mov_b32 v{vt+1}, 0")
    a("s_waitcnt vmcnt(0)")
    a("s_mov_b64 exec, 1")
    a(f"buffer_store_dword v{vt}, v{vt+1}, s[36:39], {soff} offen sc1")
    a("s_mov_b64 exec, -1")

def poll(a, soff, nflags, vt):
    n = uid()
    a("s_cmp_lg_u32 s40, 0")
    a(f"s_cbranch_scc1 poll{n}_ok")
    a(f"v_and_b32 v{vt+1}, {nflags-1}, v1")
    a(f"v_lshlrev_b32 v{vt+1}, 2, v{vt+1}")
    a(f"s_mov_b32 s3, {SPIN_MAX}")
    a.label(f"poll{n}")
    a(f"buffer_load_dword v{vt}, v{vt+1}, s[36:39], {soff} offen sc1")
    a("s_waitcnt vmcnt(0)")
    a(f"v_cmp_ne_u32 vcc, s83, v{vt}")
    a(f"s_cbranch_vccz poll{n}_ok")
    a(f"s_sleep {E('SLEEP', '4')}")
    a("s_sub_u32 s3, s3, 1")
    a("s_cmp_lg_u32 s3, 0")
    a(f"s_cbranch_scc1 poll{n}")
    a.label(f"poll{n}_ok")
    a("s_waitcnt vmcnt(0)")
    a("s_barrier")

def ln_load(a):
    srd(a, 44, 16, 2048 * 1024)
    a("s_lshl_b32 s3, s41, 7")
    a("s_lshl_b32 s4, s42, 3")
    a("s_add_u32 s3, s3, s4")
    a("s_lshl_b32 s4, s40, 1")
    a("s_add_u32 s3, s3, s4")
    a("s_lshl_b32 s3, s3, 10")
    a("v_lshlrev_b32 v2, 4, v1")
    a("buffer_load_dwordx4 v[208:211], v2, s[44:47], s3 offen")
    a("buffer_load_dwordx4 v[212:215], v2, s[44:47], s3 offen offset:1024")
    a("v_mov_b32 v247, 0")
    a("buffer_load_dword v246, v247, s[56:59], 0 offen sc1")

def ln_addr(a):
    a("v_lshlrev_b32 v240, 7, v1")
    a("s_lshl_b32 s3, s40, 5")
    a("v_add_u32 v240, s3, v240")
    a("v_lshlrev_b32 v241, 4, v1")
    a("s_lshl_b32 s3, s40, 12")
    a("v_add_u32 v241, s3, v241")
    a("v_lshrrev_b32 v242, 3, v1")
    a("v_lshrrev_b32 v243, 1, v242")
    a("v_lshlrev_b32 v243, 10, v243")
    a("v_and_b32 v242, 1, v242")
    a("v_lshl_add_u32 v243, v242, 9, v243")
    a("v_and_b32 v242, 7, v1")
    a("v_lshl_add_u32 v243, v242, 4, v243")
    a("s_lshl_b32 s3, s41, 2")
    a("s_lshr_b32 s4, s42, 2")
    a("s_add_u32 s5, s3, s4")
    a("s_lshl_b32 s60, s5, 15")
    a("s_and_b32 s4, s42, 3")
    a("s_lshl_b32 s6, s4, 7")
    a("s_add_u32 s60, s60, s6")
    a("s_lshl_b32 s6, s40, 14")
    a("s_add_u32 s60, s60, s6")
    a("s_lshl_b32 s5, s5, 6")
    a("s_lshl_b32 s4, s4, 4")
    a("s_add_u32 s5, s5, s4")
    a("s_lshl_b32 s4, s40, 3")
    a("s_add_u32 s5, s5, s4")
    a(f"s_add_u32 s66, s5, {FX}")

def ln_compute(a, LS):
    X = (216, 224)
    S = 232
    a("v_readfirstlane_b32 s83, v246")
    if E("LNST"): stamp(a, 2)
    for r in range(2):
        for i in range(4):
            a(f"v_lshlrev_b32 v{X[r]+2*i}, 16, v{208+4*r+i}")
            a(f"v_and_b32 v{X[r]+2*i+1}, 0xffff0000, v{208+4*r+i}")
    for r in range(2):
        a(f"v_add_f32 v{S+r}, v{X[r]}, v{X[r]+1}")
        a(f"v_mul_f32 v{S+2+r}, v{X[r]}, v{X[r]}")
    for i in range(1, 8):
        for r in range(2):
            if i >= 2: a(f"v_add_f32 v{S+r}, v{S+r}, v{X[r]+i}")
            a(f"v_fmac_f32 v{S+2+r}, v{X[r]+i}, v{X[r]+i}")
    for off in (0x041F, 0x081F, 0x101F, 0x201F, 0x401F):
        for i in range(4): a(f"ds_swizzle_b32 v{S+4+i}, v{S+i} offset:{off}")
        a("s_waitcnt lgkmcnt(0)")
        for i in range(4): a(f"v_add_f32 v{S+i}, v{S+i}, v{S+4+i}")
    for i in range(4): a(f"v_mov_b32 v{S+4+i}, v{S+i}")
    a("s_nop 1")
    for i in range(4): a(f"v_permlane32_swap_b32 v{S+4+i}, v{S+i}")
    a("s_nop 1")
    for i in range(4): a(f"v_add_f32 v{S+i}, v{S+i}, v{S+4+i}")
    for i in range(4): a(f"v_mul_f32 v{S+i}, {f2h(1.0/512)}, v{S+i}")
    for r in range(2): a(f"v_fma_f32 v{S+2+r}, -v{S+r}, v{S+r}, v{S+2+r}")
    for r in range(2): a(f"v_max_f32 v{S+2+r}, 0, v{S+2+r}")
    def rnd(regs):
        for k, v in enumerate(regs): a(f"v_cvt_pk_bf16_f32 v{S+4+k}, v{v}, v{v}")
        for k, v in enumerate(regs): a(f"v_lshlrev_b32 v{v}, 16, v{S+4+k}")
    rnd((S, S + 1, S + 2, S + 3))
    for r in range(2): a(f"v_add_f32 v{S+2+r}, {f2h(1e-5)}, v{S+2+r}")
    rnd((S + 2, S + 3))
    for r in range(2): a(f"v_sqrt_f32 v{S+2+r}, v{S+2+r}")
    a("s_nop 0")
    rnd((S + 2, S + 3))
    for r in range(2): a(f"v_rcp_f32 v{S+2+r}, v{S+2+r}")
    for r in range(2):
        for i in range(8): a(f"v_sub_f32 v{X[r]+i}, v{X[r]+i}, v{S+r}")
    for r in range(2):
        for i in range(4): a(f"v_cvt_pk_bf16_f32 v{208+4*r+i}, v{X[r]+2*i}, v{X[r]+2*i+1}")
    for r in range(2):
        for i in range(4):
            a(f"v_lshlrev_b32 v{X[r]+2*i}, 16, v{208+4*r+i}")
            a(f"v_and_b32 v{X[r]+2*i+1}, 0xffff0000, v{208+4*r+i}")
    for r in range(2):
        for i in range(8): a(f"v_mul_f32 v{X[r]+i}, v{X[r]+i}, v{S+2+r}")
    for r in range(2):
        for i in range(4): a(f"v_cvt_pk_bf16_f32 v{208+4*r+i}, v{X[r]+2*i}, v{X[r]+2*i+1}")
    a(f"ds_write_b128 v240, v[208:211] offset:{LS}")
    a(f"ds_write_b128 v240, v[212:215] offset:{LS+16}")
    a("s_cmp_lg_u32 s83, 0")
    a("s_cbranch_scc1 ln_have_nonce")
    get_nonce(a, 244)
    a.label("ln_have_nonce")
    a("s_waitcnt lgkmcnt(0)")
    a("s_barrier")
    a("s_cmp_ge_u32 s40, 2")
    a("s_cbranch_scc1 ln_done")
    for q in range(4): a(f"ds_read_b128 v[{208+4*q}:{211+4*q}], v241 offset:{LS+1024*q}")
    a("v_mov_b32 v244, s83")
    a("v_mov_b32 v245, s83")
    for q in range(4):
        a(f"s_waitcnt lgkmcnt({3-q})")
        a(f"buffer_store_dwordx4 v[{208+4*q}:{211+4*q}], v243, s[36:39], s60 offen sc1")
        if q < 3: a("s_add_u32 s60, s60, 4096")
    a("s_waitcnt vmcnt(0)")
    a("s_mov_b64 exec, 1")
    a("buffer_store_dwordx2 v[244:245], v247, s[36:39], s66 offen sc1")
    a("s_mov_b64 exec, -1")

def poll_xn(a, vt):
    a("s_lshl_b32 s43, s41, 2")
    a("s_add_u32 s43, s43, s40")
    a("s_lshl_b32 s4, s41, 8")
    a(f"s_add_u32 s4, s4, {FX}")
    poll(a, "s4", 64, vt)
    a("s_lshl_b32 s70, s43, 15")
    a("s_lshl_b32 s73, s74, 12")
    a("s_add_u32 s72, s70, s73")

def rot_setup(a, add, pitch):
    a("s_and_b32 s10, s41, 7")
    a("s_and_b32 s11, s42, 3")
    a("s_lshl_b32 s11, s11, 1")
    a("s_add_u32 s10, s10, s11")
    if add: a(f"s_add_u32 s10, s10, {add}")
    a("s_and_b32 s74, s10, 7")
    if E("NOROT"): a("s_mov_b32 s74, 0")
    a(f"s_mul_i32 s11, s74, {64*pitch}")
    a("s_add_u32 s64, s64, s11")
    a("s_sub_u32 s67, 8, s74")
def w_wrap(pitch):
    return ["s_sub_u32 s67, s67, 1", "s_cmp_eq_u32 s67, 0", f"s_cselect_b32 s10, {512*pitch}, 0", "s_sub_u32 s64, s64, s10"]
X_ADV = ["s_add_u32 s73, s73, 4096", "s_and_b32 s73, s73, 32767", "s_add_u32 s72, s70, s73"]

def tr_base(a, RW, base):
    a("v_lshrrev_b32 v17, 5, v1")
    a("v_bfe_u32 v18, v1, 2, 2")
    a("v_lshl_add_u32 v18, v17, 3, v18")
    a("v_and_b32 v19, 3, v1")
    a("v_bfe_u32 v20, v1, 4, 1")
    a(f"v_lshlrev_b32 v{RW}, 6, v18")
    a(f"v_lshl_add_u32 v{RW}, v20, 5, v{RW}")
    a(f"v_lshl_add_u32 v{RW}, v19, 3, v{RW}")
    if base: a(f"v_add_u32 v{RW}, {base}, v{RW}")

def gemm1A(a):
    SB, NS = 6144, 13
    VW, VW3, RW, RW2 = 6, 7, 8, 9
    WF, ACC, XN = 16, 64, 112
    srd(a, 48, 18, 512 * 3072)
    a("s_and_b32 s3, s40, 1")
    a("s_lshr_b32 s4, s40, 1")
    a("v_lshrrev_b32 v16, 2, v1")
    a("v_and_b32 v17, 3, v1")
    a(f"v_mul_u32_u24 v{VW}, 3072, v16")
    a(f"v_lshl_add_u32 v{VW}, v17, 4, v{VW}")
    a("s_lshl_b32 s64, s42, 6")
    a(f"s_mul_i32 s5, s3, {16*3072}")
    a("s_add_u32 s64, s64, s5")
    a(f"v_add_u32 v{VW3}, 2048, v{VW}")
    a("s_lshl_b32 s5, s4, 10")
    a(f"v_add_u32 v{VW}, s5, v{VW}")
    a("s_lshl_b32 s5, s4, 11")
    a("s_lshl_b32 s6, s3, 10")
    a("s_add_u32 s69, s6, 4096")
    a("s_add_u32 s68, s5, s6")
    a("s_cmp_eq_u32 s4, 0")
    a("s_cselect_b32 s14, -1, 0")
    a("s_cselect_b32 s15, 0, -1")
    rot_setup(a, 1, 3072)
    def loadW(st):
        o = (st % NS) * SB
        a(f"s_add_u32 m0, s68, {o}")
        a("s_nop 0")
        a(f"buffer_load_dwordx4 v{VW}, s[48:51], s64 offen lds")
        a(f"s_add_u32 m0, s69, {o}")
        a("s_mov_b64 exec, s[14:15]")
        a(f"buffer_load_dwordx4 v{VW3}, s[48:51], s64 offen lds")
        a("s_mov_b64 exec, -1")
        a(f"s_add_u32 s64, s64, {32*3072}")
        if st % 2 == 1:
            for i in w_wrap(3072): a(i)
    tr_base(a, RW, 0)
    a(f"v_add_u32 v{RW2}, {7*SB}, v{RW}")
    for i in range(48): a(f"v_mov_b32 v{ACC+i}, 0")
    a("v_lshlrev_b32 v2, 4, v1")
    if E("AW0"):
        for st in range(NS): loadW(st)
        get_nonce(a, 240)
    else:
        get_nonce(a, 240)
        for st in range(NS): loadW(st)
    poll_xn(a, 240)
    stamp(a, 1)
    XA = int(E("XA", "10"))
    q = VMQ(a)
    def loadX(ks):
        if ks and ks % 4 == 0:
            for i in X_ADV: a(i)
        a(f"buffer_load_dwordx4 v[{XN+4*ks}:{XN+4*ks+3}], v2, s[36:39], s72 offen offset:{(ks%4)*1024} sc1")
        q.issue(("x", ks))
    for ks in range(XA): loadX(ks)
    def rd(ks):
        st, kk = ks // 2, ks % 2
        sl = st % NS
        base, o = (RW, sl * SB) if sl < 7 else (RW2, (sl - 7) * SB)
        out = []
        for u in range(3):
            r = WF + (ks % 4) * 12 + u * 4
            out.append(f"ds_read_b64_tr_b16 v[{r}:{r+1}], v{base} offset:{o+u*2048+kk*1024}")
            out.append(f"ds_read_b64_tr_b16 v[{r+2}:{r+3}], v{base} offset:{o+u*2048+kk*1024+256}")
        return out
    for i in rd(0) + rd(1): a(i)
    extra = 0
    for ks in range(32):
        if ks == 8:
            a("s_barrier")
            for st in range(NS, 16):
                loadW(st); q.issue("w"); q.issue("w")
        if ks + XA < 32: loadX(ks + XA)
        if ks == 24:
            q.wait(["w", ("x", ks)])
            a("s_barrier")
        else:
            q.wait([("x", ks)])
        a(f"s_waitcnt lgkmcnt({6 if ks < 31 else 0})")
        RL = rd(ks + 2) if ks + 2 < 32 else []
        x = XN + 4 * ks
        for u in range(3):
            w, d = WF + (ks % 4) * 12 + u * 4, ACC + u * 16
            if u == 2: mfma(a, d, x, w, d)
            else: mfma(a, d, w, x, d)
            for i in RL[2*u:2*u+2]: a(i)
    stamp(a, 2)
    P = 16
    a("v_and_b32 v10, 31, v1")
    a("v_lshrrev_b32 v11, 5, v1")
    a("v_lshlrev_b32 v12, 4, v1")
    a("v_bfe_u32 v13, v1, 4, 1")
    a("v_lshlrev_b32 v13, 16, v13")
    a("v_lshl_add_u32 v13, v11, 8, v13")
    a("v_and_b32 v14, 15, v1")
    a("v_lshl_add_u32 v13, v14, 4, v13")
    a("s_lshl_b32 s3, s42, 17")
    a("s_lshl_b32 s4, s43, 10")
    a("s_add_u32 s3, s3, s4")
    a(f"s_add_u32 s6, s3, {WS_KH}")
    a(f"s_add_u32 s7, s3, {WS_KH+65536}")
    a(f"s_add_u32 s8, s3, {WS_VT}")
    a(f"s_mov_b32 s9, {f2h(QSCALE)}")
    for i in range(8): a(f"v_cvt_pk_bf16_f32 v{P+8+i}, v{ACC+16+2*i}, v{ACC+17+2*i}")
    a(f"buffer_store_dwordx4 v[{P+8}:{P+11}], v12, s[36:39], s6 offen sc1")
    a(f"buffer_store_dwordx4 v[{P+12}:{P+15}], v12, s[36:39], s7 offen sc1")
    for i in range(8): a(f"v_cvt_pk_bf16_f32 v{P+16+i}, v{ACC+32+2*i}, v{ACC+33+2*i}")
    a(f"buffer_store_dwordx4 v[{P+16}:{P+19}], v13, s[36:39], s8 offen sc1")
    a(f"buffer_store_dwordx4 v[{P+20}:{P+23}], v13, s[36:39], s8 offen offset:512 sc1")
    for i in range(16): a(f"v_mul_f32 v{ACC+i}, s9, v{ACC+i}")
    for i in range(8): a(f"v_cvt_pk_bf16_f32 v{P+i}, v{ACC+2*i}, v{ACC+2*i+1}")
    QL = 5 * SB
    a("s_lshl_b32 s3, s40, 11")
    a("v_add_u32 v14, s3, v12")
    a(f"ds_write_b128 v14, v[{P}:{P+3}] offset:{QL}")
    a(f"ds_write_b128 v14, v[{P+4}:{P+7}] offset:{QL+1024}")
    a("s_lshl_b32 s4, s42, 8")
    a("s_lshl_b32 s5, s43, 2")
    a("s_add_u32 s4, s4, s5")
    a(f"s_add_u32 s4, s4, {F1}")
    publish(a, "s4", 240)
    a("s_waitcnt lgkmcnt(0)")
    a("s_barrier")
    return QL

def gemm1B(a):
    NU, R, PITCH, SB, NLD = 7, 4, 3584, 14336, 6
    VW, VW3, RW, RM, RM2 = 6, 7, 8, 9, 10
    XN, WF, ACC = 12, 44, 100
    ln_load(a)
    a("s_and_b32 s3, s40, 1")
    a("s_lshr_b32 s4, s40, 1")
    a("v_lshrrev_b32 v16, 2, v1")
    a("v_and_b32 v17, 3, v1")
    a(f"v_mul_u32_u24 v{VW}, {PITCH}, v16")
    a(f"v_lshl_add_u32 v{VW}, v17, 4, v{VW}")
    a("s_cmp_eq_u32 s4, 0")
    a("s_cselect_b32 s48, s24, s26")
    a("s_cselect_b32 s49, s25, s27")
    a(f"s_mov_b32 s50, {512*3584}")
    a("s_mov_b32 s51, 0x00020000")
    a("s_mul_i32 s64, s42, 224")
    a(f"s_mul_i32 s5, s3, {16*PITCH}")
    a("s_add_u32 s64, s64, s5")
    a("s_lshl_b32 s5, s4, 11")
    a("s_lshl_b32 s6, s3, 10")
    a("s_add_u32 s68, s5, s6")
    a("s_lshl_b32 s5, s4, 10")
    a("s_add_u32 s5, s5, 12288")
    a("s_add_u32 s6, s68, 8192")
    a("s_cmp_eq_u32 s3, 0")
    a("s_cselect_b32 s71, s5, s6")
    a("s_cselect_b64 s[14:15], -1, 1")
    a("s_and_b32 s7, s42, 1")
    a("s_lshl_b32 s8, s7, 5")
    a(f"v_add_u32 v{VW}, s8, v{VW}")
    a("s_cmp_eq_u32 s7, 0")
    a("s_cselect_b32 s8, 192, 0")
    a("v_lshrrev_b32 v18, 1, v1")
    a("s_lshl_b32 s9, s4, 2")
    a("v_xor_b32 v18, s9, v18")
    a(f"v_mul_u32_u24 v18, {PITCH}, v18")
    a("v_and_b32 v19, 1, v1")
    a("v_lshl_add_u32 v18, v19, 4, v18")
    a("v_add_u32 v18, s8, v18")
    a(f"v_add_u32 v19, 128, v{VW}")
    a("s_cmp_eq_u32 s3, 0")
    a("s_cselect_b64 vcc, -1, 0")
    a(f"v_cndmask_b32 v{VW3}, v19, v18, vcc")
    def wlist(slot):
        o = slot * SB
        g = []
        for i in range(3):
            g.append(([f"s_add_u32 m0, s68, {o+i*(4096-64)}"], f"buffer_load_dwordx4 v{VW}, s[48:51], s64 offen offset:{64*i} lds", []))
        g.append(([f"s_add_u32 m0, s71, {o}"], f"s_mov_b64 exec, s[14:15]\nbuffer_load_dwordx4 v{VW3}, s[48:51], s64 offen lds\ns_mov_b64 exec, -1",
                  [f"s_add_u32 s64, s64, {32*PITCH}"] + (w_wrap(PITCH) if slot % 2 == 1 else [])))
        return g
    def xlist(slot):
        g = []
        for kk in range(2):
            r = XN + (2 * slot + kk) * 4
            g.append(([], f"buffer_load_dwordx4 v[{r}:{r+3}], v2, s[36:39], s72 offen offset:{((2*slot+kk)%4)*1024} sc1",
                      X_ADV if (kk == 1 and slot % 2 == 1) else []))
        return g
    def emit(g):
        for pre, ins, post in g:
            for i in pre: a(i)
            if pre: a("s_nop 0")
            a(ins)
            for i in post: a(i)
    rot_setup(a, 0, PITCH)
    ln_addr(a)
    a("s_waitcnt vmcnt(0)")
    ln_compute(a, 3 * SB)
    for st in range(R - 1):
        for i in wlist(st)[3][2]: a(i)
    a("s_branch g1B_pro")
    a.label("ln_done")
    srd(a, 52, 24, 512 * 3584)
    a("v_lshrrev_b32 v18, 1, v1")
    a(f"v_mul_u32_u24 v18, {PITCH}, v18")
    a("v_and_b32 v20, 1, v1")
    a("v_lshl_add_u32 v18, v20, 4, v18")
    a("v_add_u32 v18, s8, v18")
    a("s_sub_u32 s69, s68, 2048")
    a("s_add_u32 s6, s69, 8192")
    a("s_and_b32 s3, s40, 1")
    a("s_cmp_eq_u32 s3, 0")
    a("s_cselect_b32 s70, 12288, s6")
    a("s_cselect_b64 vcc, -1, 0")
    a("v_cndmask_b32 v11, v19, v18, vcc")
    for st in range(R - 1):
        o = st * SB
        for i in range(3):
            a(f"s_add_u32 m0, s69, {o+i*(4096-64)}")
            a("s_nop 0")
            a(f"buffer_load_dwordx4 v{VW}, s[52:55], s64 offen offset:{64*i} lds")
        a(f"s_add_u32 m0, s70, {o}")
        a("s_mov_b64 exec, s[14:15]")
        a("buffer_load_dwordx4 v11, s[52:55], s64 offen lds")
        a("s_mov_b64 exec, -1")
        emit(wlist(st))
    a.label("g1B_pro")
    stamp(a, 1)
    if E("LNONLY"): a("s_endpgm")
    tr_base(a, RW, 0)
    a("v_lshlrev_b32 v21, 2, v20")
    a("v_xor_b32 v21, v21, v18")
    a(f"v_lshlrev_b32 v{RM}, 5, v21")
    a(f"v_lshl_add_u32 v{RM}, v20, 10, v{RM}")
    a(f"v_lshl_add_u32 v{RM}, v19, 3, v{RM}")
    a(f"v_add_u32 v{RM}, 12288, v{RM}")
    a(f"v_xor_b32 v{RM2}, 128, v{RM}")
    for i in range(NU * 16): a(f"v_mov_b32 v{ACC+i}, 0")
    a(f"s_setprio {E('PB1', '0')}")
    poll_xn(a, 240)
    for st in range(R - 1): emit(xlist(st))
    def rd_w(kk, slot, u):
        b, o = WF + kk * 28 + u * 4, slot * SB
        if u == 6:
            return [f"ds_read_b64_tr_b16 v[{b}:{b+1}], v{RM} offset:{o+kk*512}", f"ds_read_b64_tr_b16 v[{b+2}:{b+3}], v{RM2} offset:{o+kk*512}"]
        return [f"ds_read_b64_tr_b16 v[{b}:{b+1}], v{RW} offset:{o+u*2048+kk*1024}", f"ds_read_b64_tr_b16 v[{b+2}:{b+3}], v{RW} offset:{o+u*2048+kk*1024+256}"]
    def body(slot, ld, vmw, last=False):
        LL = (wlist((slot + 3) % 4) + xlist((slot + 3) % 4)) if ld else []
        li = 0
        for kk in range(2):
            if kk == 1 and not last:
                a(f"s_waitcnt vmcnt({vmw})")
                a("s_barrier")
            x = XN + (2 * slot + kk) * 4
            for u in range(NU):
                nxt = rd_w(1, slot, u) if kk == 0 else ([] if last else rd_w(0, (slot + 1) % 4, u))
                if u % 2 == 0:
                    rest = max(0, 2 * (NU - 2 - u))
                    a(f"s_waitcnt lgkmcnt({rest + (2*u if (kk == 0 or not last) else 0)})")
                l = LL[li] if (ld and kk == 1 and u >= 1) else None
                if l:
                    for i in l[0]: a(i)
                mfma(a, ACC + u * 16, WF + kk * 28 + u * 4, x, ACC + u * 16)
                for i in nxt: a(i)
                if l:
                    a(l[1])
                    for i in l[2]: a(i)
                    li += 1
    stamp(a, 3 if E("BSTAMP") else 7)
    if E("LNST"):
        dump_stamps(a, 6)
        a("s_endpgm")
    a0 = a
    class Filt:
        def __call__(self, s):
            if E("NODMA") and " lds" in s: return
            if E("NOX") and "sc1" in s: return
            if E("NOMFMA") and "v_mfma" in s: return
            if E("NOWRD") and "ds_read_b64_tr" in s: return
            if E("NOBAR") and "s_barrier" in s: return
            a0(s)
        def __getattr__(self, n): return getattr(a0, n)
    a = Filt()
    a("s_waitcnt vmcnt(4)")
    a("s_barrier")
    for u in range(NU):
        for i in rd_w(0, 0, u): a(i)
    body(0, True, 2)
    body(1, True, NLD)
    body(2, True, NLD)
    body(3, True, NLD)
    if E("BITER"):
        stamp(a, 4)
        for it in range(2):
            for slot in range(4): body(slot, True, NLD)
            stamp(a, 5 + it)
    else:
        a("s_mov_b32 s75, 2")
        a.raw(".p2align 6")
        a.label("g1B_loop")
        for slot in range(4): body(slot, True, NLD)
        a("s_sub_u32 s75, s75, 1")
        a("s_cmp_lg_u32 s75, 0")
        a("s_cbranch_scc1 g1B_loop")
    body(0, True, NLD)
    body(1, False, NLD)
    body(2, False, 0)
    body(3, False, 0, last=True)
    a = a0
    stamp(a, 2)
    a("s_barrier")
    return lambda: gemm1B_epilogue(a, ACC)

def gemm1B_epilogue(a, ACC):
    T, P = 212, 44
    a("v_lshlrev_b32 v2, 4, v1")
    a("s_mul_i32 s3, s43, 144")
    a("s_mul_i32 s4, s42, 7")
    a("s_add_u32 s3, s3, s4")
    a("s_add_u32 s3, s3, 32")
    a("s_and_b32 s7, s42, 1")
    a("s_add_u32 s4, s3, s7")
    a("s_cmp_eq_u32 s7, 0")
    a("s_cselect_b32 s5, 6, 0")
    a("s_add_u32 s5, s3, s5")
    a("s_lshl_b32 s4, s4, 10")
    a(f"s_add_u32 s4, s4, {WS_AF}")
    a("s_lshl_b32 s5, s5, 10")
    a(f"s_add_u32 s5, s5, {WS_AF}")
    a(f"s_add_u32 s6, s4, 4096")
    a(f"s_mov_b32 s9, {f2h(-LOG2E)}")
    a("s_mov_b32 s8, s9")
    a("s_mov_b32 s10, 1.0")
    a("s_mov_b32 s11, 1.0")
    pr = lambda r: f"v[{r}:{r+1}]"
    def silu_mul(g, u_, n, dst):
        for i in range(0, n, 2): a(f"v_pk_mul_f32 {pr(T+i)}, {pr(g+i)}, s[8:9]")
        for i in range(n): a(f"v_exp_f32 v{T+i}, v{T+i}")
        for i in range(0, n, 2): a(f"v_pk_mul_f32 {pr(g+i)}, {pr(g+i)}, {pr(u_+i)}")
        for i in range(0, n, 2): a(f"v_pk_add_f32 {pr(T+i)}, {pr(T+i)}, s[10:11]")
        for i in range(n): a(f"v_rcp_f32 v{T+i}, v{T+i}")
        a("s_nop 0")
        for i in range(0, n, 2): a(f"v_pk_mul_f32 {pr(g+i)}, {pr(g+i)}, {pr(T+i)}")
        for i in range(n // 2): a(f"v_cvt_pk_bf16_f32 v{dst+i}, v{g+2*i}, v{g+2*i+1}")
    NHI = int(E("NHI", "0"))
    if NHI: a("s_setprio 2")
    for p in range(3):
        if NHI and p == NHI: a("s_setprio 0")
        silu_mul(ACC + 32 * p, ACC + 32 * p + 16, 16, P + 8 * p)
        so, im = ("s4", 2048 * p) if p < 2 else ("s6", 0)
        a(f"buffer_store_dwordx4 v[{P+8*p}:{P+8*p+3}], v2, s[36:39], {so} offen offset:{im} sc1")
        a(f"buffer_store_dwordx4 v[{P+8*p+4}:{P+8*p+7}], v2, s[36:39], {so} offen offset:{im+1024} sc1")
    if NHI == 3: a("s_setprio 0")
    silu_mul(ACC + 96, ACC + 104, 8, P + 24)
    a(f"buffer_store_dwordx4 v[{P+24}:{P+27}], v2, s[36:39], s5 offen sc1")
    a("s_lshl_b32 s4, s43, 6")
    a("s_lshl_b32 s5, s42, 2")
    a("s_add_u32 s4, s4, s5")
    a(f"s_add_u32 s4, s4, {FH}")
    publish(a, "s4", T)
    stamp(a, 3)

RESCALE_T = 30
BIAS = 80
def attention(a, QL):
    name = "at"
    Q = {"A": 4, "B": 8}
    NEG = {"A": 16, "B": 32}
    S = {"A": 48, "B": 64}
    O = {"A": 80, "B": 96}
    P = {"A": 112, "B": 120}
    RING, T0 = 128, 160
    NR = 2
    TP = 2112
    GB = 8 * TP
    Kf = lambda s: RING + 12 * s
    V0 = lambda s: RING + 12 * s + 4
    V1 = lambda s: RING + 12 * s + 8
    AK, AV0, AV1, VD = 2, 3, 12, 13
    mf = lambda d, x, y, c: mfma(a, d, x, y, c)
    a(f"v_mov_b32 v{VD}, v12")
    a("s_lshr_b32 s3, s40, 1")
    a("s_lshl_b32 s60, s42, 1")
    a("s_add_u32 s60, s60, s3")
    a("s_cmp_eq_u32 s3, 0")
    a("s_cselect_b64 vcc, -1, 0")
    for i in range(4): a(f"v_cndmask_b32 v{Kf(1)+i}, v{28+i}, v{24+i}, vcc")
    a("s_and_b32 s4, s40, 1")
    a("s_lshl_b32 s61, s41, 1")
    a("s_add_u32 s61, s61, s4")
    a("s_lshl_b32 s5, s4, 12")
    a("s_lshl_b32 s6, s3, 10")
    a("s_add_u32 s5, s5, s6")
    a(f"v_add_u32 v2, s5, v{VD}")
    a(f"ds_read_b128 v[{Q['A']}:{Q['A']+3}], v2 offset:{QL}")
    a(f"ds_read_b128 v[{Q['B']}:{Q['B']+3}], v2 offset:{QL+2048}")
    a("s_lshl_b32 s5, s60, 16")
    a(f"s_add_u32 s5, s5, {WS_KH}")
    a("s_add_u32 s44, s34, s5")
    a("s_addc_u32 s45, s35, 0")
    a("s_mov_b32 s46, 65536")
    a("s_mov_b32 s47, 0x00020000")
    a(f"s_add_u32 s48, s44, {WS_VT-WS_KH}")
    a("s_addc_u32 s49, s45, 0")
    a("s_mov_b32 s50, 65536")
    a("s_mov_b32 s51, 0x00020000")
    a("s_cmp_eq_u32 s4, 0")
    a("s_cselect_b32 s52, s44, s48")
    a("s_cselect_b32 s53, s45, s49")
    a("s_mov_b32 s54, 65536")
    a("s_mov_b32 s55, 0x00020000")
    a(f"s_mul_i32 s70, s3, {2*GB}")
    a("s_lshl_b32 s71, s4, 10")
    a("s_add_u32 s71, s71, s70")
    a("v_and_b32 v14, 31, v1")
    a("v_lshrrev_b32 v15, 5, v1")
    a(f"v_add_u32 v{AK}, s70, v{VD}")
    a(f"v_lshlrev_b32 v{AV0}, 8, v15")
    a(f"v_lshl_add_u32 v{AV0}, v14, 4, v{AV0}")
    a(f"v_add_u32 v{AV0}, 1024, v{AV0}")
    a(f"v_add_u32 v{AV1}, 512, v{AV0}")
    a(f"v_mov_b32 v{T0}, 2064")
    a(f"v_mov_b32 v{T0+1}, 2048")
    a("v_cmp_eq_u32 vcc, 16, v14")
    a(f"v_mov_b32 v{T0+4}, 0x3f803f80")
    a(f"v_and_b32 v{T0+2}, 1, v1")
    a(f"v_cndmask_b32 v{T0}, v{T0}, v{T0+1}, vcc")
    a("v_cmp_gt_u32 vcc, 16, v14")
    a(f"v_lshrrev_b32 v{T0+3}, 1, v1")
    a(f"v_mul_u32_u24 v{T0+3}, {TP}, v{T0+3}")
    a(f"v_cndmask_b32 v{AV0}, v{T0}, v{AV0}, vcc")
    a(f"v_cndmask_b32 v{AV1}, v{T0}, v{AV1}, vcc")
    a(f"v_add_u32 v{AV0}, s70, v{AV0}")
    a(f"v_add_u32 v{AV1}, s70, v{AV1}")
    a(f"v_cmp_eq_u32 vcc, 0, v{T0+2}")
    a(f"v_lshl_add_u32 v{T0+3}, v{T0+2}, 4, v{T0+3}")
    a("s_lshl_b32 s4, s42, 8")
    a(f"v_cndmask_b32 v{T0+4}, 0, v{T0+4}, vcc")
    for i in range(1, 4): a(f"v_mov_b32 v{T0+4+i}, v{T0+4}")
    for X in "AB":
        for i in range(16): a(f"v_mov_b32 v{O[X]+i}, 0")
        for i in range(8): a(f"v_mov_b32 v{P[X]+i}, 0")
    for i in range(4): a(f"v_mov_b32 v{V1(1)+i}, 0")
    a(f"s_mov_b32 s64, {f2h(2.0**RESCALE_T)}")
    a("s_mov_b32 s65, 0")
    a(f"s_add_u32 s4, s4, {F1}")
    a("s_waitcnt lgkmcnt(0)")
    a("s_barrier")
    a(f"ds_write_b128 v{T0+3}, v[{T0+4}:{T0+7}] offset:2048")
    for X in "AB": mf(S[X], Kf(1), Q[X], None)
    a.nop(14)
    for X in "AB":
        m = T0 + 8
        a(f"v_max3_f32 v{m}, v{S[X]}, v{S[X]+1}, v{S[X]+2}")
        for i in range(3, 15, 2):
            a(f"v_max3_f32 v{m}, v{m}, v{S[X]+i}, v{S[X]+i+1}")
        a(f"v_max_f32 v{m}, v{m}, v{S[X]+15}")
        a(f"v_mov_b32 v{m+1}, v{m}")
        a("s_nop 1")
        a(f"v_permlane32_swap_b32 v{m+1}, v{m}")
        a("s_nop 1")
        a(f"v_max_f32 v{m}, v{m}, v{m+1}")
        for i in range(16):
            a(f"v_sub_f32 v{NEG[X]+i}, {f2h(-float(BIAS))}, v{m}")
    poll(a, "s4", 64, T0)
    stamp(a, 4)
    a("s_setprio 1")
    a("s_and_b32 s66, s41, 7")
    a("s_lshl_b32 s66, s66, 13")
    def dma(t, bufoff):
        a(f"s_add_u32 m0, {bufoff}, {t*TP - (t%4)*1024}")
        return f"buffer_load_dwordx4 v{VD}, s[52:55], {'s66' if t < 4 else 's68'} offen offset:{(t%4)*1024} sc1 lds"
    def next_group():
        a("s_add_u32 s66, s66, 8192")
        a("s_and_b32 s66, s66, 65535")
    a(f"s_add_u32 s72, s71, {GB}")
    a("s_add_u32 s68, s66, 4096")
    for t in range(8):
        i = dma(t, "s71")
        a("s_nop 0")
        a(i)
    next_group()
    a("s_add_u32 s68, s66, 4096")
    i = dma(0, "s72")
    a("s_nop 0")
    a(i)
    a("s_waitcnt vmcnt(1) lgkmcnt(0)")
    a("s_barrier")
    def reads(slot, t):
        a(f"ds_read_b128 v[{Kf(slot)}:{Kf(slot)+3}], v{AK} offset:{t*TP}")
        a(f"ds_read_b128 v[{V0(slot)}:{V0(slot)+3}], v{AV0} offset:{t*TP}")
        a(f"ds_read_b128 v[{V1(slot)}:{V1(slot)+3}], v{AV1} offset:{t*TP}")
    reads(0, 0)
    a("s_waitcnt lgkmcnt(0)")
    mf(S["A"], Kf(0), Q["A"], NEG["A"])
    a("s_mov_b32 s67, 8")
    a(f"s_mov_b32 s73, {GB}")
    a("s_and_b32 s74, s41, 7")
    a("s_add_u32 s74, s74, 2")
    a.nop(8)
    if E("ATST"): stamp(a, 4)
    a.raw(".p2align 6")
    a.label(f"{name}_loop")
    def half(X, tt):
        Y = "B" if X == "A" else "A"
        x, p = S[X], P[X]
        e = lambda i: a(f"v_exp_f32 v{x+i}, v{x+i}")
        c = lambda i: a(f"v_cvt_pk_bf16_f32 v{p+i}, v{x+2*i}, v{x+2*i+1}")
        e(0); e(1)
        ty = (tt - 1) % NR if X == "A" else tt % NR
        mf(O[Y], V1(ty), P[Y] + 4, O[Y])
        if X == "A":
            if tt == 7:
                a("s_waitcnt vmcnt(0)")
                a("s_barrier")
                a(f"v_add_u32 v{AK}, s73, v{AK}")
                a(f"v_add_u32 v{AV0}, s73, v{AV0}")
                a(f"v_add_u32 v{AV1}, s73, v{AV1}")
                a("s_sub_u32 s73, 0, s73")
                a("s_and_b32 s66, s74, 7")
                a("s_lshl_b32 s66, s66, 13")
                a("s_cmp_gt_u32 s67, 2")
                a("s_cselect_b32 s66, s66, s75")
                a("s_add_u32 s68, s66, 4096")
                a("s_add_u32 s74, s74, 1")
                reads((tt + 1) % NR, 0)
            else:
                reads((tt + 1) % NR, tt + 1)
        d = None
        k = {("B", 7): 0, ("A", 0): 1, ("B", 0): 2, ("A", 1): 3, ("B", 1): 4, ("A", 2): 5, ("B", 2): 6, ("A", 3): 7}.get((X, tt))
        e(2); e(3); c(0)
        if k is not None: d = dma(k, "s71" if k == 0 else "s72")
        e(4)
        if d: a(d)
        e(5); c(1)
        if X == "B":
            a("s_waitcnt lgkmcnt(0)")
        tk = tt % NR if X == "A" else (tt + 1) % NR
        mf(S[Y], Kf(tk), Q[Y], NEG[Y])
        e(6); e(7); c(2); e(8); c(3); e(9); e(10)
        mf(O[X], V0(tt % NR), p, O[X])
        c(4); e(11); e(12); c(5); e(13); e(14); e(15); c(6); c(7)
        if (X == "A" and tt == 5) or (X == "B" and tt == 5):
            a(f"v_cmp_nge_f32 vcc, s64, v{O[Y]+8}")
            a(f"s_cbranch_vccnz {name}_rare{Y}")
            a.label(f"{name}_ret{Y}")
    a("s_brev_b32 s75, 1")
    a0 = a
    class Filt:
        def __call__(self, s):
            if E("ATNOBAR") and "s_barrier" in s: return
            if E("ATNODMA") and " lds" in s: return
            if E("ATNORD") and "ds_read" in s: return
            if E("ATNOCHK") and ("v_cmp_nge" in s or "vccnz" in s): return
            a0(s)
        def __getattr__(self, n): return getattr(a0, n)
    a = Filt()
    for tt in range(8):
        half("A", tt)
        half("B", tt)
    a = a0
    a("s_mov_b32 s3, s71")
    a("s_mov_b32 s71, s72")
    a("s_mov_b32 s72, s3")
    a("s_sub_u32 s67, s67, 1")
    a("s_cmp_lg_u32 s67, 0")
    a(f"s_cbranch_scc1 {name}_loop")
    a("s_nop 1")
    mf(O["B"], V1(1), P["B"] + 4, O["B"])
    a("s_cmp_lg_u32 s65, 0")
    a(f"s_cbranch_scc1 {name}_safe")
    a.label(f"{name}_fin")
    stamp(a, 5)
    a.nop(14)
    a("s_mul_i32 s4, s61, 288")
    a("s_add_u32 s4, s4, s60")
    a("s_lshl_b32 s4, s4, 10")
    a(f"s_add_u32 s4, s4, {WS_AF}")
    a(f"s_add_u32 s5, s4, {144*1024}")
    a("v_lshlrev_b32 v12, 4, v1")
    for X in "AB":
        l = O[X] + 8
        a(f"v_mov_b32 v{T0}, v{l}")
        a("s_nop 1")
        a(f"v_permlane32_swap_b32 v{T0}, v{l}")
        a("s_nop 1")
        a(f"v_mul_f32 v{T0+2+(X=='B')}, 0, v{T0}")
        a(f"v_rcp_f32 v{T0}, v{T0}")
        a("s_nop 0")
        for i in range(8):
            a(f"v_mul_f32 v{O[X]+i}, v{O[X]+i}, v{T0}")
        for i in range(4):
            a(f"v_cvt_pk_bf16_f32 v{P[X]+i}, v{O[X]+2*i}, v{O[X]+2*i+1}")
        a(f"buffer_store_dwordx4 v[{P[X]}:{P[X]+3}], v12, s[36:39], {'s4' if X=='A' else 's5'} offen sc1")
    for X in "AB":
        for i in range(8):
            a(f"v_fma_f32 v{T0+2+(X=='B')}, v{O[X]+i}, 0, v{T0+2+(X=='B')}")
    a(f"v_cmp_u_f32 vcc, v{T0+2}, v{T0+3}")
    a("s_cmp_eq_u32 s65, 0")
    a("s_cselect_b64 s[4:5], vcc, 0")
    a("s_cmp_lg_u64 s[4:5], 0")
    a(f"s_cbranch_scc1 {name}_safe")
    a("s_lshl_b32 s4, s61, 7")
    a("s_lshl_b32 s5, s60, 2")
    a("s_add_u32 s4, s4, s5")
    a(f"s_add_u32 s4, s4, {FO}")
    publish(a, "s4", T0)
    dump_stamps(a, 6)
    a("s_endpgm")
    for Y in "AB":
        a.label(f"{name}_rare{Y}")
        a.nop(16)
        l = O[Y] + 8
        a(f"v_mov_b32 v{T0+2}, 0x207")
        a(f"v_cmp_class_f32 vcc, v{l}, v{T0+2}")
        a("s_cmp_lg_u64 vcc, 0")
        a("s_cselect_b32 s65, 1, s65")
        a(f"s_cbranch_scc1 {name}_ret{Y}")
        a(f"v_frexp_exp_i32_f32 v{T0}, v{l}")
        a(f"v_add_u32 v{T0}, {BIAS}, v{T0}")
        a(f"v_max_i32 v{T0}, 0, v{T0}")
        a(f"v_mov_b32 v{T0+1}, v{T0}")
        a("s_nop 1")
        a(f"v_permlane32_swap_b32 v{T0}, v{T0+1}")
        a("s_nop 1")
        a(f"v_cvt_f32_i32 v{T0+1}, v{T0}")
        a(f"v_sub_u32 v{T0}, 0, v{T0}")
        for i in range(9): a(f"v_ldexp_f32 v{O[Y]+i}, v{O[Y]+i}, v{T0}")
        for i in range(16): a(f"v_sub_f32 v{NEG[Y]+i}, v{NEG[Y]+i}, v{T0+1}")
        for i in range(16): a(f"v_sub_f32 v{S[Y]+i}, v{S[Y]+i}, v{T0+1}")
        a("s_nop 1")
        a(f"s_branch {name}_ret{Y}")
    a.label(f"{name}_safe")
    a("s_waitcnt vmcnt(0) lgkmcnt(0)")
    a.nop(16)
    a("s_mov_b32 s65, 2")
    a("v_and_b32 v14, 31, v1")
    a("v_lshrrev_b32 v15, 5, v1")
    a("v_lshlrev_b32 v3, 8, v15")
    a("v_lshl_add_u32 v3, v14, 4, v3")
    a("v_mov_b32 v15, 0x3f803f80")
    a("v_cmp_eq_u32 vcc, 16, v14")
    a("s_mov_b32 s62, 0x0000ffff")
    a("s_mov_b32 s63, 0x0000ffff")
    a("v_cndmask_b32 v15, 0, v15, vcc")
    for i in range(8): a(f"v_mov_b32 v{V0(0)+i}, v15")
    def loads(slot, soff, imm):
        a(f"buffer_load_dwordx4 v[{Kf(slot)}:{Kf(slot)+3}], v{VD}, s[44:47], {soff} offen offset:{imm} sc1")
        a("s_mov_b64 exec, s[62:63]")
        a(f"buffer_load_dwordx4 v[{V0(slot)}:{V0(slot)+3}], v3, s[48:51], {soff} offen offset:{imm} sc1")
        a(f"buffer_load_dwordx4 v[{V1(slot)}:{V1(slot)+3}], v3, s[48:51], {soff} offen offset:{imm+512} sc1")
        a("s_mov_b64 exec, -1")
    M = {"A": NEG["A"], "B": NEG["B"]}
    for X in "AB":
        for i in range(16): a(f"v_mov_b32 v{O[X]+i}, 0")
        a(f"v_mov_b32 v{M[X]}, 0xff800000")
    a("s_mov_b32 s66, 0")
    a("s_mov_b32 s67, 64")
    a.label(f"{name}_sloop")
    loads(0, "s66", 0)
    a("s_waitcnt vmcnt(0)")
    for X in "AB":
        mf(S[X], Kf(0), Q[X], None)
    a.nop(16)
    for X in "AB":
        x, p, m = S[X], P[X], M[X]
        a(f"v_max3_f32 v{T0}, v{x}, v{x+1}, v{x+2}")
        for i in range(3, 15, 2):
            a(f"v_max3_f32 v{T0}, v{T0}, v{x+i}, v{x+i+1}")
        a(f"v_max_f32 v{T0}, v{T0}, v{x+15}")
        a(f"v_mov_b32 v{T0+1}, v{T0}")
        a("s_nop 1")
        a(f"v_permlane32_swap_b32 v{T0+1}, v{T0}")
        a("s_nop 1")
        a(f"v_max3_f32 v{T0}, v{T0}, v{T0+1}, v{m}")
        a(f"v_sub_f32 v{T0+1}, v{m}, v{T0}")
        a(f"v_exp_f32 v{T0+1}, v{T0+1}")
        a(f"v_mov_b32 v{m}, v{T0}")
        for i in range(9): a(f"v_mul_f32 v{O[X]+i}, v{O[X]+i}, v{T0+1}")
        for i in range(16): a(f"v_sub_f32 v{x+i}, v{x+i}, v{T0}")
        for i in range(16): a(f"v_exp_f32 v{x+i}, v{x+i}")
        a("s_nop 0")
        for i in range(8): a(f"v_cvt_pk_bf16_f32 v{p+i}, v{x+2*i}, v{x+2*i+1}")
        a("s_nop 1")
        mf(O[X], V0(0), p, O[X])
        mf(O[X], V1(0), p + 4, O[X])
    a.nop(16)
    a("s_add_u32 s66, s66, 1024")
    a("s_sub_u32 s67, s67, 1")
    a("s_cmp_lg_u32 s67, 0")
    a(f"s_cbranch_scc1 {name}_sloop")
    a(f"s_branch {name}_fin")

def gemm2(a0, middle):
    class Filt:
        def __call__(self, s):
            if E("G2NOMFMA") and "v_mfma" in s: return
            if E("G2NOLD") and ("buffer_load_dwordx4" in s): return
            if E("G2NORD") and ("ds_read_b64_tr" in s): return
            a0(s)
        def __getattr__(self, n): return getattr(a0, n)
    a = Filt()
    D, NH, NK = 8, 28, 36
    ACC, AR, WF = 64, 128, 32
    a("s_and_b32 s3, s2, 7")
    a("s_bfe_u32 s4, s2, 0x50003")
    a("s_lshl_b32 s5, s3, 2")
    a("s_and_b32 s6, s4, 3")
    a("s_add_u32 s12, s5, s6")
    a("s_lshr_b32 s13, s4, 2")
    srd(a, 44, 20, 512 * 1024)
    srd(a, 48, 28, 1792 * 1024)
    a(f"s_mul_i32 s53, s40, {NH*16384}")
    a("s_lshl_b32 s52, s40, 17")
    a("s_mul_i32 s54, s12, 288")
    a(f"s_mul_i32 s5, s40, {NH}")
    a("s_add_u32 s5, s5, s54")
    a("s_add_u32 s5, s5, 32")
    a("s_lshl_b32 s5, s5, 10")
    a(f"s_add_u32 s60, s5, {WS_AF}")
    a(f"s_add_u32 s61, s60, {144*1024}")
    a("s_lshl_b32 s5, s40, 3")
    a("s_add_u32 s5, s5, s54")
    a("s_lshl_b32 s5, s5, 10")
    a(f"s_add_u32 s62, s5, {WS_AF}")
    a(f"s_add_u32 s63, s62, {144*1024}")
    a(f"s_mul_i32 s56, s40, {D*2048}")
    a("s_and_b32 s5, s12, 3")
    a("s_lshl_b32 s5, s5, 1")
    a("s_add_u32 s5, s5, s13")
    a("s_cmp_ge_u32 s5, 7")
    a("s_cselect_b32 s6, 7, 0")
    a("s_sub_u32 s5, s5, s6")
    if E("NOHROT"): a("s_mov_b32 s5, 0")
    a("s_lshl_b32 s6, s5, 16")
    a("s_add_u32 s53, s53, s6")
    a("s_lshl_b32 s6, s5, 12")
    a("s_add_u32 s60, s60, s6")
    a("s_add_u32 s61, s61, s6")
    a("s_sub_u32 s64, 7, s5")
    a("s_mov_b32 s65, s64")
    a("v_lshlrev_b32 v2, 4, v1")
    a("v_lshrrev_b32 v3, 5, v1")
    a("v_lshlrev_b32 v4, 2, v3")
    a("v_bfe_u32 v5, v1, 2, 2")
    a("v_add_u32 v4, v4, v5")
    a("v_lshlrev_b32 v4, 10, v4")
    a("v_bfe_u32 v6, v1, 4, 1")
    a("v_lshl_add_u32 v4, v6, 6, v4")
    a("v_and_b32 v7, 3, v1")
    a("v_lshl_add_u32 v4, v7, 4, v4")
    a("s_lshl_b32 s57, s13, 7")
    a("v_add_u32 v4, s57, v4")
    a("v_add_u32 v9, 8192, v4")
    a("v_lshlrev_b32 v8, 9, v3")
    a("v_lshl_add_u32 v8, v5, 6, v8")
    a("v_lshl_add_u32 v8, v6, 5, v8")
    a("v_lshl_add_u32 v8, v7, 3, v8")
    a("v_add_u32 v8, s56, v8")
    q = VMQ(a)
    def loadW(i):
        s = i % D
        sr_, so = ("s[48:51]", "s53") if i < NH else ("s[44:47]", "s52")
        a(f"s_add_u32 m0, s56, {s*2048}")
        a("s_nop 0")
        a(f"buffer_load_dwordx4 v4, {sr_}, {so} offen lds"); q.issue(("W", i))
        a(f"s_add_u32 m0, s56, {s*2048+1024}")
        a("s_nop 0")
        a(f"buffer_load_dwordx4 v9, {sr_}, {so} offen lds"); q.issue(("W", i))
        a(f"s_add_u32 {so}, {so}, 16384")
        if i < NH and i % 4 == 3:
            a("s_sub_u32 s64, s64, 1")
            a("s_cmp_eq_u32 s64, 0")
            a(f"s_cselect_b32 s6, {NH*16384}, 0")
            a("s_sub_u32 s53, s53, s6")
    def loadA(i):
        r = AR + (i % D) * 8
        j = i if i < NH else i - NH
        s0, s1 = ("s60", "s61") if i < NH else ("s62", "s63")
        a(f"buffer_load_dwordx4 v[{r}:{r+3}], v2, s[36:39], {s0} offen offset:{(j%4)*1024} sc1"); q.issue(("A", i))
        a(f"buffer_load_dwordx4 v[{r+4}:{r+7}], v2, s[36:39], {s1} offen offset:{(j%4)*1024} sc1"); q.issue(("A", i))
        if j % 4 == 3:
            a(f"s_add_u32 {s0}, {s0}, 4096")
            a(f"s_add_u32 {s1}, {s1}, 4096")
            if i < NH:
                a("s_sub_u32 s65, s65, 1")
                a("s_cmp_eq_u32 s65, 0")
                a(f"s_cselect_b32 s6, {NH*1024}, 0")
                a("s_sub_u32 s60, s60, s6")
                a("s_sub_u32 s61, s61, s6")
    for i in range(D): loadW(i)
    middle()
    for i in range(64): a(f"v_mov_b32 v{ACC+i}, 0")
    a("s_lshl_b32 s66, s12, 7")
    a(f"s_add_u32 s4, s66, {FH}")
    a(f"s_setprio {E('PB2', '0')}")
    poll(a, "s4", 32, 12); q.drained()
    stamp(a, 4)
    for i in range(D): loadA(i)
    def rd(i):
        s = i % D
        for u in range(2):
            b = WF + (i % 2) * 8 + u * 4
            a(f"ds_read_b64_tr_b16 v[{b}:{b+1}], v8 offset:{s*2048+u*256}")
            a(f"ds_read_b64_tr_b16 v[{b+2}:{b+3}], v8 offset:{s*2048+1024+u*256}")
    rd(0)
    for i in range(NK):
        if i == NH:
            a(f"s_add_u32 s4, s66, {FO}")
            stamp(a, 5)
            poll(a, "s4", 32, 12); q.drained()
            stamp(a, 6)
            for j in range(NH, NK): loadA(j)
        tags = [("A", i)] + ([("W", i + 1)] if i + 1 < NK else [])
        tags = [t for t in tags if t in q.q]
        if tags: q.wait(tags)
        if i + 1 < NK:
            rd(i + 1)
            a("s_waitcnt lgkmcnt(4)")
        else:
            a("s_waitcnt lgkmcnt(0)")
        r = AR + (i % D) * 8
        for t in range(2):
            for u in range(2):
                w = WF + (i % 2) * 8 + u * 4
                d = ACC + (t * 2 + u) * 16
                mfma(a, d, w, r + 4 * t, d)
        if i + D < NK:
            loadW(i + D)
            if i + D < NH: loadA(i + D)
    PITCH = 272
    a("s_setprio 2")
    a("s_barrier")
    a("v_and_b32 v9, 31, v1")
    a(f"v_mul_u32_u24 v9, {PITCH}, v9")
    a("v_lshl_add_u32 v9, v3, 4, v9")
    a(f"s_mul_i32 s56, s40, {64*PITCH}")
    a("v_add_u32 v9, s56, v9")
    a("v_lshrrev_b32 v10, 3, v0")
    a("v_and_b32 v11, 7, v0")
    a("s_lshl_b32 s57, s12, 6")
    a("v_add_u32 v12, s57, v10")
    a("v_lshlrev_b32 v12, 10, v12")
    a("v_lshl_add_u32 v12, v11, 4, v12")
    a("s_lshl_b32 s57, s13, 7")
    a("v_add_u32 v12, s57, v12")
    srd(a, 44, 16, 2048 * 1024)
    srd(a, 48, 30, 2048 * 1024)
    a("s_mov_b32 s58, 32768")
    a("buffer_load_dwordx4 v[16:19], v12, s[44:47], 0 offen")
    a("buffer_load_dwordx4 v[20:23], v12, s[44:47], s58 offen")
    for t in range(2):
        for u in range(2):
            d = ACC + (t * 2 + u) * 16
            for j in range(4):
                a(f"ds_write_b128 v9, v[{d+4*j}:{d+4*j+3}] offset:{t*32*PITCH + u*128 + j*32}")
    a(f"v_mul_u32_u24 v13, {PITCH}, v10")
    a("v_lshl_add_u32 v13, v11, 5, v13")
    a("s_waitcnt lgkmcnt(0)")
    a("s_barrier")
    for it in range(2):
        for w in range(4):
            b = AR + (it * 4 + w) * 8
            off = w * 64 * PITCH + it * 32 * PITCH
            a(f"ds_read_b128 v[{b}:{b+3}], v13 offset:{off}")
            a(f"ds_read_b128 v[{b+4}:{b+7}], v13 offset:{off+16}")
    a("s_waitcnt vmcnt(0)")
    for it in range(2):
        xs = 16 + 4 * it
        for i in range(4):
            a(f"v_lshlrev_b32 v{24+it*8+2*i}, 16, v{xs+i}")
            a(f"v_and_b32 v{25+it*8+2*i}, 0xffff0000, v{xs+i}")
    for it in range(2):
        a(f"s_waitcnt lgkmcnt({8*(1-it)})")
        for w in range(4):
            b = AR + (it * 4 + w) * 8
            for i in range(8):
                a(f"v_add_f32 v{24+it*8+i}, v{24+it*8+i}, v{b+i}")
        for i in range(4):
            a(f"v_cvt_pk_bf16_f32 v{40+it*4+i}, v{24+it*8+2*i}, v{25+it*8+2*i}")
        a(f"buffer_store_dwordx4 v[{40+it*4}:{43+it*4}], v12, s[48:51], {'0' if it==0 else 's58'} offen{E('OUTF', '')}")
    dump_stamps(a, 7)
    a("s_endpgm")

def gen(a):
    a.raw(f".globl {NAME}")
    a.raw(".p2align 8")
    a.raw(f".type {NAME},@function")
    a.label(NAME)
    a("s_cmp_ge_u32 s2, 512")
    a(f"s_cbranch_scc1 {NAME}_done")
    a("s_load_dwordx16 s[16:31], s[0:1], 0")
    a("s_load_dwordx4 s[32:35], s[0:1], 64")
    a("s_memrealtime s[10:11]")
    a("v_and_b32 v1, 63, v0")
    a("v_lshrrev_b32 v2, 6, v0")
    a("s_and_b32 s3, s2, 7")
    a("v_readfirstlane_b32 s40, v2")
    a("s_bfe_u32 s4, s2, 0x50003")
    a("s_and_b32 s5, s3, 1")
    a("s_lshl_b32 s5, s5, 3")
    a("s_and_b32 s6, s4, 7")
    a("s_add_u32 s41, s5, s6")
    a("s_lshr_b32 s5, s3, 1")
    a("s_lshl_b32 s5, s5, 2")
    a("s_lshr_b32 s6, s4, 3")
    a("s_add_u32 s42, s5, s6")
    a("s_waitcnt lgkmcnt(0)")
    stamp(a, 0)
    srd(a, 36, 34, WS_NREC)
    srd(a, 56, 32, 256)
    a("s_cmp_ge_u32 s2, 256")
    a(f"s_cbranch_scc1 {NAME}_B")
    a("s_setprio 2")
    a("s_or_b32 s3, s2, s40")
    a("s_cmp_lg_u32 s3, 0")
    a(f"s_cbranch_scc1 {NAME}_A")
    a("s_or_b32 s10, s10, 1")
    a("v_mov_b32 v2, s10")
    a("v_mov_b32 v3, 0")
    a("s_mov_b64 exec, 1")
    a("buffer_store_dword v2, v3, s[56:59], 0 offen sc1")
    a("s_mov_b64 exec, -1")
    a("s_waitcnt vmcnt(0)")
    a.label(f"{NAME}_A")
    if E("ONLY_B"): a("s_endpgm")
    QL = gemm1A(a)
    if not E("ITER"): stamp(a, 3)
    if E("ONLY_G1"):
        dump_stamps(a, 7 if E("ITER") else 4)
        a("s_endpgm")
    attention(a, QL)
    a.label(f"{NAME}_B")
    if E("ONLY_A"): a("s_endpgm")
    a("s_setprio 3")
    epi = gemm1B(a)
    gemm2(a, epi)
    a.label(f"{NAME}_done")
    a("s_endpgm")

if __name__ == "__main__":
    out = sys.argv[1] if len(sys.argv) > 1 else "v3.s"
    a = Asm()
    gen(a)
    for p in check_hazards(a.lines, NAME): print("HAZARD", p, file=sys.stderr)
    txt = HEADER + ("; @launch grid=(512,1,1) block=(256,1,1) lds=81920\n" if E("FINAL") else f"; @launch kernel={NAME} grid=(512,1,1) block=(256,1,1) lds=81920\n") + '.amdgcn_target "amdgcn-amd-amdhsa--gfx950"\n.text\n' + a.text()
    txt += f""".section .rodata,"a"
.p2align 6
.amdhsa_kernel {NAME}
  .amdhsa_next_free_vgpr 256
  .amdhsa_next_free_sgpr 102
  .amdhsa_accum_offset 256
  .amdhsa_group_segment_fixed_size 0
  .amdhsa_kernarg_size 80
  .amdhsa_user_sgpr_count 2
  .amdhsa_user_sgpr_kernarg_segment_ptr 1
  .amdhsa_system_sgpr_workgroup_id_x 1
.end_amdhsa_kernel
"""
    open(out, "w").write(txt)
```

```python
import sys, math, struct, os
from asmlib import *

def f2h(x):
    return "0x%08x" % struct.unpack("<I", struct.pack("<f", x))[0]
E = os.environ.get
WS_KH = 4 << 20
WS_VT = 6 << 20
WS_AF = 8 << 20
WS_FL = 20 << 20
F1, FH, FO, FX = WS_FL, WS_FL + 4096, WS_FL + 8192, WS_FL + 12288
WS_ST = 21 << 20
WS_NREC = 32 << 20
LOG2E = math.log2(math.e)
QSCALE = 0.25 * LOG2E
TIMING = bool(E("TIMING"))
SPIN_MAX = 200000
NAME = "parallel_sum__mha_block__swiglu_ffn__prompt_kernel" if E("FINAL") else "fused_kernel"

HEADER = """; Kernarg layout for this problem (80 bytes, ptrs only, base s[0:1]):
"""

def srd(a, d, base, nrec):
    a(f"s_mov_b32 s{d}, s{base}")
    a(f"s_mov_b32 s{d+1}, s{base+1}")
    a(f"s_mov_b32 s{d+2}, {nrec}")
    a(f"s_mov_b32 s{d+3}, 0x00020000")

def stamp(a, idx):
    if TIMING:
        a(f"{'s_memtime' if E('CYC') else 's_memrealtime'} s[{84+2*idx}:{85+2*idx}]")
        a("s_waitcnt lgkmcnt(0)")
def dump_stamps(a, last):
    if E("DBGT"):
        a("s_waitcnt vmcnt(0)")
        stamp(a, last)
        a("s_mov_b32 s76, s32")
        a("s_mov_b32 s77, s33")
        a("s_mov_b32 s78, 256")
        a("s_mov_b32 s79, 0x00020000")
        a("s_mov_b64 exec, 1")
        a("v_mov_b32 v250, 0")
        base = 1 if last == 6 else 8
        for i in range(1, last + 1):
            a(f"s_sub_u32 s80, s{84+2*i}, s83")
            a("v_mov_b32 v252, s80")
            a(f"buffer_atomic_umax v252, v250, s[76:79], 0 offen offset:{4*(base+i-1)}")
            a("s_nop 1")
        return
    if TIMING:
        a("s_waitcnt vmcnt(0)")
        stamp(a, last)
        a("s_add_u32 s76, s34, 0x8000000")
        a("s_addc_u32 s77, s35, 0")
        a("s_mov_b32 s78, 0x100000")
        a("s_mov_b32 s79, 0x00020000")
        a("s_lshl_b32 s80, s2, 7")
        a("s_lshl_b32 s81, s40, 5")
        a("s_add_u32 s80, s80, s81")
        a("v_mov_b32 v250, s80")
        for i in range(8):
            a(f"v_mov_b32 v252, s{84+2*i}")
            a(f"buffer_store_dword v252, v250, s[76:79], 0 offen offset:{4*i}")
            a("s_nop 1")

def round_bf16(a, v, t):
    a(f"v_cvt_pk_bf16_f32 v{t}, v{v}, v{v}")
    a(f"v_lshlrev_b32 v{v}, 16, v{t}")

def mfma(a, d, x, y, c):
    a(f"v_mfma_f32_32x32x16_bf16 v[{d}:{d+15}], v[{x}:{x+3}], v[{y}:{y+3}], " + (f"v[{c}:{c+15}]" if c is not None else "0"))

class VMQ:
    def __init__(self, a): self.a, self.q = a, []
    def issue(self, tag): self.q.append(tag)
    def wait(self, tags):
        idx = max(i for i, t in enumerate(self.q) if t in tags)
        self.a(f"s_waitcnt vmcnt({len(self.q)-1-idx})")
    def drained(self): self.q = []

UID = [0]
def uid():
    UID[0] += 1
    return UID[0]

def get_nonce(a, vt):
    n = uid()
    a(f"v_mov_b32 v{vt+1}, 0")
    a(f"s_mov_b32 s3, {SPIN_MAX}")
    a.label(f"nonce{n}")
    a(f"buffer_load_dword v{vt}, v{vt+1}, s[56:59], 0 offen sc1")
    a("s_waitcnt vmcnt(0)")
    a(f"v_readfirstlane_b32 s83, v{vt}")
    a("s_sub_u32 s3, s3, 1")
    a("s_cmp_eq_u32 s3, 0")
    a(f"s_cbranch_scc1 nonce{n}_ok")
    a("s_cmp_eq_u32 s83, 0")
    a(f"s_cbranch_scc1 nonce{n}")
    a.label(f"nonce{n}_ok")

def publish(a, soff, vt):
    a(f"v_mov_b32 v{vt}, s83")
    a(f"v_mov_b32 v{vt+1}, 0")
    a("s_waitcnt vmcnt(0)")
    a("s_mov_b64 exec, 1")
    a(f"buffer_store_dword v{vt}, v{vt+1}, s[36:39], {soff} offen sc1")
    a("s_mov_b64 exec, -1")

def poll(a, soff, nflags, vt):
    n = uid()
    a("s_cmp_lg_u32 s40, 0")
    a(f"s_cbranch_scc1 poll{n}_ok")
    a(f"v_and_b32 v{vt+1}, {nflags-1}, v1")
    a(f"v_lshlrev_b32 v{vt+1}, 2, v{vt+1}")
    a(f"s_mov_b32 s3, {SPIN_MAX}")
    a.label(f"poll{n}")
    a(f"buffer_load_dword v{vt}, v{vt+1}, s[36:39], {soff} offen sc1")
    a("s_waitcnt vmcnt(0)")
    a(f"v_cmp_ne_u32 vcc, s83, v{vt}")
    a(f"s_cbranch_vccz poll{n}_ok")
    a(f"s_sleep {E('SLEEP', '4')}")
    a("s_sub_u32 s3, s3, 1")
    a("s_cmp_lg_u32 s3, 0")
    a(f"s_cbranch_scc1 poll{n}")
    a.label(f"poll{n}_ok")
    a("s_waitcnt vmcnt(0)")
    a("s_barrier")

def ln_load(a):
    srd(a, 44, 16, 2048 * 1024)
    a("s_lshl_b32 s3, s41, 7")
    a("s_lshl_b32 s4, s42, 3")
    a("s_add_u32 s3, s3, s4")
    a("s_lshl_b32 s4, s40, 1")
    a("s_add_u32 s3, s3, s4")
    a("s_lshl_b32 s3, s3, 10")
    a("v_lshlrev_b32 v2, 4, v1")
    a("buffer_load_dwordx4 v[208:211], v2, s[44:47], s3 offen")
    a("buffer_load_dwordx4 v[212:215], v2, s[44:47], s3 offen offset:1024")
    a("v_mov_b32 v247, 0")
    a("buffer_load_dword v246, v247, s[56:59], 0 offen sc1")

def ln_addr(a):
    a("v_lshlrev_b32 v240, 7, v1")
    a("s_lshl_b32 s3, s40, 5")
    a("v_add_u32 v240, s3, v240")
    a("v_lshlrev_b32 v241, 4, v1")
    a("s_lshl_b32 s3, s40, 12")
    a("v_add_u32 v241, s3, v241")
    a("v_lshrrev_b32 v242, 3, v1")
    a("v_lshrrev_b32 v243, 1, v242")
    a("v_lshlrev_b32 v243, 10, v243")
    a("v_and_b32 v242, 1, v242")
    a("v_lshl_add_u32 v243, v242, 9, v243")
    a("v_and_b32 v242, 7, v1")
    a("v_lshl_add_u32 v243, v242, 4, v243")
    a("s_lshl_b32 s3, s41, 2")
    a("s_lshr_b32 s4, s42, 2")
    a("s_add_u32 s5, s3, s4")
    a("s_lshl_b32 s60, s5, 15")
    a("s_and_b32 s4, s42, 3")
    a("s_lshl_b32 s6, s4, 7")
    a("s_add_u32 s60, s60, s6")
    a("s_lshl_b32 s6, s40, 14")
    a("s_add_u32 s60, s60, s6")
    a("s_lshl_b32 s5, s5, 6")
    a("s_lshl_b32 s4, s4, 4")
    a("s_add_u32 s5, s5, s4")
    a("s_lshl_b32 s4, s40, 3")
    a("s_add_u32 s5, s5, s4")
    a(f"s_add_u32 s66, s5, {FX}")

def ln_compute(a, LS):
    X = (216, 224)
    S = 232
    a("v_readfirstlane_b32 s83, v246")
    if E("LNST"): stamp(a, 2)
    for r in range(2):
        for i in range(4):
            a(f"v_lshlrev_b32 v{X[r]+2*i}, 16, v{208+4*r+i}")
            a(f"v_and_b32 v{X[r]+2*i+1}, 0xffff0000, v{208+4*r+i}")
    for r in range(2):
        a(f"v_add_f32 v{S+r}, v{X[r]}, v{X[r]+1}")
        a(f"v_mul_f32 v{S+2+r}, v{X[r]}, v{X[r]}")
    for i in range(1, 8):
        for r in range(2):
            if i >= 2: a(f"v_add_f32 v{S+r}, v{S+r}, v{X[r]+i}")
            a(f"v_fmac_f32 v{S+2+r}, v{X[r]+i}, v{X[r]+i}")
    for off in (0x041F, 0x081F, 0x101F, 0x201F, 0x401F):
        for i in range(4): a(f"ds_swizzle_b32 v{S+4+i}, v{S+i} offset:{off}")
        a("s_waitcnt lgkmcnt(0)")
        for i in range(4): a(f"v_add_f32 v{S+i}, v{S+i}, v{S+4+i}")
    for i in range(4): a(f"v_mov_b32 v{S+4+i}, v{S+i}")
    a("s_nop 1")
    for i in range(4): a(f"v_permlane32_swap_b32 v{S+4+i}, v{S+i}")
    a("s_nop 1")
    for i in range(4): a(f"v_add_f32 v{S+i}, v{S+i}, v{S+4+i}")
    for i in range(4): a(f"v_mul_f32 v{S+i}, {f2h(1.0/512)}, v{S+i}")
    for r in range(2): a(f"v_fma_f32 v{S+2+r}, -v{S+r}, v{S+r}, v{S+2+r}")
    for r in range(2): a(f"v_max_f32 v{S+2+r}, 0, v{S+2+r}")
    def rnd(regs):
        for k, v in enumerate(regs): a(f"v_cvt_pk_bf16_f32 v{S+4+k}, v{v}, v{v}")
        for k, v in enumerate(regs): a(f"v_lshlrev_b32 v{v}, 16, v{S+4+k}")
    rnd((S, S + 1, S + 2, S + 3))
    for r in range(2): a(f"v_add_f32 v{S+2+r}, {f2h(1e-5)}, v{S+2+r}")
    rnd((S + 2, S + 3))
    for r in range(2): a(f"v_sqrt_f32 v{S+2+r}, v{S+2+r}")
    a("s_nop 0")
    rnd((S + 2, S + 3))
    for r in range(2): a(f"v_rcp_f32 v{S+2+r}, v{S+2+r}")
    for r in range(2):
        for i in range(8): a(f"v_sub_f32 v{X[r]+i}, v{X[r]+i}, v{S+r}")
    for r in range(2):
        for i in range(4): a(f"v_cvt_pk_bf16_f32 v{208+4*r+i}, v{X[r]+2*i}, v{X[r]+2*i+1}")
    for r in range(2):
        for i in range(4):
            a(f"v_lshlrev_b32 v{X[r]+2*i}, 16, v{208+4*r+i}")
            a(f"v_and_b32 v{X[r]+2*i+1}, 0xffff0000, v{208+4*r+i}")
    for r in range(2):
        for i in range(8): a(f"v_mul_f32 v{X[r]+i}, v{X[r]+i}, v{S+2+r}")
    for r in range(2):
        for i in range(4): a(f"v_cvt_pk_bf16_f32 v{208+4*r+i}, v{X[r]+2*i}, v{X[r]+2*i+1}")
    a(f"ds_write_b128 v240, v[208:211] offset:{LS}")
    a(f"ds_write_b128 v240, v[212:215] offset:{LS+16}")
    a("s_cmp_lg_u32 s83, 0")
    a("s_cbranch_scc1 ln_have_nonce")
    get_nonce(a, 244)
    a.label("ln_have_nonce")
    a("s_waitcnt lgkmcnt(0)")
    a("s_barrier")
    a("s_cmp_ge_u32 s40, 2")
    a("s_cbranch_scc1 ln_done")
    for q in range(4): a(f"ds_read_b128 v[{208+4*q}:{211+4*q}], v241 offset:{LS+1024*q}")
    a("v_mov_b32 v244, s83")
    a("v_mov_b32 v245, s83")
    for q in range(4):
        a(f"s_waitcnt lgkmcnt({3-q})")
        a(f"buffer_store_dwordx4 v[{208+4*q}:{211+4*q}], v243, s[36:39], s60 offen sc1")
        if q < 3: a("s_add_u32 s60, s60, 4096")
    a("s_waitcnt vmcnt(0)")
    a("s_mov_b64 exec, 1")
    a("buffer_store_dwordx2 v[244:245], v247, s[36:39], s66 offen sc1")
    a("s_mov_b64 exec, -1")

def poll_xn(a, vt):
    a("s_lshl_b32 s43, s41, 2")
    a("s_add_u32 s43, s43, s40")
    a("s_lshl_b32 s4, s41, 8")
    a(f"s_add_u32 s4, s4, {FX}")
    poll(a, "s4", 64, vt)
    a("s_lshl_b32 s70, s43, 15")
    a("s_lshl_b32 s73, s74, 12")
    a("s_add_u32 s72, s70, s73")

def rot_setup(a, add, pitch):
    a("s_and_b32 s10, s41, 7")
    a("s_and_b32 s11, s42, 3")
    a("s_lshl_b32 s11, s11, 1")
    a("s_add_u32 s10, s10, s11")
    if add: a(f"s_add_u32 s10, s10, {add}")
    a("s_and_b32 s74, s10, 7")
    if E("NOROT"): a("s_mov_b32 s74, 0")
    a(f"s_mul_i32 s11, s74, {64*pitch}")
    a("s_add_u32 s64, s64, s11")
    a("s_sub_u32 s67, 8, s74")
def w_wrap(pitch):
    return ["s_sub_u32 s67, s67, 1", "s_cmp_eq_u32 s67, 0", f"s_cselect_b32 s10, {512*pitch}, 0", "s_sub_u32 s64, s64, s10"]
X_ADV = ["s_add_u32 s73, s73, 4096", "s_and_b32 s73, s73, 32767", "s_add_u32 s72, s70, s73"]

def tr_base(a, RW, base):
    a("v_lshrrev_b32 v17, 5, v1")
    a("v_bfe_u32 v18, v1, 2, 2")
    a("v_lshl_add_u32 v18, v17, 3, v18")
    a("v_and_b32 v19, 3, v1")
    a("v_bfe_u32 v20, v1, 4, 1")
    a(f"v_lshlrev_b32 v{RW}, 6, v18")
    a(f"v_lshl_add_u32 v{RW}, v20, 5, v{RW}")
    a(f"v_lshl_add_u32 v{RW}, v19, 3, v{RW}")
    if base: a(f"v_add_u32 v{RW}, {base}, v{RW}")

def gemm1A(a):
    SB, NS = 6144, 13
    VW, VW3, RW, RW2 = 6, 7, 8, 9
    WF, ACC, XN = 16, 64, 112
    srd(a, 48, 18, 512 * 3072)
    a("s_and_b32 s3, s40, 1")
    a("s_lshr_b32 s4, s40, 1")
    a("v_lshrrev_b32 v16, 2, v1")
    a("v_and_b32 v17, 3, v1")
    a(f"v_mul_u32_u24 v{VW}, 3072, v16")
    a(f"v_lshl_add_u32 v{VW}, v17, 4, v{VW}")
    a("s_lshl_b32 s64, s42, 6")
    a(f"s_mul_i32 s5, s3, {16*3072}")
    a("s_add_u32 s64, s64, s5")
    a(f"v_add_u32 v{VW3}, 2048, v{VW}")
    a("s_lshl_b32 s5, s4, 10")
    a(f"v_add_u32 v{VW}, s5, v{VW}")
    a("s_lshl_b32 s5, s4, 11")
    a("s_lshl_b32 s6, s3, 10")
    a("s_add_u32 s69, s6, 4096")
    a("s_add_u32 s68, s5, s6")
    a("s_cmp_eq_u32 s4, 0")
    a("s_cselect_b32 s14, -1, 0")
    a("s_cselect_b32 s15, 0, -1")
    rot_setup(a, 1, 3072)
    def loadW(st):
        o = (st % NS) * SB
        a(f"s_add_u32 m0, s68, {o}")
        a("s_nop 0")
        a(f"buffer_load_dwordx4 v{VW}, s[48:51], s64 offen lds")
        a(f"s_add_u32 m0, s69, {o}")
        a("s_mov_b64 exec, s[14:15]")
        a(f"buffer_load_dwordx4 v{VW3}, s[48:51], s64 offen lds")
        a("s_mov_b64 exec, -1")
        a(f"s_add_u32 s64, s64, {32*3072}")
        if st % 2 == 1:
            for i in w_wrap(3072): a(i)
    tr_base(a, RW, 0)
    a(f"v_add_u32 v{RW2}, {7*SB}, v{RW}")
    for i in range(48): a(f"v_mov_b32 v{ACC+i}, 0")
    a("v_lshlrev_b32 v2, 4, v1")
    if E("AW0"):
        for st in range(NS): loadW(st)
        get_nonce(a, 240)
    else:
        get_nonce(a, 240)
        for st in range(NS): loadW(st)
    poll_xn(a, 240)
    stamp(a, 1)
    XA = int(E("XA", "10"))
    q = VMQ(a)
    def loadX(ks):
        if ks and ks % 4 == 0:
            for i in X_ADV: a(i)
        a(f"buffer_load_dwordx4 v[{XN+4*ks}:{XN+4*ks+3}], v2, s[36:39], s72 offen offset:{(ks%4)*1024} sc1")
        q.issue(("x", ks))
    for ks in range(XA): loadX(ks)
    def rd(ks):
        st, kk = ks // 2, ks % 2
        sl = st % NS
        base, o = (RW, sl * SB) if sl < 7 else (RW2, (sl - 7) * SB)
        out = []
        for u in range(3):
            r = WF + (ks % 4) * 12 + u * 4
            out.append(f"ds_read_b64_tr_b16 v[{r}:{r+1}], v{base} offset:{o+u*2048+kk*1024}")
            out.append(f"ds_read_b64_tr_b16 v[{r+2}:{r+3}], v{base} offset:{o+u*2048+kk*1024+256}")
        return out
    for i in rd(0) + rd(1): a(i)
    extra = 0
    for ks in range(32):
        if ks == 8:
            a("s_barrier")
            for st in range(NS, 16):
                loadW(st); q.issue("w"); q.issue("w")
        if ks + XA < 32: loadX(ks + XA)
        if ks == 24:
            q.wait(["w", ("x", ks)])
            a("s_barrier")
        else:
            q.wait([("x", ks)])
        a(f"s_waitcnt lgkmcnt({6 if ks < 31 else 0})")
        RL = rd(ks + 2) if ks + 2 < 32 else []
        x = XN + 4 * ks
        for u in range(3):
            w, d = WF + (ks % 4) * 12 + u * 4, ACC + u * 16
            if u == 2: mfma(a, d, x, w, d)
            else: mfma(a, d, w, x, d)
            for i in RL[2*u:2*u+2]: a(i)
    stamp(a, 2)
    P = 16
    a("v_and_b32 v10, 31, v1")
    a("v_lshrrev_b32 v11, 5, v1")
    a("v_lshlrev_b32 v12, 4, v1")
    a("v_bfe_u32 v13, v1, 4, 1")
    a("v_lshlrev_b32 v13, 16, v13")
    a("v_lshl_add_u32 v13, v11, 8, v13")
    a("v_and_b32 v14, 15, v1")
    a("v_lshl_add_u32 v13, v14, 4, v13")
    a("s_lshl_b32 s3, s42, 17")
    a("s_lshl_b32 s4, s43, 10")
    a("s_add_u32 s3, s3, s4")
    a(f"s_add_u32 s6, s3, {WS_KH}")
    a(f"s_add_u32 s7, s3, {WS_KH+65536}")
    a(f"s_add_u32 s8, s3, {WS_VT}")
    a(f"s_mov_b32 s9, {f2h(QSCALE)}")
    for i in range(8): a(f"v_cvt_pk_bf16_f32 v{P+8+i}, v{ACC+16+2*i}, v{ACC+17+2*i}")
    a(f"buffer_store_dwordx4 v[{P+8}:{P+11}], v12, s[36:39], s6 offen sc1")
    a(f"buffer_store_dwordx4 v[{P+12}:{P+15}], v12, s[36:39], s7 offen sc1")
    for i in range(8): a(f"v_cvt_pk_bf16_f32 v{P+16+i}, v{ACC+32+2*i}, v{ACC+33+2*i}")
    a(f"buffer_store_dwordx4 v[{P+16}:{P+19}], v13, s[36:39], s8 offen sc1")
    a(f"buffer_store_dwordx4 v[{P+20}:{P+23}], v13, s[36:39], s8 offen offset:512 sc1")
    for i in range(16): a(f"v_mul_f32 v{ACC+i}, s9, v{ACC+i}")
    for i in range(8): a(f"v_cvt_pk_bf16_f32 v{P+i}, v{ACC+2*i}, v{ACC+2*i+1}")
    QL = 5 * SB
    a("s_lshl_b32 s3, s40, 11")
    a("v_add_u32 v14, s3, v12")
    a(f"ds_write_b128 v14, v[{P}:{P+3}] offset:{QL}")
    a(f"ds_write_b128 v14, v[{P+4}:{P+7}] offset:{QL+1024}")
    a("s_lshl_b32 s4, s42, 8")
    a("s_lshl_b32 s5, s43, 2")
    a("s_add_u32 s4, s4, s5")
    a(f"s_add_u32 s4, s4, {F1}")
    publish(a, "s4", 240)
    a("s_waitcnt lgkmcnt(0)")
    a("s_barrier")
    return QL

def gemm1B(a):
    NU, R, PITCH, SB, NLD = 7, 4, 3584, 14336, 6
    VW, VW3, RW, RM, RM2 = 6, 7, 8, 9, 10
    XN, WF, ACC = 12, 44, 100
    ln_load(a)
    a("s_and_b32 s3, s40, 1")
    a("s_lshr_b32 s4, s40, 1")
    a("v_lshrrev_b32 v16, 2, v1")
    a("v_and_b32 v17, 3, v1")
    a(f"v_mul_u32_u24 v{VW}, {PITCH}, v16")
    a(f"v_lshl_add_u32 v{VW}, v17, 4, v{VW}")
    a("s_cmp_eq_u32 s4, 0")
    a("s_cselect_b32 s48, s24, s26")
    a("s_cselect_b32 s49, s25, s27")
    a(f"s_mov_b32 s50, {512*3584}")
    a("s_mov_b32 s51, 0x00020000")
    a("s_mul_i32 s64, s42, 224")
    a(f"s_mul_i32 s5, s3, {16*PITCH}")
    a("s_add_u32 s64, s64, s5")
    a("s_lshl_b32 s5, s4, 11")
    a("s_lshl_b32 s6, s3, 10")
    a("s_add_u32 s68, s5, s6")
    a("s_lshl_b32 s5, s4, 10")
    a("s_add_u32 s5, s5, 12288")
    a("s_add_u32 s6, s68, 8192")
    a("s_cmp_eq_u32 s3, 0")
    a("s_cselect_b32 s71, s5, s6")
    a("s_cselect_b64 s[14:15], -1, 1")
    a("s_and_b32 s7, s42, 1")
    a("s_lshl_b32 s8, s7, 5")
    a(f"v_add_u32 v{VW}, s8, v{VW}")
    a("s_cmp_eq_u32 s7, 0")
    a("s_cselect_b32 s8, 192, 0")
    a("v_lshrrev_b32 v18, 1, v1")
    a("s_lshl_b32 s9, s4, 2")
    a("v_xor_b32 v18, s9, v18")
    a(f"v_mul_u32_u24 v18, {PITCH}, v18")
    a("v_and_b32 v19, 1, v1")
    a("v_lshl_add_u32 v18, v19, 4, v18")
    a("v_add_u32 v18, s8, v18")
    a(f"v_add_u32 v19, 128, v{VW}")
    a("s_cmp_eq_u32 s3, 0")
    a("s_cselect_b64 vcc, -1, 0")
    a(f"v_cndmask_b32 v{VW3}, v19, v18, vcc")
    def wlist(slot):
        o = slot * SB
        g = []
        for i in range(3):
            g.append(([f"s_add_u32 m0, s68, {o+i*(4096-64)}"], f"buffer_load_dwordx4 v{VW}, s[48:51], s64 offen offset:{64*i} lds", []))
        g.append(([f"s_add_u32 m0, s71, {o}"], f"s_mov_b64 exec, s[14:15]\nbuffer_load_dwordx4 v{VW3}, s[48:51], s64 offen lds\ns_mov_b64 exec, -1",
                  [f"s_add_u32 s64, s64, {32*PITCH}"] + (w_wrap(PITCH) if slot % 2 == 1 else [])))
        return g
    def xlist(slot):
        g = []
        for kk in range(2):
            r = XN + (2 * slot + kk) * 4
            g.append(([], f"buffer_load_dwordx4 v[{r}:{r+3}], v2, s[36:39], s72 offen offset:{((2*slot+kk)%4)*1024} sc1",
                      X_ADV if (kk == 1 and slot % 2 == 1) else []))
        return g
    def emit(g):
        for pre, ins, post in g:
            for i in pre: a(i)
            if pre: a("s_nop 0")
            a(ins)
            for i in post: a(i)
    rot_setup(a, 0, PITCH)
    ln_addr(a)
    a("s_waitcnt vmcnt(0)")
    ln_compute(a, 3 * SB)
    for st in range(R - 1):
        for i in wlist(st)[3][2]: a(i)
    a("s_branch g1B_pro")
    a.label("ln_done")
    srd(a, 52, 24, 512 * 3584)
    a("v_lshrrev_b32 v18, 1, v1")
    a(f"v_mul_u32_u24 v18, {PITCH}, v18")
    a("v_and_b32 v20, 1, v1")
    a("v_lshl_add_u32 v18, v20, 4, v18")
    a("v_add_u32 v18, s8, v18")
    a("s_sub_u32 s69, s68, 2048")
    a("s_add_u32 s6, s69, 8192")
    a("s_and_b32 s3, s40, 1")
    a("s_cmp_eq_u32 s3, 0")
    a("s_cselect_b32 s70, 12288, s6")
    a("s_cselect_b64 vcc, -1, 0")
    a("v_cndmask_b32 v11, v19, v18, vcc")
    for st in range(R - 1):
        o = st * SB
        for i in range(3):
            a(f"s_add_u32 m0, s69, {o+i*(4096-64)}")
            a("s_nop 0")
            a(f"buffer_load_dwordx4 v{VW}, s[52:55], s64 offen offset:{64*i} lds")
        a(f"s_add_u32 m0, s70, {o}")
        a("s_mov_b64 exec, s[14:15]")
        a("buffer_load_dwordx4 v11, s[52:55], s64 offen lds")
        a("s_mov_b64 exec, -1")
        emit(wlist(st))
    a.label("g1B_pro")
    stamp(a, 1)
    if E("LNONLY"): a("s_endpgm")
    tr_base(a, RW, 0)
    a("v_lshlrev_b32 v21, 2, v20")
    a("v_xor_b32 v21, v21, v18")
    a(f"v_lshlrev_b32 v{RM}, 5, v21")
    a(f"v_lshl_add_u32 v{RM}, v20, 10, v{RM}")
    a(f"v_lshl_add_u32 v{RM}, v19, 3, v{RM}")
    a(f"v_add_u32 v{RM}, 12288, v{RM}")
    a(f"v_xor_b32 v{RM2}, 128, v{RM}")
    for i in range(NU * 16): a(f"v_mov_b32 v{ACC+i}, 0")
    a(f"s_setprio {E('PB1', '0')}")
    poll_xn(a, 240)
    for st in range(R - 1): emit(xlist(st))
    def rd_w(kk, slot, u):
        b, o = WF + kk * 28 + u * 4, slot * SB
        if u == 6:
            return [f"ds_read_b64_tr_b16 v[{b}:{b+1}], v{RM} offset:{o+kk*512}", f"ds_read_b64_tr_b16 v[{b+2}:{b+3}], v{RM2} offset:{o+kk*512}"]
        return [f"ds_read_b64_tr_b16 v[{b}:{b+1}], v{RW} offset:{o+u*2048+kk*1024}", f"ds_read_b64_tr_b16 v[{b+2}:{b+3}], v{RW} offset:{o+u*2048+kk*1024+256}"]
    def body(slot, ld, vmw, last=False):
        LL = (wlist((slot + 3) % 4) + xlist((slot + 3) % 4)) if ld else []
        li = 0
        for kk in range(2):
            if kk == 1 and not last:
                a(f"s_waitcnt vmcnt({vmw})")
                a("s_barrier")
            x = XN + (2 * slot + kk) * 4
            for u in range(NU):
                nxt = rd_w(1, slot, u) if kk == 0 else ([] if last else rd_w(0, (slot + 1) % 4, u))
                if u % 2 == 0:
                    rest = max(0, 2 * (NU - 2 - u))
                    a(f"s_waitcnt lgkmcnt({rest + (2*u if (kk == 0 or not last) else 0)})")
                l = LL[li] if (ld and kk == 1 and u >= 1) else None
                if l:
                    for i in l[0]: a(i)
                mfma(a, ACC + u * 16, WF + kk * 28 + u * 4, x, ACC + u * 16)
                for i in nxt: a(i)
                if l:
                    a(l[1])
                    for i in l[2]: a(i)
                    li += 1
    stamp(a, 3 if E("BSTAMP") else 7)
    if E("LNST"):
        dump_stamps(a, 6)
        a("s_endpgm")
    a0 = a
    class Filt:
        def __call__(self, s):
            if E("NODMA") and " lds" in s: return
            if E("NOX") and "sc1" in s: return
            if E("NOMFMA") and "v_mfma" in s: return
            if E("NOWRD") and "ds_read_b64_tr" in s: return
            if E("NOBAR") and "s_barrier" in s: return
            a0(s)
        def __getattr__(self, n): return getattr(a0, n)
    a = Filt()
    a("s_waitcnt vmcnt(4)")
    a("s_barrier")
    for u in range(NU):
        for i in rd_w(0, 0, u): a(i)
    body(0, True, 2)
    body(1, True, NLD)
    body(2, True, NLD)
    body(3, True, NLD)
    if E("BITER"):
        stamp(a, 4)
        for it in range(2):
            for slot in range(4): body(slot, True, NLD)
            stamp(a, 5 + it)
    else:
        a("s_mov_b32 s75, 2")
        a.raw(".p2align 6")
        a.label("g1B_loop")
        for slot in range(4): body(slot, True, NLD)
        a("s_sub_u32 s75, s75, 1")
        a("s_cmp_lg_u32 s75, 0")
        a("s_cbranch_scc1 g1B_loop")
    body(0, True, NLD)
    body(1, False, NLD)
    body(2, False, 0)
    body(3, False, 0, last=True)
    a = a0
    stamp(a, 2)
    a("s_barrier")
    return lambda: gemm1B_epilogue(a, ACC)

def gemm1B_epilogue(a, ACC):
    T, P = 212, 44
    a("v_lshlrev_b32 v2, 4, v1")
    a("s_mul_i32 s3, s43, 144")
    a("s_mul_i32 s4, s42, 7")
    a("s_add_u32 s3, s3, s4")
    a("s_add_u32 s3, s3, 32")
    a("s_and_b32 s7, s42, 1")
    a("s_add_u32 s4, s3, s7")
    a("s_cmp_eq_u32 s7, 0")
    a("s_cselect_b32 s5, 6, 0")
    a("s_add_u32 s5, s3, s5")
    a("s_lshl_b32 s4, s4, 10")
    a(f"s_add_u32 s4, s4, {WS_AF}")
    a("s_lshl_b32 s5, s5, 10")
    a(f"s_add_u32 s5, s5, {WS_AF}")
    a(f"s_add_u32 s6, s4, 4096")
    a(f"s_mov_b32 s9, {f2h(-LOG2E)}")
    a("s_mov_b32 s8, s9")
    a("s_mov_b32 s10, 1.0")
    a("s_mov_b32 s11, 1.0")
    pr = lambda r: f"v[{r}:{r+1}]"
    def silu_mul(g, u_, n, dst):
        for i in range(0, n, 2): a(f"v_pk_mul_f32 {pr(T+i)}, {pr(g+i)}, s[8:9]")
        for i in range(n): a(f"v_exp_f32 v{T+i}, v{T+i}")
        for i in range(0, n, 2): a(f"v_pk_mul_f32 {pr(g+i)}, {pr(g+i)}, {pr(u_+i)}")
        for i in range(0, n, 2): a(f"v_pk_add_f32 {pr(T+i)}, {pr(T+i)}, s[10:11]")
        for i in range(n): a(f"v_rcp_f32 v{T+i}, v{T+i}")
        a("s_nop 0")
        for i in range(0, n, 2): a(f"v_pk_mul_f32 {pr(g+i)}, {pr(g+i)}, {pr(T+i)}")
        for i in range(n // 2): a(f"v_cvt_pk_bf16_f32 v{dst+i}, v{g+2*i}, v{g+2*i+1}")
    NHI = int(E("NHI", "0"))
    if NHI: a("s_setprio 2")
    for p in range(3):
        if NHI and p == NHI: a("s_setprio 0")
        silu_mul(ACC + 32 * p, ACC + 32 * p + 16, 16, P + 8 * p)
        so, im = ("s4", 2048 * p) if p < 2 else ("s6", 0)
        a(f"buffer_store_dwordx4 v[{P+8*p}:{P+8*p+3}], v2, s[36:39], {so} offen offset:{im} sc1")
        a(f"buffer_store_dwordx4 v[{P+8*p+4}:{P+8*p+7}], v2, s[36:39], {so} offen offset:{im+1024} sc1")
    if NHI == 3: a("s_setprio 0")
    silu_mul(ACC + 96, ACC + 104, 8, P + 24)
    a(f"buffer_store_dwordx4 v[{P+24}:{P+27}], v2, s[36:39], s5 offen sc1")
    a("s_lshl_b32 s4, s43, 6")
    a("s_lshl_b32 s5, s42, 2")
    a("s_add_u32 s4, s4, s5")
    a(f"s_add_u32 s4, s4, {FH}")
    publish(a, "s4", T)
    stamp(a, 3)

RESCALE_T = 30
BIAS = 80
def attention(a, QL):
    name = "at"
    Q = {"A": 4, "B": 8}
    NEG = {"A": 16, "B": 32}
    S = {"A": 48, "B": 64}
    O = {"A": 80, "B": 96}
    P = {"A": 112, "B": 120}
    RING, T0 = 128, 160
    NR = 2
    TP = 2112
    GB = 8 * TP
    Kf = lambda s: RING + 12 * s
    V0 = lambda s: RING + 12 * s + 4
    V1 = lambda s: RING + 12 * s + 8
    AK, AV0, AV1, VD = 2, 3, 12, 13
    mf = lambda d, x, y, c: mfma(a, d, x, y, c)
    a(f"v_mov_b32 v{VD}, v12")
    a("s_lshr_b32 s3, s40, 1")
    a("s_lshl_b32 s60, s42, 1")
    a("s_add_u32 s60, s60, s3")
    a("s_cmp_eq_u32 s3, 0")
    a("s_cselect_b64 vcc, -1, 0")
    for i in range(4): a(f"v_cndmask_b32 v{Kf(1)+i}, v{28+i}, v{24+i}, vcc")
    a("s_and_b32 s4, s40, 1")
    a("s_lshl_b32 s61, s41, 1")
    a("s_add_u32 s61, s61, s4")
    a("s_lshl_b32 s5, s4, 12")
    a("s_lshl_b32 s6, s3, 10")
    a("s_add_u32 s5, s5, s6")
    a(f"v_add_u32 v2, s5, v{VD}")
    a(f"ds_read_b128 v[{Q['A']}:{Q['A']+3}], v2 offset:{QL}")
    a(f"ds_read_b128 v[{Q['B']}:{Q['B']+3}], v2 offset:{QL+2048}")
    a("s_lshl_b32 s5, s60, 16")
    a(f"s_add_u32 s5, s5, {WS_KH}")
    a("s_add_u32 s44, s34, s5")
    a("s_addc_u32 s45, s35, 0")
    a("s_mov_b32 s46, 65536")
    a("s_mov_b32 s47, 0x00020000")
    a(f"s_add_u32 s48, s44, {WS_VT-WS_KH}")
    a("s_addc_u32 s49, s45, 0")
    a("s_mov_b32 s50, 65536")
    a("s_mov_b32 s51, 0x00020000")
    a("s_cmp_eq_u32 s4, 0")
    a("s_cselect_b32 s52, s44, s48")
    a("s_cselect_b32 s53, s45, s49")
    a("s_mov_b32 s54, 65536")
    a("s_mov_b32 s55, 0x00020000")
    a(f"s_mul_i32 s70, s3, {2*GB}")
    a("s_lshl_b32 s71, s4, 10")
    a("s_add_u32 s71, s71, s70")
    a("v_and_b32 v14, 31, v1")
    a("v_lshrrev_b32 v15, 5, v1")
    a(f"v_add_u32 v{AK}, s70, v{VD}")
    a(f"v_lshlrev_b32 v{AV0}, 8, v15")
    a(f"v_lshl_add_u32 v{AV0}, v14, 4, v{AV0}")
    a(f"v_add_u32 v{AV0}, 1024, v{AV0}")
    a(f"v_add_u32 v{AV1}, 512, v{AV0}")
    a(f"v_mov_b32 v{T0}, 2064")
    a(f"v_mov_b32 v{T0+1}, 2048")
    a("v_cmp_eq_u32 vcc, 16, v14")
    a(f"v_mov_b32 v{T0+4}, 0x3f803f80")
    a(f"v_and_b32 v{T0+2}, 1, v1")
    a(f"v_cndmask_b32 v{T0}, v{T0}, v{T0+1}, vcc")
    a("v_cmp_gt_u32 vcc, 16, v14")
    a(f"v_lshrrev_b32 v{T0+3}, 1, v1")
    a(f"v_mul_u32_u24 v{T0+3}, {TP}, v{T0+3}")
    a(f"v_cndmask_b32 v{AV0}, v{T0}, v{AV0}, vcc")
    a(f"v_cndmask_b32 v{AV1}, v{T0}, v{AV1}, vcc")
    a(f"v_add_u32 v{AV0}, s70, v{AV0}")
    a(f"v_add_u32 v{AV1}, s70, v{AV1}")
    a(f"v_cmp_eq_u32 vcc, 0, v{T0+2}")
    a(f"v_lshl_add_u32 v{T0+3}, v{T0+2}, 4, v{T0+3}")
    a("s_lshl_b32 s4, s42, 8")
    a(f"v_cndmask_b32 v{T0+4}, 0, v{T0+4}, vcc")
    for i in range(1, 4): a(f"v_mov_b32 v{T0+4+i}, v{T0+4}")
    for X in "AB":
        for i in range(16): a(f"v_mov_b32 v{O[X]+i}, 0")
        for i in range(8): a(f"v_mov_b32 v{P[X]+i}, 0")
    for i in range(4): a(f"v_mov_b32 v{V1(1)+i}, 0")
    a(f"s_mov_b32 s64, {f2h(2.0**RESCALE_T)}")
    a("s_mov_b32 s65, 0")
    a(f"s_add_u32 s4, s4, {F1}")
    a("s_waitcnt lgkmcnt(0)")
    a("s_barrier")
    a(f"ds_write_b128 v{T0+3}, v[{T0+4}:{T0+7}] offset:2048")
    for X in "AB": mf(S[X], Kf(1), Q[X], None)
    a.nop(14)
    for X in "AB":
        m = T0 + 8
        a(f"v_max3_f32 v{m}, v{S[X]}, v{S[X]+1}, v{S[X]+2}")
        for i in range(3, 15, 2):
            a(f"v_max3_f32 v{m}, v{m}, v{S[X]+i}, v{S[X]+i+1}")
        a(f"v_max_f32 v{m}, v{m}, v{S[X]+15}")
        a(f"v_mov_b32 v{m+1}, v{m}")
        a("s_nop 1")
        a(f"v_permlane32_swap_b32 v{m+1}, v{m}")
        a("s_nop 1")
        a(f"v_max_f32 v{m}, v{m}, v{m+1}")
        for i in range(16):
            a(f"v_sub_f32 v{NEG[X]+i}, {f2h(-float(BIAS))}, v{m}")
    poll(a, "s4", 64, T0)
    stamp(a, 4)
    a("s_setprio 1")
    a("s_and_b32 s66, s41, 7")
    a("s_lshl_b32 s66, s66, 13")
    def dma(t, bufoff):
        a(f"s_add_u32 m0, {bufoff}, {t*TP - (t%4)*1024}")
        return f"buffer_load_dwordx4 v{VD}, s[52:55], {'s66' if t < 4 else 's68'} offen offset:{(t%4)*1024} sc1 lds"
    def next_group():
        a("s_add_u32 s66, s66, 8192")
        a("s_and_b32 s66, s66, 65535")
    a(f"s_add_u32 s72, s71, {GB}")
    a("s_add_u32 s68, s66, 4096")
    for t in range(8):
        i = dma(t, "s71")
        a("s_nop 0")
        a(i)
    next_group()
    a("s_add_u32 s68, s66, 4096")
    i = dma(0, "s72")
    a("s_nop 0")
    a(i)
    a("s_waitcnt vmcnt(1) lgkmcnt(0)")
    a("s_barrier")
    def reads(slot, t):
        a(f"ds_read_b128 v[{Kf(slot)}:{Kf(slot)+3}], v{AK} offset:{t*TP}")
        a(f"ds_read_b128 v[{V0(slot)}:{V0(slot)+3}], v{AV0} offset:{t*TP}")
        a(f"ds_read_b128 v[{V1(slot)}:{V1(slot)+3}], v{AV1} offset:{t*TP}")
    reads(0, 0)
    a("s_waitcnt lgkmcnt(0)")
    mf(S["A"], Kf(0), Q["A"], NEG["A"])
    a("s_mov_b32 s67, 8")
    a(f"s_mov_b32 s73, {GB}")
    a("s_and_b32 s74, s41, 7")
    a("s_add_u32 s74, s74, 2")
    a.nop(8)
    if E("ATST"): stamp(a, 4)
    a.raw(".p2align 6")
    a.label(f"{name}_loop")
    def half(X, tt):
        Y = "B" if X == "A" else "A"
        x, p = S[X], P[X]
        e = lambda i: a(f"v_exp_f32 v{x+i}, v{x+i}")
        c = lambda i: a(f"v_cvt_pk_bf16_f32 v{p+i}, v{x+2*i}, v{x+2*i+1}")
        e(0); e(1)
        ty = (tt - 1) % NR if X == "A" else tt % NR
        mf(O[Y], V1(ty), P[Y] + 4, O[Y])
        if X == "A":
            if tt == 7:
                a("s_waitcnt vmcnt(0)")
                a("s_barrier")
                a(f"v_add_u32 v{AK}, s73, v{AK}")
                a(f"v_add_u32 v{AV0}, s73, v{AV0}")
                a(f"v_add_u32 v{AV1}, s73, v{AV1}")
                a("s_sub_u32 s73, 0, s73")
                a("s_and_b32 s66, s74, 7")
                a("s_lshl_b32 s66, s66, 13")
                a("s_cmp_gt_u32 s67, 2")
                a("s_cselect_b32 s66, s66, s75")
                a("s_add_u32 s68, s66, 4096")
                a("s_add_u32 s74, s74, 1")
                reads((tt + 1) % NR, 0)
            else:
                reads((tt + 1) % NR, tt + 1)
        d = None
        k = {("B", 7): 0, ("A", 0): 1, ("B", 0): 2, ("A", 1): 3, ("B", 1): 4, ("A", 2): 5, ("B", 2): 6, ("A", 3): 7}.get((X, tt))
        e(2); e(3); c(0)
        if k is not None: d = dma(k, "s71" if k == 0 else "s72")
        e(4)
        if d: a(d)
        e(5); c(1)
        if X == "B":
            a("s_waitcnt lgkmcnt(0)")
        tk = tt % NR if X == "A" else (tt + 1) % NR
        mf(S[Y], Kf(tk), Q[Y], NEG[Y])
        e(6); e(7); c(2); e(8); c(3); e(9); e(10)
        mf(O[X], V0(tt % NR), p, O[X])
        c(4); e(11); e(12); c(5); e(13); e(14); e(15); c(6); c(7)
        if (X == "A" and tt == 5) or (X == "B" and tt == 5):
            a(f"v_cmp_nge_f32 vcc, s64, v{O[Y]+8}")
            a(f"s_cbranch_vccnz {name}_rare{Y}")
            a.label(f"{name}_ret{Y}")
    a("s_brev_b32 s75, 1")
    a0 = a
    class Filt:
        def __call__(self, s):
            if E("ATNOBAR") and "s_barrier" in s: return
            if E("ATNODMA") and " lds" in s: return
            if E("ATNORD") and "ds_read" in s: return
            if E("ATNOCHK") and ("v_cmp_nge" in s or "vccnz" in s): return
            a0(s)
        def __getattr__(self, n): return getattr(a0, n)
    a = Filt()
    for tt in range(8):
        half("A", tt)
        half("B", tt)
    a = a0
    a("s_mov_b32 s3, s71")
    a("s_mov_b32 s71, s72")
    a("s_mov_b32 s72, s3")
    a("s_sub_u32 s67, s67, 1")
    a("s_cmp_lg_u32 s67, 0")
    a(f"s_cbranch_scc1 {name}_loop")
    a("s_nop 1")
    mf(O["B"], V1(1), P["B"] + 4, O["B"])
    a("s_cmp_lg_u32 s65, 0")
    a(f"s_cbranch_scc1 {name}_safe")
    a.label(f"{name}_fin")
    stamp(a, 5)
    a.nop(14)
    a("s_mul_i32 s4, s61, 288")
    a("s_add_u32 s4, s4, s60")
    a("s_lshl_b32 s4, s4, 10")
    a(f"s_add_u32 s4, s4, {WS_AF}")
    a(f"s_add_u32 s5, s4, {144*1024}")
    a("v_lshlrev_b32 v12, 4, v1")
    for X in "AB":
        l = O[X] + 8
        a(f"v_mov_b32 v{T0}, v{l}")
        a("s_nop 1")
        a(f"v_permlane32_swap_b32 v{T0}, v{l}")
        a("s_nop 1")
        a(f"v_mul_f32 v{T0+2+(X=='B')}, 0, v{T0}")
        a(f"v_rcp_f32 v{T0}, v{T0}")
        a("s_nop 0")
        for i in range(8):
            a(f"v_mul_f32 v{O[X]+i}, v{O[X]+i}, v{T0}")
        for i in range(4):
            a(f"v_cvt_pk_bf16_f32 v{P[X]+i}, v{O[X]+2*i}, v{O[X]+2*i+1}")
        a(f"buffer_store_dwordx4 v[{P[X]}:{P[X]+3}], v12, s[36:39], {'s4' if X=='A' else 's5'} offen sc1")
    for X in "AB":
        for i in range(8):
            a(f"v_fma_f32 v{T0+2+(X=='B')}, v{O[X]+i}, 0, v{T0+2+(X=='B')}")
    a(f"v_cmp_u_f32 vcc, v{T0+2}, v{T0+3}")
    a("s_cmp_eq_u32 s65, 0")
    a("s_cselect_b64 s[4:5], vcc, 0")
    a("s_cmp_lg_u64 s[4:5], 0")
    a(f"s_cbranch_scc1 {name}_safe")
    a("s_lshl_b32 s4, s61, 7")
    a("s_lshl_b32 s5, s60, 2")
    a("s_add_u32 s4, s4, s5")
    a(f"s_add_u32 s4, s4, {FO}")
    publish(a, "s4", T0)
    dump_stamps(a, 6)
    a("s_endpgm")
    for Y in "AB":
        a.label(f"{name}_rare{Y}")
        a.nop(16)
        l = O[Y] + 8
        a(f"v_mov_b32 v{T0+2}, 0x207")
        a(f"v_cmp_class_f32 vcc, v{l}, v{T0+2}")
        a("s_cmp_lg_u64 vcc, 0")
        a("s_cselect_b32 s65, 1, s65")
        a(f"s_cbranch_scc1 {name}_ret{Y}")
        a(f"v_frexp_exp_i32_f32 v{T0}, v{l}")
        a(f"v_add_u32 v{T0}, {BIAS}, v{T0}")
        a(f"v_max_i32 v{T0}, 0, v{T0}")
        a(f"v_mov_b32 v{T0+1}, v{T0}")
        a("s_nop 1")
        a(f"v_permlane32_swap_b32 v{T0}, v{T0+1}")
        a("s_nop 1")
        a(f"v_cvt_f32_i32 v{T0+1}, v{T0}")
        a(f"v_sub_u32 v{T0}, 0, v{T0}")
        for i in range(9): a(f"v_ldexp_f32 v{O[Y]+i}, v{O[Y]+i}, v{T0}")
        for i in range(16): a(f"v_sub_f32 v{NEG[Y]+i}, v{NEG[Y]+i}, v{T0+1}")
        for i in range(16): a(f"v_sub_f32 v{S[Y]+i}, v{S[Y]+i}, v{T0+1}")
        a("s_nop 1")
        a(f"s_branch {name}_ret{Y}")
    a.label(f"{name}_safe")
    a("s_waitcnt vmcnt(0) lgkmcnt(0)")
    a.nop(16)
    a("s_mov_b32 s65, 2")
    a("v_and_b32 v14, 31, v1")
    a("v_lshrrev_b32 v15, 5, v1")
    a("v_lshlrev_b32 v3, 8, v15")
    a("v_lshl_add_u32 v3, v14, 4, v3")
    a("v_mov_b32 v15, 0x3f803f80")
    a("v_cmp_eq_u32 vcc, 16, v14")
    a("s_mov_b32 s62, 0x0000ffff")
    a("s_mov_b32 s63, 0x0000ffff")
    a("v_cndmask_b32 v15, 0, v15, vcc")
    for i in range(8): a(f"v_mov_b32 v{V0(0)+i}, v15")
    def loads(slot, soff, imm):
        a(f"buffer_load_dwordx4 v[{Kf(slot)}:{Kf(slot)+3}], v{VD}, s[44:47], {soff} offen offset:{imm} sc1")
        a("s_mov_b64 exec, s[62:63]")
        a(f"buffer_load_dwordx4 v[{V0(slot)}:{V0(slot)+3}], v3, s[48:51], {soff} offen offset:{imm} sc1")
        a(f"buffer_load_dwordx4 v[{V1(slot)}:{V1(slot)+3}], v3, s[48:51], {soff} offen offset:{imm+512} sc1")
        a("s_mov_b64 exec, -1")
    M = {"A": NEG["A"], "B": NEG["B"]}
    for X in "AB":
        for i in range(16): a(f"v_mov_b32 v{O[X]+i}, 0")
        a(f"v_mov_b32 v{M[X]}, 0xff800000")
    a("s_mov_b32 s66, 0")
    a("s_mov_b32 s67, 64")
    a.label(f"{name}_sloop")
    loads(0, "s66", 0)
    a("s_waitcnt vmcnt(0)")
    for X in "AB":
        mf(S[X], Kf(0), Q[X], None)
    a.nop(16)
    for X in "AB":
        x, p, m = S[X], P[X], M[X]
        a(f"v_max3_f32 v{T0}, v{x}, v{x+1}, v{x+2}")
        for i in range(3, 15, 2):
            a(f"v_max3_f32 v{T0}, v{T0}, v{x+i}, v{x+i+1}")
        a(f"v_max_f32 v{T0}, v{T0}, v{x+15}")
        a(f"v_mov_b32 v{T0+1}, v{T0}")
        a("s_nop 1")
        a(f"v_permlane32_swap_b32 v{T0+1}, v{T0}")
        a("s_nop 1")
        a(f"v_max3_f32 v{T0}, v{T0}, v{T0+1}, v{m}")
        a(f"v_sub_f32 v{T0+1}, v{m}, v{T0}")
        a(f"v_exp_f32 v{T0+1}, v{T0+1}")
        a(f"v_mov_b32 v{m}, v{T0}")
        for i in range(9): a(f"v_mul_f32 v{O[X]+i}, v{O[X]+i}, v{T0+1}")
        for i in range(16): a(f"v_sub_f32 v{x+i}, v{x+i}, v{T0}")
        for i in range(16): a(f"v_exp_f32 v{x+i}, v{x+i}")
        a("s_nop 0")
        for i in range(8): a(f"v_cvt_pk_bf16_f32 v{p+i}, v{x+2*i}, v{x+2*i+1}")
        a("s_nop 1")
        mf(O[X], V0(0), p, O[X])
        mf(O[X], V1(0), p + 4, O[X])
    a.nop(16)
    a("s_add_u32 s66, s66, 1024")
    a("s_sub_u32 s67, s67, 1")
    a("s_cmp_lg_u32 s67, 0")
    a(f"s_cbranch_scc1 {name}_sloop")
    a(f"s_branch {name}_fin")

def gemm2(a0, middle):
    class Filt:
        def __call__(self, s):
            if E("G2NOMFMA") and "v_mfma" in s: return
            if E("G2NOLD") and ("buffer_load_dwordx4" in s): return
            if E("G2NORD") and ("ds_read_b64_tr" in s): return
            a0(s)
        def __getattr__(self, n): return getattr(a0, n)
    a = Filt()
    D, NH, NK = 8, 28, 36
    ACC, AR, WF = 64, 128, 32
    a("s_and_b32 s3, s2, 7")
    a("s_bfe_u32 s4, s2, 0x50003")
    a("s_lshl_b32 s5, s3, 2")
    a("s_and_b32 s6, s4, 3")
    a("s_add_u32 s12, s5, s6")
    a("s_lshr_b32 s13, s4, 2")
    srd(a, 44, 20, 512 * 1024)
    srd(a, 48, 28, 1792 * 1024)
    a(f"s_mul_i32 s53, s40, {NH*16384}")
    a("s_lshl_b32 s52, s40, 17")
    a("s_mul_i32 s54, s12, 288")
    a(f"s_mul_i32 s5, s40, {NH}")
    a("s_add_u32 s5, s5, s54")
    a("s_add_u32 s5, s5, 32")
    a("s_lshl_b32 s5, s5, 10")
    a(f"s_add_u32 s60, s5, {WS_AF}")
    a(f"s_add_u32 s61, s60, {144*1024}")
    a("s_lshl_b32 s5, s40, 3")
    a("s_add_u32 s5, s5, s54")
    a("s_lshl_b32 s5, s5, 10")
    a(f"s_add_u32 s62, s5, {WS_AF}")
    a(f"s_add_u32 s63, s62, {144*1024}")
    a(f"s_mul_i32 s56, s40, {D*2048}")
    a("s_and_b32 s5, s12, 3")
    a("s_lshl_b32 s5, s5, 1")
    a("s_add_u32 s5, s5, s13")
    a("s_cmp_ge_u32 s5, 7")
    a("s_cselect_b32 s6, 7, 0")
    a("s_sub_u32 s5, s5, s6")
    if E("NOHROT"): a("s_mov_b32 s5, 0")
    a("s_lshl_b32 s6, s5, 16")
    a("s_add_u32 s53, s53, s6")
    a("s_lshl_b32 s6, s5, 12")
    a("s_add_u32 s60, s60, s6")
    a("s_add_u32 s61, s61, s6")
    a("s_sub_u32 s64, 7, s5")
    a("s_mov_b32 s65, s64")
    a("v_lshlrev_b32 v2, 4, v1")
    a("v_lshrrev_b32 v3, 5, v1")
    a("v_lshlrev_b32 v4, 2, v3")
    a("v_bfe_u32 v5, v1, 2, 2")
    a("v_add_u32 v4, v4, v5")
    a("v_lshlrev_b32 v4, 10, v4")
    a("v_bfe_u32 v6, v1, 4, 1")
    a("v_lshl_add_u32 v4, v6, 6, v4")
    a("v_and_b32 v7, 3, v1")
    a("v_lshl_add_u32 v4, v7, 4, v4")
    a("s_lshl_b32 s57, s13, 7")
    a("v_add_u32 v4, s57, v4")
    a("v_add_u32 v9, 8192, v4")
    a("v_lshlrev_b32 v8, 9, v3")
    a("v_lshl_add_u32 v8, v5, 6, v8")
    a("v_lshl_add_u32 v8, v6, 5, v8")
    a("v_lshl_add_u32 v8, v7, 3, v8")
    a("v_add_u32 v8, s56, v8")
    q = VMQ(a)
    def loadW(i):
        s = i % D
        sr_, so = ("s[48:51]", "s53") if i < NH else ("s[44:47]", "s52")
        a(f"s_add_u32 m0, s56, {s*2048}")
        a("s_nop 0")
        a(f"buffer_load_dwordx4 v4, {sr_}, {so} offen lds"); q.issue(("W", i))
        a(f"s_add_u32 m0, s56, {s*2048+1024}")
        a("s_nop 0")
        a(f"buffer_load_dwordx4 v9, {sr_}, {so} offen lds"); q.issue(("W", i))
        a(f"s_add_u32 {so}, {so}, 16384")
        if i < NH and i % 4 == 3:
            a("s_sub_u32 s64, s64, 1")
            a("s_cmp_eq_u32 s64, 0")
            a(f"s_cselect_b32 s6, {NH*16384}, 0")
            a("s_sub_u32 s53, s53, s6")
    def loadA(i):
        r = AR + (i % D) * 8
        j = i if i < NH else i - NH
        s0, s1 = ("s60", "s61") if i < NH else ("s62", "s63")
        a(f"buffer_load_dwordx4 v[{r}:{r+3}], v2, s[36:39], {s0} offen offset:{(j%4)*1024} sc1"); q.issue(("A", i))
        a(f"buffer_load_dwordx4 v[{r+4}:{r+7}], v2, s[36:39], {s1} offen offset:{(j%4)*1024} sc1"); q.issue(("A", i))
        if j % 4 == 3:
            a(f"s_add_u32 {s0}, {s0}, 4096")
            a(f"s_add_u32 {s1}, {s1}, 4096")
            if i < NH:
                a("s_sub_u32 s65, s65, 1")
                a("s_cmp_eq_u32 s65, 0")
                a(f"s_cselect_b32 s6, {NH*1024}, 0")
                a("s_sub_u32 s60, s60, s6")
                a("s_sub_u32 s61, s61, s6")
    for i in range(D): loadW(i)
    middle()
    for i in range(64): a(f"v_mov_b32 v{ACC+i}, 0")
    a("s_lshl_b32 s66, s12, 7")
    a(f"s_add_u32 s4, s66, {FH}")
    a(f"s_setprio {E('PB2', '0')}")
    poll(a, "s4", 32, 12); q.drained()
    stamp(a, 4)
    for i in range(D): loadA(i)
    def rd(i):
        s = i % D
        for u in range(2):
            b = WF + (i % 2) * 8 + u * 4
            a(f"ds_read_b64_tr_b16 v[{b}:{b+1}], v8 offset:{s*2048+u*256}")
            a(f"ds_read_b64_tr_b16 v[{b+2}:{b+3}], v8 offset:{s*2048+1024+u*256}")
    rd(0)
    for i in range(NK):
        if i == NH:
            a(f"s_add_u32 s4, s66, {FO}")
            stamp(a, 5)
            poll(a, "s4", 32, 12); q.drained()
            stamp(a, 6)
            for j in range(NH, NK): loadA(j)
        tags = [("A", i)] + ([("W", i + 1)] if i + 1 < NK else [])
        tags = [t for t in tags if t in q.q]
        if tags: q.wait(tags)
        if i + 1 < NK:
            rd(i + 1)
            a("s_waitcnt lgkmcnt(4)")
        else:
            a("s_waitcnt lgkmcnt(0)")
        r = AR + (i % D) * 8
        for t in range(2):
            for u in range(2):
                w = WF + (i % 2) * 8 + u * 4
                d = ACC + (t * 2 + u) * 16
                mfma(a, d, w, r + 4 * t, d)
        if i + D < NK:
            loadW(i + D)
            if i + D < NH: loadA(i + D)
    PITCH = 272
    a("s_setprio 2")
    a("s_barrier")
    a("v_and_b32 v9, 31, v1")
    a(f"v_mul_u32_u24 v9, {PITCH}, v9")
    a("v_lshl_add_u32 v9, v3, 4, v9")
    a(f"s_mul_i32 s56, s40, {64*PITCH}")
    a("v_add_u32 v9, s56, v9")
    a("v_lshrrev_b32 v10, 3, v0")
    a("v_and_b32 v11, 7, v0")
    a("s_lshl_b32 s57, s12, 6")
    a("v_add_u32 v12, s57, v10")
    a("v_lshlrev_b32 v12, 10, v12")
    a("v_lshl_add_u32 v12, v11, 4, v12")
    a("s_lshl_b32 s57, s13, 7")
    a("v_add_u32 v12, s57, v12")
    srd(a, 44, 16, 2048 * 1024)
    srd(a, 48, 30, 2048 * 1024)
    a("s_mov_b32 s58, 32768")
    a("buffer_load_dwordx4 v[16:19], v12, s[44:47], 0 offen")
    a("buffer_load_dwordx4 v[20:23], v12, s[44:47], s58 offen")
    for t in range(2):
        for u in range(2):
            d = ACC + (t * 2 + u) * 16
            for j in range(4):
                a(f"ds_write_b128 v9, v[{d+4*j}:{d+4*j+3}] offset:{t*32*PITCH + u*128 + j*32}")
    a(f"v_mul_u32_u24 v13, {PITCH}, v10")
    a("v_lshl_add_u32 v13, v11, 5, v13")
    a("s_waitcnt lgkmcnt(0)")
    a("s_barrier")
    for it in range(2):
        for w in range(4):
            b = AR + (it * 4 + w) * 8
            off = w * 64 * PITCH + it * 32 * PITCH
            a(f"ds_read_b128 v[{b}:{b+3}], v13 offset:{off}")
            a(f"ds_read_b128 v[{b+4}:{b+7}], v13 offset:{off+16}")
    a("s_waitcnt vmcnt(0)")
    for it in range(2):
        xs = 16 + 4 * it
        for i in range(4):
            a(f"v_lshlrev_b32 v{24+it*8+2*i}, 16, v{xs+i}")
            a(f"v_and_b32 v{25+it*8+2*i}, 0xffff0000, v{xs+i}")
    for it in range(2):
        a(f"s_waitcnt lgkmcnt({8*(1-it)})")
        for w in range(4):
            b = AR + (it * 4 + w) * 8
            for i in range(8):
                a(f"v_add_f32 v{24+it*8+i}, v{24+it*8+i}, v{b+i}")
        for i in range(4):
            a(f"v_cvt_pk_bf16_f32 v{40+it*4+i}, v{24+it*8+2*i}, v{25+it*8+2*i}")
        a(f"buffer_store_dwordx4 v[{40+it*4}:{43+it*4}], v12, s[48:51], {'0' if it==0 else 's58'} offen{E('OUTF', '')}")
    dump_stamps(a, 7)
    a("s_endpgm")

def gen(a):
    a.raw(f".globl {NAME}")
    a.raw(".p2align 8")
    a.raw(f".type {NAME},@function")
    a.label(NAME)
    a("s_cmp_ge_u32 s2, 512")
    a(f"s_cbranch_scc1 {NAME}_done")
    a("s_load_dwordx16 s[16:31], s[0:1], 0")
    a("s_load_dwordx4 s[32:35], s[0:1], 64")
    a("s_memrealtime s[10:11]")
    a("v_and_b32 v1, 63, v0")
    a("v_lshrrev_b32 v2, 6, v0")
    a("s_and_b32 s3, s2, 7")
    a("v_readfirstlane_b32 s40, v2")
    a("s_bfe_u32 s4, s2, 0x50003")
    a("s_and_b32 s5, s3, 1")
    a("s_lshl_b32 s5, s5, 3")
    a("s_and_b32 s6, s4, 7")
    a("s_add_u32 s41, s5, s6")
    a("s_lshr_b32 s5, s3, 1")
    a("s_lshl_b32 s5, s5, 2")
    a("s_lshr_b32 s6, s4, 3")
    a("s_add_u32 s42, s5, s6")
    a("s_waitcnt lgkmcnt(0)")
    stamp(a, 0)
    srd(a, 36, 34, WS_NREC)
    srd(a, 56, 32, 256)
    a("s_cmp_ge_u32 s2, 256")
    a(f"s_cbranch_scc1 {NAME}_B")
    a("s_setprio 2")
    a("s_or_b32 s3, s2, s40")
    a("s_cmp_lg_u32 s3, 0")
    a(f"s_cbranch_scc1 {NAME}_A")
    a("s_or_b32 s10, s10, 1")
    a("v_mov_b32 v2, s10")
    a("v_mov_b32 v3, 0")
    a("s_mov_b64 exec, 1")
    a("buffer_store_dword v2, v3, s[56:59], 0 offen sc1")
    a("s_mov_b64 exec, -1")
    a("s_waitcnt vmcnt(0)")
    a.label(f"{NAME}_A")
    if E("ONLY_B"): a("s_endpgm")
    QL = gemm1A(a)
    if not E("ITER"): stamp(a, 3)
    if E("ONLY_G1"):
        dump_stamps(a, 7 if E("ITER") else 4)
        a("s_endpgm")
    attention(a, QL)
    a.label(f"{NAME}_B")
    if E("ONLY_A"): a("s_endpgm")
    a("s_setprio 3")
    epi = gemm1B(a)
    gemm2(a, epi)
    a.label(f"{NAME}_done")
    a("s_endpgm")

if __name__ == "__main__":
    out = sys.argv[1] if len(sys.argv) > 1 else "v3.s"
    a = Asm()
    gen(a)
    for p in check_hazards(a.lines, NAME): print("HAZARD", p, file=sys.stderr)
    txt = HEADER + ("; @launch grid=(512,1,1) block=(256,1,1) lds=81920\n" if E("FINAL") else f"; @launch kernel={NAME} grid=(512,1,1) block=(256,1,1) lds=81920\n") + '.amdgcn_target "amdgcn-amd-amdhsa--gfx950"\n.text\n' + a.text()
    txt += f""".section .rodata,"a"
.p2align 6
.amdhsa_kernel {NAME}
  .amdhsa_next_free_vgpr 256
  .amdhsa_next_free_sgpr 102
  .amdhsa_accum_offset 256
  .amdhsa_group_segment_fixed_size 0
  .amdhsa_kernarg_size 80
  .amdhsa_user_sgpr_count 2
  .amdhsa_user_sgpr_kernarg_segment_ptr 1
  .amdhsa_system_sgpr_workgroup_id_x 1
.end_amdhsa_kernel
"""
    open(out, "w").write(txt)
```

```python
import sys, math, struct, os
from asmlib import *

def f2h(x):
    return "0x%08x" % struct.unpack("<I", struct.pack("<f", x))[0]
E = os.environ.get
WS_KH = 4 << 20
WS_VT = 6 << 20
WS_AF = 8 << 20
WS_FL = 20 << 20
F1, FH, FO, FX = WS_FL, WS_FL + 4096, WS_FL + 8192, WS_FL + 12288
WS_ST = 21 << 20
WS_NREC = 32 << 20
LOG2E = math.log2(math.e)
QSCALE = 0.25 * LOG2E
TIMING = bool(E("TIMING"))
SPIN_MAX = 200000
NAME = "parallel_sum__mha_block__swiglu_ffn__prompt_kernel" if E("FINAL") else "fused_kernel"

HEADER = """; Kernarg layout for this problem (80 bytes, ptrs only, base s[0:1]):
"""

def srd(a, d, base, nrec):
    a(f"s_mov_b32 s{d}, s{base}")
    a(f"s_mov_b32 s{d+1}, s{base+1}")
    a(f"s_mov_b32 s{d+2}, {nrec}")
    a(f"s_mov_b32 s{d+3}, 0x00020000")

def stamp(a, idx):
    if TIMING:
        a(f"{'s_memtime' if E('CYC') else 's_memrealtime'} s[{84+2*idx}:{85+2*idx}]")
        a("s_waitcnt lgkmcnt(0)")
def dump_stamps(a, last):
    if E("DBGT"):
        a("s_waitcnt vmcnt(0)")
        stamp(a, last)
        a("s_mov_b32 s76, s32")
        a("s_mov_b32 s77, s33")
        a("s_mov_b32 s78, 256")
        a("s_mov_b32 s79, 0x00020000")
        a("s_mov_b64 exec, 1")
        a("v_mov_b32 v250, 0")
        base = 1 if last == 6 else 8
        for i in range(1, last + 1):
            a(f"s_sub_u32 s80, s{84+2*i}, s83")
            a("v_mov_b32 v252, s80")
            a(f"buffer_atomic_umax v252, v250, s[76:79], 0 offen offset:{4*(base+i-1)}")
            a("s_nop 1")
        return
    if TIMING:
        a("s_waitcnt vmcnt(0)")
        stamp(a, last)
        a("s_add_u32 s76, s34, 0x8000000")
        a("s_addc_u32 s77, s35, 0")
        a("s_mov_b32 s78, 0x100000")
        a("s_mov_b32 s79, 0x00020000")
        a("s_lshl_b32 s80, s2, 7")
        a("s_lshl_b32 s81, s40, 5")
        a("s_add_u32 s80, s80, s81")
        a("v_mov_b32 v250, s80")
        for i in range(8):
            a(f"v_mov_b32 v252, s{84+2*i}")
            a(f"buffer_store_dword v252, v250, s[76:79], 0 offen offset:{4*i}")
            a("s_nop 1")

def round_bf16(a, v, t):
    a(f"v_cvt_pk_bf16_f32 v{t}, v{v}, v{v}")
    a(f"v_lshlrev_b32 v{v}, 16, v{t}")

def mfma(a, d, x, y, c):
    a(f"v_mfma_f32_32x32x16_bf16 v[{d}:{d+15}], v[{x}:{x+3}], v[{y}:{y+3}], " + (f"v[{c}:{c+15}]" if c is not None else "0"))

class VMQ:
    def __init__(self, a): self.a, self.q = a, []
    def issue(self, tag): self.q.append(tag)
    def wait(self, tags):
        idx = max(i for i, t in enumerate(self.q) if t in tags)
        self.a(f"s_waitcnt vmcnt({len(self.q)-1-idx})")
    def drained(self): self.q = []

UID = [0]
def uid():
    UID[0] += 1
    return UID[0]

def get_nonce(a, vt):
    n = uid()
    a(f"v_mov_b32 v{vt+1}, 0")
    a(f"s_mov_b32 s3, {SPIN_MAX}")
    a.label(f"nonce{n}")
    a(f"buffer_load_dword v{vt}, v{vt+1}, s[56:59], 0 offen sc1")
    a("s_waitcnt vmcnt(0)")
    a(f"v_readfirstlane_b32 s83, v{vt}")
    a("s_sub_u32 s3, s3, 1")
    a("s_cmp_eq_u32 s3, 0")
    a(f"s_cbranch_scc1 nonce{n}_ok")
    a("s_cmp_eq_u32 s83, 0")
    a(f"s_cbranch_scc1 nonce{n}")
    a.label(f"nonce{n}_ok")

def publish(a, soff, vt):
    a(f"v_mov_b32 v{vt}, s83")
    a(f"v_mov_b32 v{vt+1}, 0")
    a("s_waitcnt vmcnt(0)")
    a("s_mov_b64 exec, 1")
    a(f"buffer_store_dword v{vt}, v{vt+1}, s[36:39], {soff} offen sc1")
    a("s_mov_b64 exec, -1")

def poll(a, soff, nflags, vt):
    n = uid()
    a("s_cmp_lg_u32 s40, 0")
    a(f"s_cbranch_scc1 poll{n}_ok")
    a(f"v_and_b32 v{vt+1}, {nflags-1}, v1")
    a(f"v_lshlrev_b32 v{vt+1}, 2, v{vt+1}")
    a(f"s_mov_b32 s3, {SPIN_MAX}")
    a.label(f"poll{n}")
    a(f"buffer_load_dword v{vt}, v{vt+1}, s[36:39], {soff} offen sc1")
    a("s_waitcnt vmcnt(0)")
    a(f"v_cmp_ne_u32 vcc, s83, v{vt}")
    a(f"s_cbranch_vccz poll{n}_ok")
    a(f"s_sleep {E('SLEEP', '4')}")
    a("s_sub_u32 s3, s3, 1")
    a("s_cmp_lg_u32 s3, 0")
    a(f"s_cbranch_scc1 poll{n}")
    a.label(f"poll{n}_ok")
    a("s_waitcnt vmcnt(0)")
    a("s_barrier")

def ln_load(a):
    srd(a, 44, 16, 2048 * 1024)
    a("s_lshl_b32 s3, s41, 7")
    a("s_lshl_b32 s4, s42, 3")
    a("s_add_u32 s3, s3, s4")
    a("s_lshl_b32 s4, s40, 1")
    a("s_add_u32 s3, s3, s4")
    a("s_lshl_b32 s3, s3, 10")
    a("v_lshlrev_b32 v2, 4, v1")
    a("buffer_load_dwordx4 v[208:211], v2, s[44:47], s3 offen")
    a("buffer_load_dwordx4 v[212:215], v2, s[44:47], s3 offen offset:1024")
    a("v_mov_b32 v247, 0")
    a("buffer_load_dword v246, v247, s[56:59], 0 offen sc1")

def ln_addr(a):
    a("v_lshlrev_b32 v240, 7, v1")
    a("s_lshl_b32 s3, s40, 5")
    a("v_add_u32 v240, s3, v240")
    a("v_lshlrev_b32 v241, 4, v1")
    a("s_lshl_b32 s3, s40, 12")
    a("v_add_u32 v241, s3, v241")
    a("v_lshrrev_b32 v242, 3, v1")
    a("v_lshrrev_b32 v243, 1, v242")
    a("v_lshlrev_b32 v243, 10, v243")
    a("v_and_b32 v242, 1, v242")
    a("v_lshl_add_u32 v243, v242, 9, v243")
    a("v_and_b32 v242, 7, v1")
    a("v_lshl_add_u32 v243, v242, 4, v243")
    a("s_lshl_b32 s3, s41, 2")
    a("s_lshr_b32 s4, s42, 2")
    a("s_add_u32 s5, s3, s4")
    a("s_lshl_b32 s60, s5, 15")
    a("s_and_b32 s4, s42, 3")
    a("s_lshl_b32 s6, s4, 7")
    a("s_add_u32 s60, s60, s6")
    a("s_lshl_b32 s6, s40, 14")
    a("s_add_u32 s60, s60, s6")
    a("s_lshl_b32 s5, s5, 6")
    a("s_lshl_b32 s4, s4, 4")
    a("s_add_u32 s5, s5, s4")
    a("s_lshl_b32 s4, s40, 3")
    a("s_add_u32 s5, s5, s4")
    a(f"s_add_u32 s66, s5, {FX}")

def ln_compute(a, LS):
    X = (216, 224)
    S = 232
    a("v_readfirstlane_b32 s83, v246")
    if E("LNST"): stamp(a, 2)
    for r in range(2):
        for i in range(4):
            a(f"v_lshlrev_b32 v{X[r]+2*i}, 16, v{208+4*r+i}")
            a(f"v_and_b32 v{X[r]+2*i+1}, 0xffff0000, v{208+4*r+i}")
    for r in range(2):
        a(f"v_add_f32 v{S+r}, v{X[r]}, v{X[r]+1}")
        a(f"v_mul_f32 v{S+2+r}, v{X[r]}, v{X[r]}")
    for i in range(1, 8):
        for r in range(2):
            if i >= 2: a(f"v_add_f32 v{S+r}, v{S+r}, v{X[r]+i}")
            a(f"v_fmac_f32 v{S+2+r}, v{X[r]+i}, v{X[r]+i}")
    for off in (0x041F, 0x081F, 0x101F, 0x201F, 0x401F):
        for i in range(4): a(f"ds_swizzle_b32 v{S+4+i}, v{S+i} offset:{off}")
        a("s_waitcnt lgkmcnt(0)")
        for i in range(4): a(f"v_add_f32 v{S+i}, v{S+i}, v{S+4+i}")
    for i in range(4): a(f"v_mov_b32 v{S+4+i}, v{S+i}")
    a("s_nop 1")
    for i in range(4): a(f"v_permlane32_swap_b32 v{S+4+i}, v{S+i}")
    a("s_nop 1")
    for i in range(4): a(f"v_add_f32 v{S+i}, v{S+i}, v{S+4+i}")
    for i in range(4): a(f"v_mul_f32 v{S+i}, {f2h(1.0/512)}, v{S+i}")
    for r in range(2): a(f"v_fma_f32 v{S+2+r}, -v{S+r}, v{S+r}, v{S+2+r}")
    for r in range(2): a(f"v_max_f32 v{S+2+r}, 0, v{S+2+r}")
    def rnd(regs):
        for k, v in enumerate(regs): a(f"v_cvt_pk_bf16_f32 v{S+4+k}, v{v}, v{v}")
        for k, v in enumerate(regs): a(f"v_lshlrev_b32 v{v}, 16, v{S+4+k}")
    rnd((S, S + 1, S + 2, S + 3))
    for r in range(2): a(f"v_add_f32 v{S+2+r}, {f2h(1e-5)}, v{S+2+r}")
    rnd((S + 2, S + 3))
    for r in range(2): a(f"v_sqrt_f32 v{S+2+r}, v{S+2+r}")
    a("s_nop 0")
    rnd((S + 2, S + 3))
    for r in range(2): a(f"v_rcp_f32 v{S+2+r}, v{S+2+r}")
    for r in range(2):
        for i in range(8): a(f"v_sub_f32 v{X[r]+i}, v{X[r]+i}, v{S+r}")
    for r in range(2):
        for i in range(4): a(f"v_cvt_pk_bf16_f32 v{208+4*r+i}, v{X[r]+2*i}, v{X[r]+2*i+1}")
    for r in range(2):
        for i in range(4):
            a(f"v_lshlrev_b32 v{X[r]+2*i}, 16, v{208+4*r+i}")
            a(f"v_and_b32 v{X[r]+2*i+1}, 0xffff0000, v{208+4*r+i}")
    for r in range(2):
        for i in range(8): a(f"v_mul_f32 v{X[r]+i}, v{X[r]+i}, v{S+2+r}")
    for r in range(2):
        for i in range(4): a(f"v_cvt_pk_bf16_f32 v{208+4*r+i}, v{X[r]+2*i}, v{X[r]+2*i+1}")
    a(f"ds_write_b128 v240, v[208:211] offset:{LS}")
    a(f"ds_write_b128 v240, v[212:215] offset:{LS+16}")
    a("s_cmp_lg_u32 s83, 0")
    a("s_cbranch_scc1 ln_have_nonce")
    get_nonce(a, 244)
    a.label("ln_have_nonce")
    a("s_waitcnt lgkmcnt(0)")
    a("s_barrier")
    a("s_cmp_ge_u32 s40, 2")
    a("s_cbranch_scc1 ln_done")
    for q in range(4): a(f"ds_read_b128 v[{208+4*q}:{211+4*q}], v241 offset:{LS+1024*q}")
    a("v_mov_b32 v244, s83")
    a("v_mov_b32 v245, s83")
    for q in range(4):
        a(f"s_waitcnt lgkmcnt({3-q})")
        a(f"buffer_store_dwordx4 v[{208+4*q}:{211+4*q}], v243, s[36:39], s60 offen sc1")
        if q < 3: a("s_add_u32 s60, s60, 4096")
    a("s_waitcnt vmcnt(0)")
    a("s_mov_b64 exec, 1")
    a("buffer_store_dwordx2 v[244:245], v247, s[36:39], s66 offen sc1")
    a("s_mov_b64 exec, -1")

def poll_xn(a, vt):
    a("s_lshl_b32 s43, s41, 2")
    a("s_add_u32 s43, s43, s40")
    a("s_lshl_b32 s4, s41, 8")
    a(f"s_add_u32 s4, s4, {FX}")
    poll(a, "s4", 64, vt)
    a("s_lshl_b32 s70, s43, 15")
    a("s_lshl_b32 s73, s74, 12")
    a("s_add_u32 s72, s70, s73")

def rot_setup(a, add, pitch):
    a("s_and_b32 s10, s41, 7")
    a("s_and_b32 s11, s42, 3")
    a("s_lshl_b32 s11, s11, 1")
    a("s_add_u32 s10, s10, s11")
    if add: a(f"s_add_u32 s10, s10, {add}")
    a("s_and_b32 s74, s10, 7")
    if E("NOROT"): a("s_mov_b32 s74, 0")
    a(f"s_mul_i32 s11, s74, {64*pitch}")
    a("s_add_u32 s64, s64, s11")
    a("s_sub_u32 s67, 8, s74")
def w_wrap(pitch):
    return ["s_sub_u32 s67, s67, 1", "s_cmp_eq_u32 s67, 0", f"s_cselect_b32 s10, {512*pitch}, 0", "s_sub_u32 s64, s64, s10"]
X_ADV = ["s_add_u32 s73, s73, 4096", "s_and_b32 s73, s73, 32767", "s_add_u32 s72, s70, s73"]

def tr_base(a, RW, base):
    a("v_lshrrev_b32 v17, 5, v1")
    a("v_bfe_u32 v18, v1, 2, 2")
    a("v_lshl_add_u32 v18, v17, 3, v18")
    a("v_and_b32 v19, 3, v1")
    a("v_bfe_u32 v20, v1, 4, 1")
    a(f"v_lshlrev_b32 v{RW}, 6, v18")
    a(f"v_lshl_add_u32 v{RW}, v20, 5, v{RW}")
    a(f"v_lshl_add_u32 v{RW}, v19, 3, v{RW}")
    if base: a(f"v_add_u32 v{RW}, {base}, v{RW}")

def gemm1A(a):
    KV, NS = 32768, 12
    VW, VW3, RW, RW2 = 6, 7, 8, 9
    WF, ACC, XN = 16, 64, 112
    srd(a, 48, 18, 512 * 3072)
    a("s_and_b32 s3, s40, 1")
    a("s_lshr_b32 s4, s40, 1")
    a("v_lshrrev_b32 v16, 2, v1")
    a("v_and_b32 v17, 3, v1")
    a(f"v_mul_u32_u24 v{VW}, 3072, v16")
    a(f"v_lshl_add_u32 v{VW}, v17, 4, v{VW}")
    a("s_lshl_b32 s64, s42, 6")
    a(f"s_mul_i32 s5, s3, {16*3072}")
    a("s_add_u32 s64, s64, s5")
    a(f"v_add_u32 v{VW3}, 2048, v{VW}")
    a("s_lshl_b32 s5, s4, 10")
    a(f"v_add_u32 v{VW}, s5, v{VW}")
    a("s_lshl_b32 s6, s3, 10")
    a(f"s_add_u32 s69, s6, {KV+2048}")
    a("s_lshl_b32 s5, s4, 15")
    a("s_add_u32 s68, s5, s6")
    a("s_cmp_eq_u32 s4, 0")
    a("s_cselect_b32 s14, -1, 0")
    a("s_cselect_b32 s15, 0, -1")
    a(f"s_cselect_b32 s66, 0, {NS*4096}")
    a("s_movk_i32 s65, 2048")
    a("s_lshl_b32 s65, s65, s4")
    rot_setup(a, 1, 3072)
    def loadW(st):
        if st == NS: a("s_sub_u32 s68, s68, s66")
        a("s_mov_b32 m0, s68")
        a("s_add_u32 s68, s68, s65")
        a(f"buffer_load_dwordx4 v{VW}, s[48:51], s64 offen lds")
        a(f"s_add_u32 m0, s69, {(st % NS)*4096}")
        a("s_mov_b64 exec, s[14:15]")
        a(f"buffer_load_dwordx4 v{VW3}, s[48:51], s64 offen lds")
        a("s_mov_b64 exec, -1")
        a(f"s_add_u32 s64, s64, {32*3072}")
        if st % 2 == 1:
            for i in w_wrap(3072): a(i)
    tr_base(a, RW, 0)
    a(f"v_add_u32 v{RW2}, {KV}, v{RW}")
    for i in range(48): a(f"v_mov_b32 v{ACC+i}, 0")
    a("v_lshlrev_b32 v2, 4, v1")
    W0 = int(E("W0", "0"))
    for st in range(W0): loadW(st)
    get_nonce(a, 240)
    for st in range(W0, NS): loadW(st)
    poll_xn(a, 240)
    stamp(a, 1)
    XA = int(E("XA", "12"))
    q = VMQ(a)
    def loadX(ks):
        if ks and ks % 4 == 0:
            for i in X_ADV: a(i)
        a(f"buffer_load_dwordx4 v[{XN+4*ks}:{XN+4*ks+3}], v2, s[36:39], s72 offen offset:{(ks%4)*1024} sc1")
        q.issue(("x", ks))
    for ks in range(XA): loadX(ks)
    def rd(ks):
        st, kk = ks // 2, ks % 2
        o = (st % NS) * 4096 + kk * 1024
        out = []
        for u in range(2):
            r = WF + (ks % 4) * 8 + u * 4
            out.append(f"ds_read_b64_tr_b16 v[{r}:{r+1}], v{RW2} offset:{o+u*2048}")
            out.append(f"ds_read_b64_tr_b16 v[{r+2}:{r+3}], v{RW2} offset:{o+u*2048+256}")
        return out
    for i in rd(0) + rd(1): a(i)
    for ks in range(32):
        if ks == 10:
            a("s_barrier")
            for st in range(NS, 16):
                loadW(st); q.issue("w"); q.issue("w")
        if ks + XA < 32: loadX(ks + XA)
        if ks == 22:
            q.wait(["w", ("x", ks)])
            a("s_barrier")
        else:
            q.wait([("x", ks)])
        a(f"s_waitcnt lgkmcnt({4 if ks < 31 else 0})")
        RL = rd(ks + 2) if ks + 2 < 32 else []
        x, w = XN + 4 * ks, WF + (ks % 4) * 8
        mfma(a, ACC + 16, w, x, ACC + 16)
        for i in RL[:2]: a(i)
        mfma(a, ACC + 32, x, w + 4, ACC + 32)
        for i in RL[2:]: a(i)
    stamp(a, 2)
    def rdq(ks):
        r = 48 + (ks % 4) * 4
        a(f"ds_read_b64_tr_b16 v[{r}:{r+1}], v{RW} offset:{ks*1024}")
        a(f"ds_read_b64_tr_b16 v[{r+2}:{r+3}], v{RW} offset:{ks*1024+256}")
    for ks in range(3): rdq(ks)
    P = 16
    a("v_lshrrev_b32 v11, 5, v1")
    a("v_lshlrev_b32 v12, 4, v1")
    a("v_bfe_u32 v13, v1, 4, 1")
    a("v_lshlrev_b32 v13, 16, v13")
    a("v_lshl_add_u32 v13, v11, 8, v13")
    a("v_and_b32 v14, 15, v1")
    a("v_lshl_add_u32 v13, v14, 4, v13")
    a("s_lshl_b32 s3, s42, 17")
    a("s_lshl_b32 s4, s43, 10")
    a("s_add_u32 s3, s3, s4")
    a(f"s_add_u32 s6, s3, {WS_KH}")
    a(f"s_add_u32 s7, s3, {WS_KH+65536}")
    a(f"s_add_u32 s8, s3, {WS_VT}")
    for i in range(8): a(f"v_cvt_pk_bf16_f32 v{P+8+i}, v{ACC+16+2*i}, v{ACC+17+2*i}")
    a(f"buffer_store_dwordx4 v[{P+8}:{P+11}], v12, s[36:39], s6 offen sc1")
    a(f"buffer_store_dwordx4 v[{P+12}:{P+15}], v12, s[36:39], s7 offen sc1")
    for i in range(8): a(f"v_cvt_pk_bf16_f32 v{P+16+i}, v{ACC+32+2*i}, v{ACC+33+2*i}")
    a(f"buffer_store_dwordx4 v[{P+16}:{P+19}], v13, s[36:39], s8 offen sc1")
    a(f"buffer_store_dwordx4 v[{P+20}:{P+23}], v13, s[36:39], s8 offen offset:512 sc1")
    a("s_lshl_b32 s4, s42, 8")
    a("s_lshl_b32 s5, s43, 2")
    a("s_add_u32 s4, s4, s5")
    a(f"s_add_u32 s4, s4, {F1}")
    a(f"s_mov_b32 s9, {f2h(QSCALE)}")
    for ks in range(32):
        if ks == 14:
            publish(a, "s4", 240)
            stamp(a, 3)
        if ks + 3 < 32: rdq(ks + 3)
        a(f"s_waitcnt lgkmcnt({2*min(3, 31-ks)})")
        mfma(a, ACC, 48 + (ks % 4) * 4, XN + 4 * ks, ACC)
    QL = KV + 5 * 4096
    a("s_lshl_b32 s3, s40, 11")
    a("v_add_u32 v14, s3, v12")
    a.nop(12)
    for i in range(16): a(f"v_mul_f32 v{ACC+i}, s9, v{ACC+i}")
    for i in range(8): a(f"v_cvt_pk_bf16_f32 v{P+i}, v{ACC+2*i}, v{ACC+2*i+1}")
    a(f"ds_write_b128 v14, v[{P}:{P+3}] offset:{QL}")
    a(f"ds_write_b128 v14, v[{P+4}:{P+7}] offset:{QL+1024}")
    a("s_waitcnt lgkmcnt(0)")
    a("s_barrier")
    return QL

def gemm1B(a):
    NU, R, PITCH, SB, NLD = 7, 4, 3584, 14336, 6
    VW, VW3, RW, RM, RM2 = 6, 7, 8, 9, 10
    XN, WF, ACC = 12, 44, 100
    ln_load(a)
    a("s_and_b32 s3, s40, 1")
    a("s_lshr_b32 s4, s40, 1")
    a("v_lshrrev_b32 v16, 2, v1")
    a("v_and_b32 v17, 3, v1")
    a(f"v_mul_u32_u24 v{VW}, {PITCH}, v16")
    a(f"v_lshl_add_u32 v{VW}, v17, 4, v{VW}")
    a("s_cmp_eq_u32 s4, 0")
    a("s_cselect_b32 s48, s24, s26")
    a("s_cselect_b32 s49, s25, s27")
    a(f"s_mov_b32 s50, {512*3584}")
    a("s_mov_b32 s51, 0x00020000")
    a("s_mul_i32 s64, s42, 224")
    a(f"s_mul_i32 s5, s3, {16*PITCH}")
    a("s_add_u32 s64, s64, s5")
    a("s_lshl_b32 s5, s4, 11")
    a("s_lshl_b32 s6, s3, 10")
    a("s_add_u32 s68, s5, s6")
    a("s_lshl_b32 s5, s4, 10")
    a("s_add_u32 s5, s5, 12288")
    a("s_add_u32 s6, s68, 8192")
    a("s_cmp_eq_u32 s3, 0")
    a("s_cselect_b32 s71, s5, s6")
    a("s_cselect_b64 s[14:15], -1, 1")
    a("s_and_b32 s7, s42, 1")
    a("s_lshl_b32 s8, s7, 5")
    a(f"v_add_u32 v{VW}, s8, v{VW}")
    a("s_cmp_eq_u32 s7, 0")
    a("s_cselect_b32 s8, 192, 0")
    a("v_lshrrev_b32 v18, 1, v1")
    a("s_lshl_b32 s9, s4, 2")
    a("v_xor_b32 v18, s9, v18")
    a(f"v_mul_u32_u24 v18, {PITCH}, v18")
    a("v_and_b32 v19, 1, v1")
    a("v_lshl_add_u32 v18, v19, 4, v18")
    a("v_add_u32 v18, s8, v18")
    a(f"v_add_u32 v19, 128, v{VW}")
    a("s_cmp_eq_u32 s3, 0")
    a("s_cselect_b64 vcc, -1, 0")
    a(f"v_cndmask_b32 v{VW3}, v19, v18, vcc")
    def wlist(slot):
        o = slot * SB
        g = []
        for i in range(3):
            g.append(([f"s_add_u32 m0, s68, {o+i*(4096-64)}"], f"buffer_load_dwordx4 v{VW}, s[48:51], s64 offen offset:{64*i} lds", []))
        g.append(([f"s_add_u32 m0, s71, {o}"], f"s_mov_b64 exec, s[14:15]\nbuffer_load_dwordx4 v{VW3}, s[48:51], s64 offen lds\ns_mov_b64 exec, -1",
                  [f"s_add_u32 s64, s64, {32*PITCH}"] + (w_wrap(PITCH) if slot % 2 == 1 else [])))
        return g
    def xlist(slot):
        g = []
        for kk in range(2):
            r = XN + (2 * slot + kk) * 4
            g.append(([], f"buffer_load_dwordx4 v[{r}:{r+3}], v2, s[36:39], s72 offen offset:{((2*slot+kk)%4)*1024} sc1",
                      X_ADV if (kk == 1 and slot % 2 == 1) else []))
        return g
    def emit(g):
        for pre, ins, post in g:
            for i in pre: a(i)
            if pre: a("s_nop 0")
            a(ins)
            for i in post: a(i)
    rot_setup(a, 0, PITCH)
    ln_addr(a)
    a("s_waitcnt vmcnt(0)")
    ln_compute(a, 3 * SB)
    for st in range(R - 1):
        for i in wlist(st)[3][2]: a(i)
    a("s_branch g1B_pro")
    a.label("ln_done")
    srd(a, 52, 24, 512 * 3584)
    a("v_lshrrev_b32 v18, 1, v1")
    a(f"v_mul_u32_u24 v18, {PITCH}, v18")
    a("v_and_b32 v20, 1, v1")
    a("v_lshl_add_u32 v18, v20, 4, v18")
    a("v_add_u32 v18, s8, v18")
    a("s_sub_u32 s69, s68, 2048")
    a("s_add_u32 s6, s69, 8192")
    a("s_and_b32 s3, s40, 1")
    a("s_cmp_eq_u32 s3, 0")
    a("s_cselect_b32 s70, 12288, s6")
    a("s_cselect_b64 vcc, -1, 0")
    a("v_cndmask_b32 v11, v19, v18, vcc")
    for st in range(R - 1):
        o = st * SB
        for i in range(3):
            a(f"s_add_u32 m0, s69, {o+i*(4096-64)}")
            a("s_nop 0")
            a(f"buffer_load_dwordx4 v{VW}, s[52:55], s64 offen offset:{64*i} lds")
        a(f"s_add_u32 m0, s70, {o}")
        a("s_mov_b64 exec, s[14:15]")
        a("buffer_load_dwordx4 v11, s[52:55], s64 offen lds")
        a("s_mov_b64 exec, -1")
        emit(wlist(st))
    if E("WPF"):
        a("v_min_u32 v18, 55, v1")
        a("v_lshlrev_b32 v18, 4, v18")
        a("s_bfe_u32 s3, s2, 0x20001")
        a("s_mul_i32 s3, s3, 896")
        a("s_bfe_u32 s4, s2, 0x50003")
        a(f"s_mul_i32 s4, s4, {16*PITCH}")
        a("s_add_u32 s3, s3, s4")
        a("s_cmp_eq_u32 s40, 3")
        a("s_cselect_b32 s52, s48, s52")
        a("s_cselect_b32 s53, s49, s53")
        for r_ in range(16):
            a("buffer_load_dwordx4 v[248:251], v18, s[52:55], s3 offen")
            if r_ < 15: a(f"s_add_u32 s3, s3, {PITCH}")
    a.label("g1B_pro")
    stamp(a, 1)
    if E("LNONLY"): a("s_endpgm")
    tr_base(a, RW, 0)
    a("v_lshlrev_b32 v21, 2, v20")
    a("v_xor_b32 v21, v21, v18")
    a(f"v_lshlrev_b32 v{RM}, 5, v21")
    a(f"v_lshl_add_u32 v{RM}, v20, 10, v{RM}")
    a(f"v_lshl_add_u32 v{RM}, v19, 3, v{RM}")
    a(f"v_add_u32 v{RM}, 12288, v{RM}")
    a(f"v_xor_b32 v{RM2}, 128, v{RM}")
    for i in range(NU * 16): a(f"v_mov_b32 v{ACC+i}, 0")
    a(f"s_setprio {E('PB1', '0')}")
    poll_xn(a, 240)
    for st in range(R - 1): emit(xlist(st))
    def rd_w(kk, slot, u):
        b, o = WF + kk * 28 + u * 4, slot * SB
        if u == 6:
            return [f"ds_read_b64_tr_b16 v[{b}:{b+1}], v{RM} offset:{o+kk*512}", f"ds_read_b64_tr_b16 v[{b+2}:{b+3}], v{RM2} offset:{o+kk*512}"]
        return [f"ds_read_b64_tr_b16 v[{b}:{b+1}], v{RW} offset:{o+u*2048+kk*1024}", f"ds_read_b64_tr_b16 v[{b+2}:{b+3}], v{RW} offset:{o+u*2048+kk*1024+256}"]
    def body(slot, ld, vmw, last=False):
        LL = (wlist((slot + 3) % 4) + xlist((slot + 3) % 4)) if ld else []
        li = 0
        for kk in range(2):
            if kk == 1 and not last:
                a(f"s_waitcnt vmcnt({vmw})")
                a("s_barrier")
            x = XN + (2 * slot + kk) * 4
            for u in range(NU):
                nxt = rd_w(1, slot, u) if kk == 0 else ([] if last else rd_w(0, (slot + 1) % 4, u))
                if u % 2 == 0:
                    rest = max(0, 2 * (NU - 2 - u))
                    a(f"s_waitcnt lgkmcnt({rest + (2*u if (kk == 0 or not last) else 0)})")
                l = LL[li] if (ld and kk == 1 and u >= 1) else None
                if l:
                    for i in l[0]: a(i)
                mfma(a, ACC + u * 16, WF + kk * 28 + u * 4, x, ACC + u * 16)
                for i in nxt: a(i)
                if l:
                    a(l[1])
                    for i in l[2]: a(i)
                    li += 1
    stamp(a, 3 if E("BSTAMP") else 7)
    if E("LNST"):
        dump_stamps(a, 6)
        a("s_endpgm")
    a0 = a
    class Filt:
        def __call__(self, s):
            if E("NODMA") and " lds" in s: return
            if E("NOX") and "sc1" in s: return
            if E("NOMFMA") and "v_mfma" in s: return
            if E("NOWRD") and "ds_read_b64_tr" in s: return
            if E("NOBAR") and "s_barrier" in s: return
            a0(s)
        def __getattr__(self, n): return getattr(a0, n)
    a = Filt()
    a("s_waitcnt vmcnt(4)")
    a("s_barrier")
    for u in range(NU):
        for i in rd_w(0, 0, u): a(i)
    body(0, True, 2)
    body(1, True, NLD)
    body(2, True, NLD)
    body(3, True, NLD)
    if E("BITER"):
        stamp(a, 4)
        for it in range(2):
            for slot in range(4): body(slot, True, NLD)
            stamp(a, 5 + it)
    else:
        a("s_mov_b32 s75, 2")
        a.raw(".p2align 6")
        a.label("g1B_loop")
        for slot in range(4): body(slot, True, NLD)
        a("s_sub_u32 s75, s75, 1")
        a("s_cmp_lg_u32 s75, 0")
        a("s_cbranch_scc1 g1B_loop")
    body(0, True, NLD)
    body(1, False, NLD)
    body(2, False, 0)
    body(3, False, 0, last=True)
    a = a0
    stamp(a, 2)
    a("s_barrier")
    return lambda: gemm1B_epilogue(a, ACC)

def gemm1B_epilogue(a, ACC):
    T, P = 212, 44
    a("v_lshlrev_b32 v2, 4, v1")
    a("s_mul_i32 s3, s43, 144")
    a("s_mul_i32 s4, s42, 7")
    a("s_add_u32 s3, s3, s4")
    a("s_add_u32 s3, s3, 32")
    a("s_and_b32 s7, s42, 1")
    a("s_add_u32 s4, s3, s7")
    a("s_cmp_eq_u32 s7, 0")
    a("s_cselect_b32 s5, 6, 0")
    a("s_add_u32 s5, s3, s5")
    a("s_lshl_b32 s4, s4, 10")
    a(f"s_add_u32 s4, s4, {WS_AF}")
    a("s_lshl_b32 s5, s5, 10")
    a(f"s_add_u32 s5, s5, {WS_AF}")
    a(f"s_add_u32 s6, s4, 4096")
    a(f"s_mov_b32 s9, {f2h(-LOG2E)}")
    a("s_mov_b32 s8, s9")
    a("s_mov_b32 s10, 1.0")
    a("s_mov_b32 s11, 1.0")
    pr = lambda r: f"v[{r}:{r+1}]"
    def silu_mul(g, u_, n, dst):
        for i in range(0, n, 2): a(f"v_pk_mul_f32 {pr(T+i)}, {pr(g+i)}, s[8:9]")
        for i in range(n): a(f"v_exp_f32 v{T+i}, v{T+i}")
        for i in range(0, n, 2): a(f"v_pk_mul_f32 {pr(g+i)}, {pr(g+i)}, {pr(u_+i)}")
        for i in range(0, n, 2): a(f"v_pk_add_f32 {pr(T+i)}, {pr(T+i)}, s[10:11]")
        for i in range(n): a(f"v_rcp_f32 v{T+i}, v{T+i}")
        a("s_nop 0")
        for i in range(0, n, 2): a(f"v_pk_mul_f32 {pr(g+i)}, {pr(g+i)}, {pr(T+i)}")
        for i in range(n // 2): a(f"v_cvt_pk_bf16_f32 v{dst+i}, v{g+2*i}, v{g+2*i+1}")
    NHI = int(E("NHI", "0"))
    if NHI: a("s_setprio 2")
    for p in range(3):
        if NHI and p == NHI: a("s_setprio 0")
        silu_mul(ACC + 32 * p, ACC + 32 * p + 16, 16, P + 8 * p)
        so, im = ("s4", 2048 * p) if p < 2 else ("s6", 0)
        a(f"buffer_store_dwordx4 v[{P+8*p}:{P+8*p+3}], v2, s[36:39], {so} offen offset:{im} sc1")
        a(f"buffer_store_dwordx4 v[{P+8*p+4}:{P+8*p+7}], v2, s[36:39], {so} offen offset:{im+1024} sc1")
    if NHI == 3: a("s_setprio 0")
    silu_mul(ACC + 96, ACC + 104, 8, P + 24)
    a(f"buffer_store_dwordx4 v[{P+24}:{P+27}], v2, s[36:39], s5 offen sc1")
    a("s_lshl_b32 s4, s43, 6")
    a("s_lshl_b32 s5, s42, 2")
    a("s_add_u32 s4, s4, s5")
    a(f"s_add_u32 s4, s4, {FH}")
    publish(a, "s4", T)
    stamp(a, 3)

RESCALE_T = 30
BIAS = 80
def attention(a, QL):
    name = "at"
    Q = {"A": 4, "B": 8}
    NEG = {"A": 16, "B": 32}
    S = {"A": 48, "B": 64}
    O = {"A": 80, "B": 96}
    P = {"A": 112, "B": 120}
    RING, T0 = 128, 160
    NR = 2
    TP = 2112
    GB = 8 * TP
    Kf = lambda s: RING + 12 * s
    V0 = lambda s: RING + 12 * s + 4
    V1 = lambda s: RING + 12 * s + 8
    AK, AV0, AV1, VD = 2, 3, 12, 13
    mf = lambda d, x, y, c: mfma(a, d, x, y, c)
    a(f"v_mov_b32 v{VD}, v12")
    a("s_lshr_b32 s3, s40, 1")
    a("s_lshl_b32 s60, s42, 1")
    a("s_add_u32 s60, s60, s3")
    a("s_cmp_eq_u32 s3, 0")
    a("s_cselect_b64 vcc, -1, 0")
    for i in range(4): a(f"v_cndmask_b32 v{Kf(1)+i}, v{28+i}, v{24+i}, vcc")
    a("s_and_b32 s4, s40, 1")
    a("s_lshl_b32 s61, s41, 1")
    a("s_add_u32 s61, s61, s4")
    a("s_lshl_b32 s5, s4, 12")
    a("s_lshl_b32 s6, s3, 10")
    a("s_add_u32 s5, s5, s6")
    a(f"v_add_u32 v2, s5, v{VD}")
    a(f"ds_read_b128 v[{Q['A']}:{Q['A']+3}], v2 offset:{QL}")
    a(f"ds_read_b128 v[{Q['B']}:{Q['B']+3}], v2 offset:{QL+2048}")
    a("s_lshl_b32 s5, s60, 16")
    a(f"s_add_u32 s5, s5, {WS_KH}")
    a("s_add_u32 s44, s34, s5")
    a("s_addc_u32 s45, s35, 0")
    a("s_mov_b32 s46, 65536")
    a("s_mov_b32 s47, 0x00020000")
    a(f"s_add_u32 s48, s44, {WS_VT-WS_KH}")
    a("s_addc_u32 s49, s45, 0")
    a("s_mov_b32 s50, 65536")
    a("s_mov_b32 s51, 0x00020000")
    a("s_cmp_eq_u32 s4, 0")
    a("s_cselect_b32 s52, s44, s48")
    a("s_cselect_b32 s53, s45, s49")
    a("s_mov_b32 s54, 65536")
    a("s_mov_b32 s55, 0x00020000")
    a(f"s_mul_i32 s70, s3, {2*GB}")
    a("s_lshl_b32 s71, s4, 10")
    a("s_add_u32 s71, s71, s70")
    a("v_and_b32 v14, 31, v1")
    a("v_lshrrev_b32 v15, 5, v1")
    a(f"v_add_u32 v{AK}, s70, v{VD}")
    a(f"v_lshlrev_b32 v{AV0}, 8, v15")
    a(f"v_lshl_add_u32 v{AV0}, v14, 4, v{AV0}")
    a(f"v_add_u32 v{AV0}, 1024, v{AV0}")
    a(f"v_add_u32 v{AV1}, 512, v{AV0}")
    a(f"v_mov_b32 v{T0}, 2064")
    a(f"v_mov_b32 v{T0+1}, 2048")
    a("v_cmp_eq_u32 vcc, 16, v14")
    a(f"v_mov_b32 v{T0+4}, 0x3f803f80")
    a(f"v_and_b32 v{T0+2}, 1, v1")
    a(f"v_cndmask_b32 v{T0}, v{T0}, v{T0+1}, vcc")
    a("v_cmp_gt_u32 vcc, 16, v14")
    a(f"v_lshrrev_b32 v{T0+3}, 1, v1")
    a(f"v_mul_u32_u24 v{T0+3}, {TP}, v{T0+3}")
    a(f"v_cndmask_b32 v{AV0}, v{T0}, v{AV0}, vcc")
    a(f"v_cndmask_b32 v{AV1}, v{T0}, v{AV1}, vcc")
    a(f"v_add_u32 v{AV0}, s70, v{AV0}")
    a(f"v_add_u32 v{AV1}, s70, v{AV1}")
    a(f"v_cmp_eq_u32 vcc, 0, v{T0+2}")
    a(f"v_lshl_add_u32 v{T0+3}, v{T0+2}, 4, v{T0+3}")
    a("s_lshl_b32 s4, s42, 8")
    a(f"v_cndmask_b32 v{T0+4}, 0, v{T0+4}, vcc")
    for i in range(1, 4): a(f"v_mov_b32 v{T0+4+i}, v{T0+4}")
    for X in "AB":
        for i in range(16): a(f"v_mov_b32 v{O[X]+i}, 0")
        for i in range(8): a(f"v_mov_b32 v{P[X]+i}, 0")
    for i in range(4): a(f"v_mov_b32 v{V1(1)+i}, 0")
    a(f"s_mov_b32 s64, {f2h(2.0**RESCALE_T)}")
    a("s_mov_b32 s65, 0")
    a(f"s_add_u32 s4, s4, {F1}")
    a("s_waitcnt lgkmcnt(0)")
    a("s_barrier")
    a(f"ds_write_b128 v{T0+3}, v[{T0+4}:{T0+7}] offset:2048")
    for X in "AB": mf(S[X], Kf(1), Q[X], None)
    a.nop(14)
    for X in "AB":
        m = T0 + 8
        a(f"v_max3_f32 v{m}, v{S[X]}, v{S[X]+1}, v{S[X]+2}")
        for i in range(3, 15, 2):
            a(f"v_max3_f32 v{m}, v{m}, v{S[X]+i}, v{S[X]+i+1}")
        a(f"v_max_f32 v{m}, v{m}, v{S[X]+15}")
        a(f"v_mov_b32 v{m+1}, v{m}")
        a("s_nop 1")
        a(f"v_permlane32_swap_b32 v{m+1}, v{m}")
        a("s_nop 1")
        a(f"v_max_f32 v{m}, v{m}, v{m+1}")
        for i in range(16):
            a(f"v_sub_f32 v{NEG[X]+i}, {f2h(-float(BIAS))}, v{m}")
    poll(a, "s4", 64, T0)
    stamp(a, 4)
    a("s_setprio 1")
    a("s_and_b32 s66, s41, 7")
    a("s_lshl_b32 s66, s66, 13")
    def dma(t, bufoff):
        a(f"s_add_u32 m0, {bufoff}, {t*TP - (t%4)*1024}")
        return f"buffer_load_dwordx4 v{VD}, s[52:55], {'s66' if t < 4 else 's68'} offen offset:{(t%4)*1024} sc1 lds"
    def next_group():
        a("s_add_u32 s66, s66, 8192")
        a("s_and_b32 s66, s66, 65535")
    a(f"s_add_u32 s72, s71, {GB}")
    a("s_add_u32 s68, s66, 4096")
    for t in range(8):
        i = dma(t, "s71")
        a("s_nop 0")
        a(i)
    next_group()
    a("s_add_u32 s68, s66, 4096")
    i = dma(0, "s72")
    a("s_nop 0")
    a(i)
    a("s_waitcnt vmcnt(1) lgkmcnt(0)")
    a("s_barrier")
    def reads(slot, t):
        a(f"ds_read_b128 v[{Kf(slot)}:{Kf(slot)+3}], v{AK} offset:{t*TP}")
        a(f"ds_read_b128 v[{V0(slot)}:{V0(slot)+3}], v{AV0} offset:{t*TP}")
        a(f"ds_read_b128 v[{V1(slot)}:{V1(slot)+3}], v{AV1} offset:{t*TP}")
    reads(0, 0)
    a("s_waitcnt lgkmcnt(0)")
    mf(S["A"], Kf(0), Q["A"], NEG["A"])
    a("s_mov_b32 s67, 8")
    a(f"s_mov_b32 s73, {GB}")
    a("s_and_b32 s74, s41, 7")
    a("s_add_u32 s74, s74, 2")
    a.nop(8)
    if E("ATST"): stamp(a, 4)
    a.raw(".p2align 6")
    a.label(f"{name}_loop")
    def half(X, tt):
        Y = "B" if X == "A" else "A"
        x, p = S[X], P[X]
        e = lambda i: a(f"v_exp_f32 v{x+i}, v{x+i}")
        c = lambda i: a(f"v_cvt_pk_bf16_f32 v{p+i}, v{x+2*i}, v{x+2*i+1}")
        e(0); e(1)
        ty = (tt - 1) % NR if X == "A" else tt % NR
        mf(O[Y], V1(ty), P[Y] + 4, O[Y])
        if X == "A":
            if tt == 7:
                a("s_waitcnt vmcnt(0)")
                a("s_barrier")
                a(f"v_add_u32 v{AK}, s73, v{AK}")
                a(f"v_add_u32 v{AV0}, s73, v{AV0}")
                a(f"v_add_u32 v{AV1}, s73, v{AV1}")
                a("s_sub_u32 s73, 0, s73")
                a("s_and_b32 s66, s74, 7")
                a("s_lshl_b32 s66, s66, 13")
                a("s_cmp_gt_u32 s67, 2")
                a("s_cselect_b32 s66, s66, s75")
                a("s_add_u32 s68, s66, 4096")
                a("s_add_u32 s74, s74, 1")
                reads((tt + 1) % NR, 0)
            else:
                reads((tt + 1) % NR, tt + 1)
        d = None
        k = {("B", 7): 0, ("A", 0): 1, ("B", 0): 2, ("A", 1): 3, ("B", 1): 4, ("A", 2): 5, ("B", 2): 6, ("A", 3): 7}.get((X, tt))
        e(2); e(3); c(0)
        if k is not None: d = dma(k, "s71" if k == 0 else "s72")
        e(4)
        if d: a(d)
        e(5); c(1)
        if X == "B":
            a("s_waitcnt lgkmcnt(0)")
        tk = tt % NR if X == "A" else (tt + 1) % NR
        mf(S[Y], Kf(tk), Q[Y], NEG[Y])
        e(6); e(7); c(2); e(8); c(3); e(9); e(10)
        mf(O[X], V0(tt % NR), p, O[X])
        c(4); e(11); e(12); c(5); e(13); e(14); e(15); c(6); c(7)
        if (X == "A" and tt == 5) or (X == "B" and tt == 5):
            a(f"v_cmp_nge_f32 vcc, s64, v{O[Y]+8}")
            a(f"s_cbranch_vccnz {name}_rare{Y}")
            a.label(f"{name}_ret{Y}")
    a("s_brev_b32 s75, 1")
    a0 = a
    class Filt:
        def __call__(self, s):
            if E("ATNOBAR") and "s_barrier" in s: return
            if E("ATNODMA") and " lds" in s: return
            if E("ATNORD") and "ds_read" in s: return
            if E("ATNOCHK") and ("v_cmp_nge" in s or "vccnz" in s): return
            a0(s)
        def __getattr__(self, n): return getattr(a0, n)
    a = Filt()
    for tt in range(8):
        half("A", tt)
        half("B", tt)
    a = a0
    a("s_mov_b32 s3, s71")
    a("s_mov_b32 s71, s72")
    a("s_mov_b32 s72, s3")
    a("s_sub_u32 s67, s67, 1")
    a("s_cmp_lg_u32 s67, 0")
    a(f"s_cbranch_scc1 {name}_loop")
    a("s_nop 1")
    mf(O["B"], V1(1), P["B"] + 4, O["B"])
    a("s_cmp_lg_u32 s65, 0")
    a(f"s_cbranch_scc1 {name}_safe")
    a.label(f"{name}_fin")
    stamp(a, 5)
    a.nop(14)
    a("s_mul_i32 s4, s61, 288")
    a("s_add_u32 s4, s4, s60")
    a("s_lshl_b32 s4, s4, 10")
    a(f"s_add_u32 s4, s4, {WS_AF}")
    a(f"s_add_u32 s5, s4, {144*1024}")
    a("v_lshlrev_b32 v12, 4, v1")
    for X in "AB":
        l = O[X] + 8
        a(f"v_mov_b32 v{T0}, v{l}")
        a("s_nop 1")
        a(f"v_permlane32_swap_b32 v{T0}, v{l}")
        a("s_nop 1")
        a(f"v_mul_f32 v{T0+2+(X=='B')}, 0, v{T0}")
        a(f"v_rcp_f32 v{T0}, v{T0}")
        a("s_nop 0")
        for i in range(8):
            a(f"v_mul_f32 v{O[X]+i}, v{O[X]+i}, v{T0}")
        for i in range(4):
            a(f"v_cvt_pk_bf16_f32 v{P[X]+i}, v{O[X]+2*i}, v{O[X]+2*i+1}")
        a(f"buffer_store_dwordx4 v[{P[X]}:{P[X]+3}], v12, s[36:39], {'s4' if X=='A' else 's5'} offen sc1")
    for X in "AB":
        for i in range(8):
            a(f"v_fma_f32 v{T0+2+(X=='B')}, v{O[X]+i}, 0, v{T0+2+(X=='B')}")
    a(f"v_cmp_u_f32 vcc, v{T0+2}, v{T0+3}")
    a("s_cmp_eq_u32 s65, 0")
    a("s_cselect_b64 s[4:5], vcc, 0")
    a("s_cmp_lg_u64 s[4:5], 0")
    a(f"s_cbranch_scc1 {name}_safe")
    a("s_lshl_b32 s4, s61, 7")
    a("s_lshl_b32 s5, s60, 2")
    a("s_add_u32 s4, s4, s5")
    a(f"s_add_u32 s4, s4, {FO}")
    publish(a, "s4", T0)
    dump_stamps(a, 6)
    a("s_endpgm")
    for Y in "AB":
        a.label(f"{name}_rare{Y}")
        a.nop(16)
        l = O[Y] + 8
        a(f"v_mov_b32 v{T0+2}, 0x207")
        a(f"v_cmp_class_f32 vcc, v{l}, v{T0+2}")
        a("s_cmp_lg_u64 vcc, 0")
        a("s_cselect_b32 s65, 1, s65")
        a(f"s_cbranch_scc1 {name}_ret{Y}")
        a(f"v_frexp_exp_i32_f32 v{T0}, v{l}")
        a(f"v_add_u32 v{T0}, {BIAS}, v{T0}")
        a(f"v_max_i32 v{T0}, 0, v{T0}")
        a(f"v_mov_b32 v{T0+1}, v{T0}")
        a("s_nop 1")
        a(f"v_permlane32_swap_b32 v{T0}, v{T0+1}")
        a("s_nop 1")
        a(f"v_cvt_f32_i32 v{T0+1}, v{T0}")
        a(f"v_sub_u32 v{T0}, 0, v{T0}")
        for i in range(9): a(f"v_ldexp_f32 v{O[Y]+i}, v{O[Y]+i}, v{T0}")
        for i in range(16): a(f"v_sub_f32 v{NEG[Y]+i}, v{NEG[Y]+i}, v{T0+1}")
        for i in range(16): a(f"v_sub_f32 v{S[Y]+i}, v{S[Y]+i}, v{T0+1}")
        a("s_nop 1")
        a(f"s_branch {name}_ret{Y}")
    a.label(f"{name}_safe")
    a("s_waitcnt vmcnt(0) lgkmcnt(0)")
    a.nop(16)
    a("s_mov_b32 s65, 2")
    a("v_and_b32 v14, 31, v1")
    a("v_lshrrev_b32 v15, 5, v1")
    a("v_lshlrev_b32 v3, 8, v15")
    a("v_lshl_add_u32 v3, v14, 4, v3")
    a("v_mov_b32 v15, 0x3f803f80")
    a("v_cmp_eq_u32 vcc, 16, v14")
    a("s_mov_b32 s62, 0x0000ffff")
    a("s_mov_b32 s63, 0x0000ffff")
    a("v_cndmask_b32 v15, 0, v15, vcc")
    for i in range(8): a(f"v_mov_b32 v{V0(0)+i}, v15")
    def loads(slot, soff, imm):
        a(f"buffer_load_dwordx4 v[{Kf(slot)}:{Kf(slot)+3}], v{VD}, s[44:47], {soff} offen offset:{imm} sc1")
        a("s_mov_b64 exec, s[62:63]")
        a(f"buffer_load_dwordx4 v[{V0(slot)}:{V0(slot)+3}], v3, s[48:51], {soff} offen offset:{imm} sc1")
        a(f"buffer_load_dwordx4 v[{V1(slot)}:{V1(slot)+3}], v3, s[48:51], {soff} offen offset:{imm+512} sc1")
        a("s_mov_b64 exec, -1")
    M = {"A": NEG["A"], "B": NEG["B"]}
    for X in "AB":
        for i in range(16): a(f"v_mov_b32 v{O[X]+i}, 0")
        a(f"v_mov_b32 v{M[X]}, 0xff800000")
    a("s_mov_b32 s66, 0")
    a("s_mov_b32 s67, 64")
    a.label(f"{name}_sloop")
    loads(0, "s66", 0)
    a("s_waitcnt vmcnt(0)")
    for X in "AB":
        mf(S[X], Kf(0), Q[X], None)
    a.nop(16)
    for X in "AB":
        x, p, m = S[X], P[X], M[X]
        a(f"v_max3_f32 v{T0}, v{x}, v{x+1}, v{x+2}")
        for i in range(3, 15, 2):
            a(f"v_max3_f32 v{T0}, v{T0}, v{x+i}, v{x+i+1}")
        a(f"v_max_f32 v{T0}, v{T0}, v{x+15}")
        a(f"v_mov_b32 v{T0+1}, v{T0}")
        a("s_nop 1")
        a(f"v_permlane32_swap_b32 v{T0+1}, v{T0}")
        a("s_nop 1")
        a(f"v_max3_f32 v{T0}, v{T0}, v{T0+1}, v{m}")
        a(f"v_sub_f32 v{T0+1}, v{m}, v{T0}")
        a(f"v_exp_f32 v{T0+1}, v{T0+1}")
        a(f"v_mov_b32 v{m}, v{T0}")
        for i in range(9): a(f"v_mul_f32 v{O[X]+i}, v{O[X]+i}, v{T0+1}")
        for i in range(16): a(f"v_sub_f32 v{x+i}, v{x+i}, v{T0}")
        for i in range(16): a(f"v_exp_f32 v{x+i}, v{x+i}")
        a("s_nop 0")
        for i in range(8): a(f"v_cvt_pk_bf16_f32 v{p+i}, v{x+2*i}, v{x+2*i+1}")
        a("s_nop 1")
        mf(O[X], V0(0), p, O[X])
        mf(O[X], V1(0), p + 4, O[X])
    a.nop(16)
    a("s_add_u32 s66, s66, 1024")
    a("s_sub_u32 s67, s67, 1")
    a("s_cmp_lg_u32 s67, 0")
    a(f"s_cbranch_scc1 {name}_sloop")
    a(f"s_branch {name}_fin")

def gemm2(a0, middle):
    class Filt:
        def __call__(self, s):
            if E("G2NOMFMA") and "v_mfma" in s: return
            if E("G2NOLD") and ("buffer_load_dwordx4" in s): return
            if E("G2NORD") and ("ds_read_b64_tr" in s): return
            a0(s)
        def __getattr__(self, n): return getattr(a0, n)
    a = Filt()
    D, NH, NK = 8, 28, 36
    ACC, AR, WF = 64, 128, 32
    a("s_and_b32 s3, s2, 7")
    a("s_bfe_u32 s4, s2, 0x50003")
    a("s_lshl_b32 s5, s3, 2")
    a("s_and_b32 s6, s4, 3")
    a("s_add_u32 s12, s5, s6")
    a("s_lshr_b32 s13, s4, 2")
    srd(a, 44, 20, 512 * 1024)
    srd(a, 48, 28, 1792 * 1024)
    a(f"s_mul_i32 s53, s40, {NH*16384}")
    a("s_lshl_b32 s52, s40, 17")
    a("s_mul_i32 s54, s12, 288")
    a(f"s_mul_i32 s5, s40, {NH}")
    a("s_add_u32 s5, s5, s54")
    a("s_add_u32 s5, s5, 32")
    a("s_lshl_b32 s5, s5, 10")
    a(f"s_add_u32 s60, s5, {WS_AF}")
    a(f"s_add_u32 s61, s60, {144*1024}")
    a("s_lshl_b32 s5, s40, 3")
    a("s_add_u32 s5, s5, s54")
    a("s_lshl_b32 s5, s5, 10")
    a(f"s_add_u32 s62, s5, {WS_AF}")
    a(f"s_add_u32 s63, s62, {144*1024}")
    a(f"s_mul_i32 s56, s40, {D*2048}")
    a("s_and_b32 s5, s12, 3")
    a("s_lshl_b32 s5, s5, 1")
    a("s_add_u32 s5, s5, s13")
    a("s_cmp_ge_u32 s5, 7")
    a("s_cselect_b32 s6, 7, 0")
    a("s_sub_u32 s5, s5, s6")
    if E("NOHROT"): a("s_mov_b32 s5, 0")
    a("s_lshl_b32 s6, s5, 16")
    a("s_add_u32 s53, s53, s6")
    a("s_lshl_b32 s6, s5, 12")
    a("s_add_u32 s60, s60, s6")
    a("s_add_u32 s61, s61, s6")
    a("s_sub_u32 s64, 7, s5")
    a("s_mov_b32 s65, s64")
    a("v_lshlrev_b32 v2, 4, v1")
    a("v_lshrrev_b32 v3, 5, v1")
    a("v_lshlrev_b32 v4, 2, v3")
    a("v_bfe_u32 v5, v1, 2, 2")
    a("v_add_u32 v4, v4, v5")
    a("v_lshlrev_b32 v4, 10, v4")
    a("v_bfe_u32 v6, v1, 4, 1")
    a("v_lshl_add_u32 v4, v6, 6, v4")
    a("v_and_b32 v7, 3, v1")
    a("v_lshl_add_u32 v4, v7, 4, v4")
    a("s_lshl_b32 s57, s13, 7")
    a("v_add_u32 v4, s57, v4")
    a("v_add_u32 v9, 8192, v4")
    a("v_lshlrev_b32 v8, 9, v3")
    a("v_lshl_add_u32 v8, v5, 6, v8")
    a("v_lshl_add_u32 v8, v6, 5, v8")
    a("v_lshl_add_u32 v8, v7, 3, v8")
    a("v_add_u32 v8, s56, v8")
    q = VMQ(a)
    def loadW(i):
        s = i % D
        sr_, so = ("s[48:51]", "s53") if i < NH else ("s[44:47]", "s52")
        a(f"s_add_u32 m0, s56, {s*2048}")
        a("s_nop 0")
        a(f"buffer_load_dwordx4 v4, {sr_}, {so} offen lds"); q.issue(("W", i))
        a(f"s_add_u32 m0, s56, {s*2048+1024}")
        a("s_nop 0")
        a(f"buffer_load_dwordx4 v9, {sr_}, {so} offen lds"); q.issue(("W", i))
        a(f"s_add_u32 {so}, {so}, 16384")
        if i < NH and i % 4 == 3:
            a("s_sub_u32 s64, s64, 1")
            a("s_cmp_eq_u32 s64, 0")
            a(f"s_cselect_b32 s6, {NH*16384}, 0")
            a("s_sub_u32 s53, s53, s6")
    def loadA(i):
        r = AR + (i % D) * 8
        j = i if i < NH else i - NH
        s0, s1 = ("s60", "s61") if i < NH else ("s62", "s63")
        a(f"buffer_load_dwordx4 v[{r}:{r+3}], v2, s[36:39], {s0} offen offset:{(j%4)*1024} sc1"); q.issue(("A", i))
        a(f"buffer_load_dwordx4 v[{r+4}:{r+7}], v2, s[36:39], {s1} offen offset:{(j%4)*1024} sc1"); q.issue(("A", i))
        if j % 4 == 3:
            a(f"s_add_u32 {s0}, {s0}, 4096")
            a(f"s_add_u32 {s1}, {s1}, 4096")
            if i < NH:
                a("s_sub_u32 s65, s65, 1")
                a("s_cmp_eq_u32 s65, 0")
                a(f"s_cselect_b32 s6, {NH*1024}, 0")
                a("s_sub_u32 s60, s60, s6")
                a("s_sub_u32 s61, s61, s6")
    for i in range(D): loadW(i)
    middle()
    a("s_lshl_b32 s66, s12, 7")
    a(f"s_add_u32 s4, s66, {FH}")
    a(f"s_setprio {E('PB2', '0')}")
    poll(a, "s4", 32, 12); q.drained()
    stamp(a, 4)
    for i in range(D): loadA(i)
    def rd(i):
        s = i % D
        for u in range(2):
            b = WF + (i % 2) * 8 + u * 4
            a(f"ds_read_b64_tr_b16 v[{b}:{b+1}], v8 offset:{s*2048+u*256}")
            a(f"ds_read_b64_tr_b16 v[{b+2}:{b+3}], v8 offset:{s*2048+1024+u*256}")
    rd(0)
    for i in range(NK):
        if i == NH:
            a(f"s_add_u32 s4, s66, {FO}")
            stamp(a, 5)
            poll(a, "s4", 32, 12); q.drained()
            stamp(a, 6)
            for j in range(NH, NK): loadA(j)
        tags = [("A", i)] + ([("W", i + 1)] if i + 1 < NK else [])
        tags = [t for t in tags if t in q.q]
        if tags: q.wait(tags)
        if i + 1 < NK:
            rd(i + 1)
            a("s_waitcnt lgkmcnt(4)")
        else:
            a("s_waitcnt lgkmcnt(0)")
        r = AR + (i % D) * 8
        for t in range(2):
            for u in range(2):
                w = WF + (i % 2) * 8 + u * 4
                d = ACC + (t * 2 + u) * 16
                mfma(a, d, w, r + 4 * t, d if i > 0 else None)
        if i + D < NK:
            loadW(i + D)
            if i + D < NH: loadA(i + D)
    PITCH = 272
    a("s_setprio 2")
    a("s_barrier")
    a("v_and_b32 v9, 31, v1")
    a(f"v_mul_u32_u24 v9, {PITCH}, v9")
    a("v_lshl_add_u32 v9, v3, 4, v9")
    a(f"s_mul_i32 s56, s40, {64*PITCH}")
    a("v_add_u32 v9, s56, v9")
    a("v_lshrrev_b32 v10, 3, v0")
    a("v_and_b32 v11, 7, v0")
    a("s_lshl_b32 s57, s12, 6")
    a("v_add_u32 v12, s57, v10")
    a("v_lshlrev_b32 v12, 10, v12")
    a("v_lshl_add_u32 v12, v11, 4, v12")
    a("s_lshl_b32 s57, s13, 7")
    a("v_add_u32 v12, s57, v12")
    srd(a, 44, 16, 2048 * 1024)
    srd(a, 48, 30, 2048 * 1024)
    a("s_mov_b32 s58, 32768")
    a("buffer_load_dwordx4 v[16:19], v12, s[44:47], 0 offen")
    a("buffer_load_dwordx4 v[20:23], v12, s[44:47], s58 offen")
    for t in range(2):
        for u in range(2):
            d = ACC + (t * 2 + u) * 16
            for j in range(4):
                a(f"ds_write_b128 v9, v[{d+4*j}:{d+4*j+3}] offset:{t*32*PITCH + u*128 + j*32}")
    a(f"v_mul_u32_u24 v13, {PITCH}, v10")
    a("v_lshl_add_u32 v13, v11, 5, v13")
    a("s_waitcnt lgkmcnt(0)")
    a("s_barrier")
    for it in range(2):
        for w in range(4):
            b = AR + (it * 4 + w) * 8
            off = w * 64 * PITCH + it * 32 * PITCH
            a(f"ds_read_b128 v[{b}:{b+3}], v13 offset:{off}")
            a(f"ds_read_b128 v[{b+4}:{b+7}], v13 offset:{off+16}")
    a("s_waitcnt vmcnt(0)")
    for it in range(2):
        xs = 16 + 4 * it
        for i in range(4):
            a(f"v_lshlrev_b32 v{24+it*8+2*i}, 16, v{xs+i}")
            a(f"v_and_b32 v{25+it*8+2*i}, 0xffff0000, v{xs+i}")
    for it in range(2):
        a(f"s_waitcnt lgkmcnt({8*(1-it)})")
        for w in range(4):
            b = AR + (it * 4 + w) * 8
            for i in range(8):
                a(f"v_add_f32 v{24+it*8+i}, v{24+it*8+i}, v{b+i}")
        for i in range(4):
            a(f"v_cvt_pk_bf16_f32 v{40+it*4+i}, v{24+it*8+2*i}, v{25+it*8+2*i}")
        a(f"buffer_store_dwordx4 v[{40+it*4}:{43+it*4}], v12, s[48:51], {'0' if it==0 else 's58'} offen{E('OUTF', '')}")
    dump_stamps(a, 7)
    a("s_endpgm")

def gen(a):
    a.raw(f".globl {NAME}")
    a.raw(".p2align 8")
    a.raw(f".type {NAME},@function")
    a.label(NAME)
    a("s_cmp_ge_u32 s2, 512")
    a(f"s_cbranch_scc1 {NAME}_done")
    a("s_load_dwordx16 s[16:31], s[0:1], 0")
    a("s_load_dwordx4 s[32:35], s[0:1], 64")
    a("s_memrealtime s[10:11]")
    a("v_and_b32 v1, 63, v0")
    a("v_lshrrev_b32 v2, 6, v0")
    a("s_and_b32 s3, s2, 7")
    a("v_readfirstlane_b32 s40, v2")
    a("s_bfe_u32 s4, s2, 0x50003")
    a("s_and_b32 s5, s3, 1")
    a("s_lshl_b32 s5, s5, 3")
    a("s_and_b32 s6, s4, 7")
    a("s_add_u32 s41, s5, s6")
    a("s_lshr_b32 s5, s3, 1")
    a("s_lshl_b32 s5, s5, 2")
    a("s_lshr_b32 s6, s4, 3")
    a("s_add_u32 s42, s5, s6")
    a("s_waitcnt lgkmcnt(0)")
    stamp(a, 0)
    srd(a, 36, 34, WS_NREC)
    srd(a, 56, 32, 256)
    a("s_cmp_ge_u32 s2, 256")
    a(f"s_cbranch_scc1 {NAME}_B")
    a("s_setprio 2")
    a("s_or_b32 s3, s2, s40")
    a("s_cmp_lg_u32 s3, 0")
    a(f"s_cbranch_scc1 {NAME}_A")
    a("s_or_b32 s10, s10, 1")
    a("v_mov_b32 v2, s10")
    a("v_mov_b32 v3, 0")
    a("s_mov_b64 exec, 1")
    a("buffer_store_dword v2, v3, s[56:59], 0 offen sc1")
    a("s_mov_b64 exec, -1")
    a("s_waitcnt vmcnt(0)")
    a.label(f"{NAME}_A")
    if E("ONLY_B"): a("s_endpgm")
    QL = gemm1A(a)
    if E("ONLY_G1"):
        dump_stamps(a, 7 if E("ITER") else 4)
        a("s_endpgm")
    attention(a, QL)
    a.label(f"{NAME}_B")
    if E("ONLY_A"): a("s_endpgm")
    a("s_setprio 3")
    epi = gemm1B(a)
    gemm2(a, epi)
    a.label(f"{NAME}_done")
    a("s_endpgm")

if __name__ == "__main__":
    out = sys.argv[1] if len(sys.argv) > 1 else "v3.s"
    a = Asm()
    gen(a)
    for p in check_hazards(a.lines, NAME): print("HAZARD", p, file=sys.stderr)
    txt = HEADER + ("; @launch grid=(512,1,1) block=(256,1,1) lds=81920\n" if E("FINAL") else f"; @launch kernel={NAME} grid=(512,1,1) block=(256,1,1) lds=81920\n") + '.amdgcn_target "amdgcn-amd-amdhsa--gfx950"\n.text\n' + a.text()
    txt += f""".section .rodata,"a"
.p2align 6
.amdhsa_kernel {NAME}
  .amdhsa_next_free_vgpr 256
  .amdhsa_next_free_sgpr 102
  .amdhsa_accum_offset 256
  .amdhsa_group_segment_fixed_size 0
  .amdhsa_kernarg_size 80
  .amdhsa_user_sgpr_count 2
  .amdhsa_user_sgpr_kernarg_segment_ptr 1
  .amdhsa_system_sgpr_workgroup_id_x 1
.end_amdhsa_kernel
"""
    open(out, "w").write(txt)
```

```python
import sys, math, struct, os
from asmlib import *

def f2h(x):
    return "0x%08x" % struct.unpack("<I", struct.pack("<f", x))[0]
E = os.environ.get
WS_KH = 4 << 20
WS_VT = 6 << 20
WS_AF = 8 << 20
WS_FL = 20 << 20
F1, FH, FO, FX = WS_FL, WS_FL + 4096, WS_FL + 8192, WS_FL + 12288
WS_ST = 21 << 20
WS_NREC = 32 << 20
LOG2E = math.log2(math.e)
QSCALE = 0.25 * LOG2E
TIMING = bool(E("TIMING"))
SPIN_MAX = 200000
NAME = "parallel_sum__mha_block__swiglu_ffn__prompt_kernel" if E("FINAL") else "fused_kernel"

HEADER = """; Kernarg layout for this problem (80 bytes, ptrs only, base s[0:1]):
"""

def srd(a, d, base, nrec):
    a(f"s_mov_b32 s{d}, s{base}")
    a(f"s_mov_b32 s{d+1}, s{base+1}")
    a(f"s_mov_b32 s{d+2}, {nrec}")
    a(f"s_mov_b32 s{d+3}, 0x00020000")

def stamp(a, idx):
    if TIMING:
        a(f"{'s_memtime' if E('CYC') else 's_memrealtime'} s[{84+2*idx}:{85+2*idx}]")
        a("s_waitcnt lgkmcnt(0)")
def dump_stamps(a, last):
    if E("DBGT"):
        a("s_waitcnt vmcnt(0)")
        stamp(a, last)
        a("s_mov_b32 s76, s32")
        a("s_mov_b32 s77, s33")
        a("s_mov_b32 s78, 256")
        a("s_mov_b32 s79, 0x00020000")
        a("s_mov_b64 exec, 1")
        a("v_mov_b32 v250, 0")
        base = 1 if last == 6 else 8
        for i in range(1, last + 1):
            a(f"s_sub_u32 s80, s{84+2*i}, s83")
            a("v_mov_b32 v252, s80")
            a(f"buffer_atomic_umax v252, v250, s[76:79], 0 offen offset:{4*(base+i-1)}")
            a("s_nop 1")
        return
    if TIMING:
        a("s_waitcnt vmcnt(0)")
        stamp(a, last)
        a("s_add_u32 s76, s34, 0x8000000")
        a("s_addc_u32 s77, s35, 0")
        a("s_mov_b32 s78, 0x100000")
        a("s_mov_b32 s79, 0x00020000")
        a("s_lshl_b32 s80, s2, 7")
        a("s_lshl_b32 s81, s40, 5")
        a("s_add_u32 s80, s80, s81")
        a("v_mov_b32 v250, s80")
        for i in range(8):
            a(f"v_mov_b32 v252, s{84+2*i}")
            a(f"buffer_store_dword v252, v250, s[76:79], 0 offen offset:{4*i}")
            a("s_nop 1")

def round_bf16(a, v, t):
    a(f"v_cvt_pk_bf16_f32 v{t}, v{v}, v{v}")
    a(f"v_lshlrev_b32 v{v}, 16, v{t}")

def mfma(a, d, x, y, c):
    a(f"v_mfma_f32_32x32x16_bf16 v[{d}:{d+15}], v[{x}:{x+3}], v[{y}:{y+3}], " + (f"v[{c}:{c+15}]" if c is not None else "0"))

class VMQ:
    def __init__(self, a): self.a, self.q = a, []
    def issue(self, tag): self.q.append(tag)
    def wait(self, tags):
        idx = max(i for i, t in enumerate(self.q) if t in tags)
        self.a(f"s_waitcnt vmcnt({len(self.q)-1-idx})")
    def drained(self): self.q = []

UID = [0]
def uid():
    UID[0] += 1
    return UID[0]

def get_nonce(a, vt):
    n = uid()
    a(f"v_mov_b32 v{vt+1}, 0")
    a(f"s_mov_b32 s3, {SPIN_MAX}")
    a.label(f"nonce{n}")
    a(f"buffer_load_dword v{vt}, v{vt+1}, s[56:59], 0 offen sc1")
    a("s_waitcnt vmcnt(0)")
    a(f"v_readfirstlane_b32 s83, v{vt}")
    a("s_sub_u32 s3, s3, 1")
    a("s_cmp_eq_u32 s3, 0")
    a(f"s_cbranch_scc1 nonce{n}_ok")
    a("s_cmp_eq_u32 s83, 0")
    a(f"s_cbranch_scc1 nonce{n}")
    a.label(f"nonce{n}_ok")

def publish(a, soff, vt):
    a(f"v_mov_b32 v{vt}, s83")
    a(f"v_mov_b32 v{vt+1}, 0")
    a("s_waitcnt vmcnt(0)")
    a("s_mov_b64 exec, 1")
    a(f"buffer_store_dword v{vt}, v{vt+1}, s[36:39], {soff} offen sc1")
    a("s_mov_b64 exec, -1")

def poll(a, soff, nflags, vt):
    n = uid()
    a("s_cmp_lg_u32 s40, 0")
    a(f"s_cbranch_scc1 poll{n}_ok")
    a(f"v_and_b32 v{vt+1}, {nflags-1}, v1")
    a(f"v_lshlrev_b32 v{vt+1}, 2, v{vt+1}")
    a(f"s_mov_b32 s3, {SPIN_MAX}")
    a.label(f"poll{n}")
    a(f"buffer_load_dword v{vt}, v{vt+1}, s[36:39], {soff} offen sc1")
    a("s_waitcnt vmcnt(0)")
    a(f"v_cmp_ne_u32 vcc, s83, v{vt}")
    a(f"s_cbranch_vccz poll{n}_ok")
    a(f"s_sleep {E('SLEEP', '4')}")
    a("s_sub_u32 s3, s3, 1")
    a("s_cmp_lg_u32 s3, 0")
    a(f"s_cbranch_scc1 poll{n}")
    a.label(f"poll{n}_ok")
    a("s_waitcnt vmcnt(0)")
    a("s_barrier")

def ln_load(a):
    srd(a, 44, 16, 2048 * 1024)
    a("s_lshl_b32 s3, s41, 7")
    a("s_lshl_b32 s4, s42, 3")
    a("s_add_u32 s3, s3, s4")
    a("s_lshl_b32 s4, s40, 1")
    a("s_add_u32 s3, s3, s4")
    a("s_lshl_b32 s3, s3, 10")
    a("v_lshlrev_b32 v2, 4, v1")
    a("buffer_load_dwordx4 v[208:211], v2, s[44:47], s3 offen")
    a("buffer_load_dwordx4 v[212:215], v2, s[44:47], s3 offen offset:1024")
    a("v_mov_b32 v247, 0")
    a("buffer_load_dword v246, v247, s[56:59], 0 offen sc1")

def ln_addr(a):
    a("v_lshlrev_b32 v240, 7, v1")
    a("s_lshl_b32 s3, s40, 5")
    a("v_add_u32 v240, s3, v240")
    a("v_lshlrev_b32 v241, 4, v1")
    a("s_lshl_b32 s3, s40, 12")
    a("v_add_u32 v241, s3, v241")
    a("v_lshrrev_b32 v242, 3, v1")
    a("v_lshrrev_b32 v243, 1, v242")
    a("v_lshlrev_b32 v243, 10, v243")
    a("v_and_b32 v242, 1, v242")
    a("v_lshl_add_u32 v243, v242, 9, v243")
    a("v_and_b32 v242, 7, v1")
    a("v_lshl_add_u32 v243, v242, 4, v243")
    a("s_lshl_b32 s3, s41, 2")
    a("s_lshr_b32 s4, s42, 2")
    a("s_add_u32 s5, s3, s4")
    a("s_lshl_b32 s60, s5, 15")
    a("s_and_b32 s4, s42, 3")
    a("s_lshl_b32 s6, s4, 7")
    a("s_add_u32 s60, s60, s6")
    a("s_lshl_b32 s6, s40, 14")
    a("s_add_u32 s60, s60, s6")
    a("s_lshl_b32 s5, s5, 6")
    a("s_lshl_b32 s4, s4, 4")
    a("s_add_u32 s5, s5, s4")
    a("s_lshl_b32 s4, s40, 3")
    a("s_add_u32 s5, s5, s4")
    a(f"s_add_u32 s66, s5, {FX}")

def ln_compute(a, LS):
    X = (216, 224)
    S = 232
    a("v_readfirstlane_b32 s83, v246")
    if E("LNST"): stamp(a, 2)
    for r in range(2):
        for i in range(4):
            a(f"v_lshlrev_b32 v{X[r]+2*i}, 16, v{208+4*r+i}")
            a(f"v_and_b32 v{X[r]+2*i+1}, 0xffff0000, v{208+4*r+i}")
    for r in range(2):
        a(f"v_add_f32 v{S+r}, v{X[r]}, v{X[r]+1}")
        a(f"v_mul_f32 v{S+2+r}, v{X[r]}, v{X[r]}")
    for i in range(1, 8):
        for r in range(2):
            if i >= 2: a(f"v_add_f32 v{S+r}, v{S+r}, v{X[r]+i}")
            a(f"v_fmac_f32 v{S+2+r}, v{X[r]+i}, v{X[r]+i}")
    for off in (0x041F, 0x081F, 0x101F, 0x201F, 0x401F):
        for i in range(4): a(f"ds_swizzle_b32 v{S+4+i}, v{S+i} offset:{off}")
        a("s_waitcnt lgkmcnt(0)")
        for i in range(4): a(f"v_add_f32 v{S+i}, v{S+i}, v{S+4+i}")
    for i in range(4): a(f"v_mov_b32 v{S+4+i}, v{S+i}")
    a("s_nop 1")
    for i in range(4): a(f"v_permlane32_swap_b32 v{S+4+i}, v{S+i}")
    a("s_nop 1")
    for i in range(4): a(f"v_add_f32 v{S+i}, v{S+i}, v{S+4+i}")
    for i in range(4): a(f"v_mul_f32 v{S+i}, {f2h(1.0/512)}, v{S+i}")
    for r in range(2): a(f"v_fma_f32 v{S+2+r}, -v{S+r}, v{S+r}, v{S+2+r}")
    for r in range(2): a(f"v_max_f32 v{S+2+r}, 0, v{S+2+r}")
    def rnd(regs):
        for k, v in enumerate(regs): a(f"v_cvt_pk_bf16_f32 v{S+4+k}, v{v}, v{v}")
        for k, v in enumerate(regs): a(f"v_lshlrev_b32 v{v}, 16, v{S+4+k}")
    rnd((S, S + 1, S + 2, S + 3))
    for r in range(2): a(f"v_add_f32 v{S+2+r}, {f2h(1e-5)}, v{S+2+r}")
    rnd((S + 2, S + 3))
    for r in range(2): a(f"v_sqrt_f32 v{S+2+r}, v{S+2+r}")
    a("s_nop 0")
    rnd((S + 2, S + 3))
    for r in range(2): a(f"v_rcp_f32 v{S+2+r}, v{S+2+r}")
    for r in range(2):
        for i in range(8): a(f"v_sub_f32 v{X[r]+i}, v{X[r]+i}, v{S+r}")
    for r in range(2):
        for i in range(4): a(f"v_cvt_pk_bf16_f32 v{208+4*r+i}, v{X[r]+2*i}, v{X[r]+2*i+1}")
    for r in range(2):
        for i in range(4):
            a(f"v_lshlrev_b32 v{X[r]+2*i}, 16, v{208+4*r+i}")
            a(f"v_and_b32 v{X[r]+2*i+1}, 0xffff0000, v{208+4*r+i}")
    for r in range(2):
        for i in range(8): a(f"v_mul_f32 v{X[r]+i}, v{X[r]+i}, v{S+2+r}")
    for r in range(2):
        for i in range(4): a(f"v_cvt_pk_bf16_f32 v{208+4*r+i}, v{X[r]+2*i}, v{X[r]+2*i+1}")
    a(f"ds_write_b128 v240, v[208:211] offset:{LS}")
    a(f"ds_write_b128 v240, v[212:215] offset:{LS+16}")
    a("s_cmp_lg_u32 s83, 0")
    a("s_cbranch_scc1 ln_have_nonce")
    get_nonce(a, 244)
    a.label("ln_have_nonce")
    a("s_waitcnt lgkmcnt(0)")
    a("s_barrier")
    a("s_cmp_ge_u32 s40, 2")
    a("s_cbranch_scc1 ln_done")
    for q in range(4): a(f"ds_read_b128 v[{208+4*q}:{211+4*q}], v241 offset:{LS+1024*q}")
    a("v_mov_b32 v244, s83")
    a("v_mov_b32 v245, s83")
    for q in range(4):
        a(f"s_waitcnt lgkmcnt({3-q})")
        a(f"buffer_store_dwordx4 v[{208+4*q}:{211+4*q}], v243, s[36:39], s60 offen sc1")
        if q < 3: a("s_add_u32 s60, s60, 4096")
    a("s_waitcnt vmcnt(0)")
    a("s_mov_b64 exec, 1")
    a("buffer_store_dwordx2 v[244:245], v247, s[36:39], s66 offen sc1")
    a("s_mov_b64 exec, -1")

def poll_xn(a, vt):
    a("s_lshl_b32 s43, s41, 2")
    a("s_add_u32 s43, s43, s40")
    a("s_lshl_b32 s4, s41, 8")
    a(f"s_add_u32 s4, s4, {FX}")
    poll(a, "s4", 64, vt)
    a("s_lshl_b32 s70, s43, 15")
    a("s_lshl_b32 s73, s74, 12")
    a("s_add_u32 s72, s70, s73")

def rot_setup(a, add, pitch):
    a("s_and_b32 s10, s41, 7")
    a("s_and_b32 s11, s42, 3")
    a("s_lshl_b32 s11, s11, 1")
    a("s_add_u32 s10, s10, s11")
    if add: a(f"s_add_u32 s10, s10, {add}")
    a("s_and_b32 s74, s10, 7")
    if E("NOROT"): a("s_mov_b32 s74, 0")
    a(f"s_mul_i32 s11, s74, {64*pitch}")
    a("s_add_u32 s64, s64, s11")
    a("s_sub_u32 s67, 8, s74")
def w_wrap(pitch):
    return ["s_sub_u32 s67, s67, 1", "s_cmp_eq_u32 s67, 0", f"s_cselect_b32 s10, {512*pitch}, 0", "s_sub_u32 s64, s64, s10"]
X_ADV = ["s_add_u32 s73, s73, 4096", "s_and_b32 s73, s73, 32767", "s_add_u32 s72, s70, s73"]

def tr_base(a, RW, base):
    a("v_lshrrev_b32 v17, 5, v1")
    a("v_bfe_u32 v18, v1, 2, 2")
    a("v_lshl_add_u32 v18, v17, 3, v18")
    a("v_and_b32 v19, 3, v1")
    a("v_bfe_u32 v20, v1, 4, 1")
    a(f"v_lshlrev_b32 v{RW}, 6, v18")
    a(f"v_lshl_add_u32 v{RW}, v20, 5, v{RW}")
    a(f"v_lshl_add_u32 v{RW}, v19, 3, v{RW}")
    if base: a(f"v_add_u32 v{RW}, {base}, v{RW}")

def gemm1A(a):
    KV, NS = 32768, 12
    VW, VW3, RW, RW2 = 6, 7, 8, 9
    WF, ACC, XN = 16, 64, 112
    srd(a, 48, 18, 512 * 3072)
    a("s_and_b32 s3, s40, 1")
    a("s_lshr_b32 s4, s40, 1")
    a("v_lshrrev_b32 v16, 2, v1")
    a("v_and_b32 v17, 3, v1")
    a(f"v_mul_u32_u24 v{VW}, 3072, v16")
    a(f"v_lshl_add_u32 v{VW}, v17, 4, v{VW}")
    a("s_lshl_b32 s64, s42, 6")
    a(f"s_mul_i32 s5, s3, {16*3072}")
    a("s_add_u32 s64, s64, s5")
    a(f"v_add_u32 v{VW3}, 2048, v{VW}")
    a("s_lshl_b32 s5, s4, 10")
    a(f"v_add_u32 v{VW}, s5, v{VW}")
    a("s_lshl_b32 s6, s3, 10")
    a(f"s_add_u32 s69, s6, {KV+2048}")
    a("s_lshl_b32 s5, s4, 15")
    a("s_add_u32 s68, s5, s6")
    a("s_cmp_eq_u32 s4, 0")
    a("s_cselect_b32 s14, -1, 0")
    a("s_cselect_b32 s15, 0, -1")
    a(f"s_cselect_b32 s66, 0, {NS*4096}")
    a("s_movk_i32 s65, 2048")
    a("s_lshl_b32 s65, s65, s4")
    rot_setup(a, 1, 3072)
    def loadW(st):
        if st == NS: a("s_sub_u32 s68, s68, s66")
        a("s_mov_b32 m0, s68")
        a("s_add_u32 s68, s68, s65")
        a(f"buffer_load_dwordx4 v{VW}, s[48:51], s64 offen lds")
        a(f"s_add_u32 m0, s69, {(st % NS)*4096}")
        a("s_mov_b64 exec, s[14:15]")
        a(f"buffer_load_dwordx4 v{VW3}, s[48:51], s64 offen lds")
        a("s_mov_b64 exec, -1")
        a(f"s_add_u32 s64, s64, {32*3072}")
        if st % 2 == 1:
            for i in w_wrap(3072): a(i)
    tr_base(a, RW, 0)
    a(f"v_add_u32 v{RW2}, {KV}, v{RW}")
    for i in range(48): a(f"v_mov_b32 v{ACC+i}, 0")
    a("v_lshlrev_b32 v2, 4, v1")
    W0 = int(E("W0", "0"))
    for st in range(W0): loadW(st)
    get_nonce(a, 240)
    for st in range(W0, NS): loadW(st)
    poll_xn(a, 240)
    stamp(a, 1)
    XA = int(E("XA", "12"))
    q = VMQ(a)
    def loadX(ks):
        if ks and ks % 4 == 0:
            for i in X_ADV: a(i)
        a(f"buffer_load_dwordx4 v[{XN+4*ks}:{XN+4*ks+3}], v2, s[36:39], s72 offen offset:{(ks%4)*1024} sc1")
        q.issue(("x", ks))
    for ks in range(XA): loadX(ks)
    def rd(ks):
        st, kk = ks // 2, ks % 2
        o = (st % NS) * 4096 + kk * 1024
        out = []
        for u in range(2):
            r = WF + (ks % 4) * 8 + u * 4
            out.append(f"ds_read_b64_tr_b16 v[{r}:{r+1}], v{RW2} offset:{o+u*2048}")
            out.append(f"ds_read_b64_tr_b16 v[{r+2}:{r+3}], v{RW2} offset:{o+u*2048+256}")
        return out
    for i in rd(0) + rd(1): a(i)
    for ks in range(32):
        if ks == 10:
            a("s_barrier")
            for st in range(NS, 16):
                loadW(st); q.issue("w"); q.issue("w")
        if ks + XA < 32: loadX(ks + XA)
        if ks == 22:
            q.wait(["w", ("x", ks)])
            a("s_barrier")
        else:
            q.wait([("x", ks)])
        a(f"s_waitcnt lgkmcnt({4 if ks < 31 else 0})")
        RL = rd(ks + 2) if ks + 2 < 32 else []
        x, w = XN + 4 * ks, WF + (ks % 4) * 8
        mfma(a, ACC + 16, w, x, ACC + 16)
        for i in RL[:2]: a(i)
        mfma(a, ACC + 32, x, w + 4, ACC + 32)
        for i in RL[2:]: a(i)
    stamp(a, 2)
    def rdq(ks):
        r = 48 + (ks % 4) * 4
        a(f"ds_read_b64_tr_b16 v[{r}:{r+1}], v{RW} offset:{ks*1024}")
        a(f"ds_read_b64_tr_b16 v[{r+2}:{r+3}], v{RW} offset:{ks*1024+256}")
    for ks in range(3): rdq(ks)
    P = 16
    a("v_lshrrev_b32 v11, 5, v1")
    a("v_lshlrev_b32 v12, 4, v1")
    a("v_bfe_u32 v13, v1, 4, 1")
    a("v_lshlrev_b32 v13, 16, v13")
    a("v_lshl_add_u32 v13, v11, 8, v13")
    a("v_and_b32 v14, 15, v1")
    a("v_lshl_add_u32 v13, v14, 4, v13")
    a("s_lshl_b32 s3, s42, 17")
    a("s_lshl_b32 s4, s43, 10")
    a("s_add_u32 s3, s3, s4")
    a(f"s_add_u32 s6, s3, {WS_KH}")
    a(f"s_add_u32 s7, s3, {WS_KH+65536}")
    a(f"s_add_u32 s8, s3, {WS_VT}")
    for i in range(8): a(f"v_cvt_pk_bf16_f32 v{P+8+i}, v{ACC+16+2*i}, v{ACC+17+2*i}")
    a(f"buffer_store_dwordx4 v[{P+8}:{P+11}], v12, s[36:39], s6 offen sc1")
    a(f"buffer_store_dwordx4 v[{P+12}:{P+15}], v12, s[36:39], s7 offen sc1")
    for i in range(8): a(f"v_cvt_pk_bf16_f32 v{P+16+i}, v{ACC+32+2*i}, v{ACC+33+2*i}")
    a(f"buffer_store_dwordx4 v[{P+16}:{P+19}], v13, s[36:39], s8 offen sc1")
    a(f"buffer_store_dwordx4 v[{P+20}:{P+23}], v13, s[36:39], s8 offen offset:512 sc1")
    a("s_lshl_b32 s4, s42, 8")
    a("s_lshl_b32 s5, s43, 2")
    a("s_add_u32 s4, s4, s5")
    a(f"s_add_u32 s4, s4, {F1}")
    a(f"s_mov_b32 s9, {f2h(QSCALE)}")
    for ks in range(32):
        if ks == 14:
            publish(a, "s4", 240)
            stamp(a, 3)
        if ks + 3 < 32: rdq(ks + 3)
        a(f"s_waitcnt lgkmcnt({2*min(3, 31-ks)})")
        mfma(a, ACC, 48 + (ks % 4) * 4, XN + 4 * ks, ACC)
    QL = KV + 5 * 4096
    a("s_lshl_b32 s3, s40, 11")
    a("v_add_u32 v14, s3, v12")
    a.nop(12)
    for i in range(16): a(f"v_mul_f32 v{ACC+i}, s9, v{ACC+i}")
    for i in range(8): a(f"v_cvt_pk_bf16_f32 v{P+i}, v{ACC+2*i}, v{ACC+2*i+1}")
    a(f"ds_write_b128 v14, v[{P}:{P+3}] offset:{QL}")
    a(f"ds_write_b128 v14, v[{P+4}:{P+7}] offset:{QL+1024}")
    a("s_waitcnt lgkmcnt(0)")
    a("s_barrier")
    return QL

def gemm1B(a):
    NU, R, PITCH, SB, NLD = 7, 4, 3584, 14336, 6
    VW, VW3, RW, RM, RM2 = 6, 7, 8, 9, 10
    XN, WF, ACC = 12, 44, 100
    ln_load(a)
    a("s_and_b32 s3, s40, 1")
    a("s_lshr_b32 s4, s40, 1")
    a("v_lshrrev_b32 v16, 2, v1")
    a("v_and_b32 v17, 3, v1")
    a(f"v_mul_u32_u24 v{VW}, {PITCH}, v16")
    a(f"v_lshl_add_u32 v{VW}, v17, 4, v{VW}")
    a("s_cmp_eq_u32 s4, 0")
    a("s_cselect_b32 s48, s24, s26")
    a("s_cselect_b32 s49, s25, s27")
    a(f"s_mov_b32 s50, {512*3584}")
    a("s_mov_b32 s51, 0x00020000")
    a("s_mul_i32 s64, s42, 224")
    a(f"s_mul_i32 s5, s3, {16*PITCH}")
    a("s_add_u32 s64, s64, s5")
    a("s_lshl_b32 s5, s4, 11")
    a("s_lshl_b32 s6, s3, 10")
    a("s_add_u32 s68, s5, s6")
    a("s_lshl_b32 s5, s4, 10")
    a("s_add_u32 s5, s5, 12288")
    a("s_add_u32 s6, s68, 8192")
    a("s_cmp_eq_u32 s3, 0")
    a("s_cselect_b32 s71, s5, s6")
    a("s_cselect_b64 s[14:15], -1, 1")
    a("s_and_b32 s7, s42, 1")
    a("s_lshl_b32 s8, s7, 5")
    a(f"v_add_u32 v{VW}, s8, v{VW}")
    a("s_cmp_eq_u32 s7, 0")
    a("s_cselect_b32 s8, 192, 0")
    a("v_lshrrev_b32 v18, 1, v1")
    a("s_lshl_b32 s9, s4, 2")
    a("v_xor_b32 v18, s9, v18")
    a(f"v_mul_u32_u24 v18, {PITCH}, v18")
    a("v_and_b32 v19, 1, v1")
    a("v_lshl_add_u32 v18, v19, 4, v18")
    a("v_add_u32 v18, s8, v18")
    a(f"v_add_u32 v19, 128, v{VW}")
    a("s_cmp_eq_u32 s3, 0")
    a("s_cselect_b64 vcc, -1, 0")
    a(f"v_cndmask_b32 v{VW3}, v19, v18, vcc")
    def wlist(slot):
        o = slot * SB
        g = []
        for i in range(3):
            g.append(([f"s_add_u32 m0, s68, {o+i*(4096-64)}"], f"buffer_load_dwordx4 v{VW}, s[48:51], s64 offen offset:{64*i} lds", []))
        g.append(([f"s_add_u32 m0, s71, {o}"], f"s_mov_b64 exec, s[14:15]\nbuffer_load_dwordx4 v{VW3}, s[48:51], s64 offen lds\ns_mov_b64 exec, -1",
                  [f"s_add_u32 s64, s64, {32*PITCH}"] + (w_wrap(PITCH) if slot % 2 == 1 else [])))
        return g
    def xlist(slot):
        g = []
        for kk in range(2):
            r = XN + (2 * slot + kk) * 4
            g.append(([], f"buffer_load_dwordx4 v[{r}:{r+3}], v2, s[36:39], s72 offen offset:{((2*slot+kk)%4)*1024} sc1",
                      X_ADV if (kk == 1 and slot % 2 == 1) else []))
        return g
    def emit(g):
        for pre, ins, post in g:
            for i in pre: a(i)
            if pre: a("s_nop 0")
            a(ins)
            for i in post: a(i)
    rot_setup(a, 0, PITCH)
    ln_addr(a)
    a("s_waitcnt vmcnt(0)")
    ln_compute(a, 3 * SB)
    for st in range(R - 1):
        for i in wlist(st)[3][2]: a(i)
    a("s_branch g1B_pro")
    a.label("ln_done")
    srd(a, 52, 24, 512 * 3584)
    a("v_lshrrev_b32 v18, 1, v1")
    a(f"v_mul_u32_u24 v18, {PITCH}, v18")
    a("v_and_b32 v20, 1, v1")
    a("v_lshl_add_u32 v18, v20, 4, v18")
    a("v_add_u32 v18, s8, v18")
    a("s_sub_u32 s69, s68, 2048")
    a("s_add_u32 s6, s69, 8192")
    a("s_and_b32 s3, s40, 1")
    a("s_cmp_eq_u32 s3, 0")
    a("s_cselect_b32 s70, 12288, s6")
    a("s_cselect_b64 vcc, -1, 0")
    a("v_cndmask_b32 v11, v19, v18, vcc")
    for st in range(R - 1):
        o = st * SB
        for i in range(3):
            a(f"s_add_u32 m0, s69, {o+i*(4096-64)}")
            a("s_nop 0")
            a(f"buffer_load_dwordx4 v{VW}, s[52:55], s64 offen offset:{64*i} lds")
        a(f"s_add_u32 m0, s70, {o}")
        a("s_mov_b64 exec, s[14:15]")
        a("buffer_load_dwordx4 v11, s[52:55], s64 offen lds")
        a("s_mov_b64 exec, -1")
        emit(wlist(st))
    if E("WPF"):
        a("v_min_u32 v18, 55, v1")
        a("v_lshlrev_b32 v18, 4, v18")
        a("s_bfe_u32 s3, s2, 0x20001")
        a("s_mul_i32 s3, s3, 896")
        a("s_bfe_u32 s4, s2, 0x50003")
        a(f"s_mul_i32 s4, s4, {16*PITCH}")
        a("s_add_u32 s3, s3, s4")
        a("s_cmp_eq_u32 s40, 3")
        a("s_cselect_b32 s52, s48, s52")
        a("s_cselect_b32 s53, s49, s53")
        for r_ in range(16):
            a("buffer_load_dwordx4 v[248:251], v18, s[52:55], s3 offen")
            if r_ < 15: a(f"s_add_u32 s3, s3, {PITCH}")
    a.label("g1B_pro")
    stamp(a, 1)
    if E("LNONLY"): a("s_endpgm")
    tr_base(a, RW, 0)
    a("v_lshlrev_b32 v21, 2, v20")
    a("v_xor_b32 v21, v21, v18")
    a(f"v_lshlrev_b32 v{RM}, 5, v21")
    a(f"v_lshl_add_u32 v{RM}, v20, 10, v{RM}")
    a(f"v_lshl_add_u32 v{RM}, v19, 3, v{RM}")
    a(f"v_add_u32 v{RM}, 12288, v{RM}")
    a(f"v_xor_b32 v{RM2}, 128, v{RM}")
    for i in range(NU * 16): a(f"v_mov_b32 v{ACC+i}, 0")
    a(f"s_setprio {E('PB1', '0')}")
    poll_xn(a, 240)
    for st in range(R - 1): emit(xlist(st))
    def rd_w(kk, slot, u):
        b, o = WF + kk * 28 + u * 4, slot * SB
        if u == 6:
            return [f"ds_read_b64_tr_b16 v[{b}:{b+1}], v{RM} offset:{o+kk*512}", f"ds_read_b64_tr_b16 v[{b+2}:{b+3}], v{RM2} offset:{o+kk*512}"]
        return [f"ds_read_b64_tr_b16 v[{b}:{b+1}], v{RW} offset:{o+u*2048+kk*1024}", f"ds_read_b64_tr_b16 v[{b+2}:{b+3}], v{RW} offset:{o+u*2048+kk*1024+256}"]
    def body(slot, ld, vmw, last=False):
        LL = (wlist((slot + 3) % 4) + xlist((slot + 3) % 4)) if ld else []
        li = 0
        for kk in range(2):
            if kk == 1 and not last:
                a(f"s_waitcnt vmcnt({vmw})")
                a("s_barrier")
            x = XN + (2 * slot + kk) * 4
            for u in range(NU):
                nxt = rd_w(1, slot, u) if kk == 0 else ([] if last else rd_w(0, (slot + 1) % 4, u))
                if u % 2 == 0:
                    rest = max(0, 2 * (NU - 2 - u))
                    a(f"s_waitcnt lgkmcnt({rest + (2*u if (kk == 0 or not last) else 0)})")
                l = LL[li] if (ld and kk == 1 and u >= 1) else None
                if l:
                    for i in l[0]: a(i)
                mfma(a, ACC + u * 16, WF + kk * 28 + u * 4, x, ACC + u * 16)
                for i in nxt: a(i)
                if l:
                    a(l[1])
                    for i in l[2]: a(i)
                    li += 1
    stamp(a, 3 if E("BSTAMP") else 7)
    if E("LNST"):
        dump_stamps(a, 6)
        a("s_endpgm")
    a0 = a
    class Filt:
        def __call__(self, s):
            if E("NODMA") and " lds" in s: return
            if E("NOX") and "sc1" in s: return
            if E("NOMFMA") and "v_mfma" in s: return
            if E("NOWRD") and "ds_read_b64_tr" in s: return
            if E("NOBAR") and "s_barrier" in s: return
            a0(s)
        def __getattr__(self, n): return getattr(a0, n)
    a = Filt()
    a("s_waitcnt vmcnt(4)")
    a("s_barrier")
    for u in range(NU):
        for i in rd_w(0, 0, u): a(i)
    body(0, True, 2)
    body(1, True, NLD)
    body(2, True, NLD)
    body(3, True, NLD)
    if E("BITER"):
        stamp(a, 4)
        for it in range(2):
            for slot in range(4): body(slot, True, NLD)
            stamp(a, 5 + it)
    else:
        a("s_mov_b32 s75, 2")
        a.raw(".p2align 6")
        a.label("g1B_loop")
        for slot in range(4): body(slot, True, NLD)
        a("s_sub_u32 s75, s75, 1")
        a("s_cmp_lg_u32 s75, 0")
        a("s_cbranch_scc1 g1B_loop")
    body(0, True, NLD)
    body(1, False, NLD)
    body(2, False, 0)
    body(3, False, 0, last=True)
    a = a0
    stamp(a, 2)
    a("s_barrier")
    return lambda: gemm1B_epilogue(a, ACC)

def gemm1B_epilogue(a, ACC):
    T, P = 212, 44
    a("v_lshlrev_b32 v2, 4, v1")
    a("s_mul_i32 s3, s43, 144")
    a("s_mul_i32 s4, s42, 7")
    a("s_add_u32 s3, s3, s4")
    a("s_add_u32 s3, s3, 32")
    a("s_and_b32 s7, s42, 1")
    a("s_add_u32 s4, s3, s7")
    a("s_cmp_eq_u32 s7, 0")
    a("s_cselect_b32 s5, 6, 0")
    a("s_add_u32 s5, s3, s5")
    a("s_lshl_b32 s4, s4, 10")
    a(f"s_add_u32 s4, s4, {WS_AF}")
    a("s_lshl_b32 s5, s5, 10")
    a(f"s_add_u32 s5, s5, {WS_AF}")
    a(f"s_add_u32 s6, s4, 4096")
    a(f"s_mov_b32 s9, {f2h(-LOG2E)}")
    a("s_mov_b32 s8, s9")
    a("s_mov_b32 s10, 1.0")
    a("s_mov_b32 s11, 1.0")
    pr = lambda r: f"v[{r}:{r+1}]"
    def silu_mul(g, u_, n, dst):
        for i in range(0, n, 2): a(f"v_pk_mul_f32 {pr(T+i)}, {pr(g+i)}, s[8:9]")
        for i in range(n): a(f"v_exp_f32 v{T+i}, v{T+i}")
        for i in range(0, n, 2): a(f"v_pk_mul_f32 {pr(g+i)}, {pr(g+i)}, {pr(u_+i)}")
        for i in range(0, n, 2): a(f"v_pk_add_f32 {pr(T+i)}, {pr(T+i)}, s[10:11]")
        for i in range(n): a(f"v_rcp_f32 v{T+i}, v{T+i}")
        a("s_nop 0")
        for i in range(0, n, 2): a(f"v_pk_mul_f32 {pr(g+i)}, {pr(g+i)}, {pr(T+i)}")
        for i in range(n // 2): a(f"v_cvt_pk_bf16_f32 v{dst+i}, v{g+2*i}, v{g+2*i+1}")
    NHI = int(E("NHI", "0"))
    if NHI: a("s_setprio 2")
    for p in range(3):
        if NHI and p == NHI: a("s_setprio 0")
        silu_mul(ACC + 32 * p, ACC + 32 * p + 16, 16, P + 8 * p)
        so, im = ("s4", 2048 * p) if p < 2 else ("s6", 0)
        a(f"buffer_store_dwordx4 v[{P+8*p}:{P+8*p+3}], v2, s[36:39], {so} offen offset:{im} sc1")
        a(f"buffer_store_dwordx4 v[{P+8*p+4}:{P+8*p+7}], v2, s[36:39], {so} offen offset:{im+1024} sc1")
    if NHI == 3: a("s_setprio 0")
    silu_mul(ACC + 96, ACC + 104, 8, P + 24)
    a(f"buffer_store_dwordx4 v[{P+24}:{P+27}], v2, s[36:39], s5 offen sc1")
    a("s_lshl_b32 s4, s43, 6")
    a("s_lshl_b32 s5, s42, 2")
    a("s_add_u32 s4, s4, s5")
    a(f"s_add_u32 s4, s4, {FH}")
    publish(a, "s4", T)
    stamp(a, 3)

RESCALE_T = 30
BIAS = 80
def attention(a, QL):
    name = "at"
    Q = {"A": 4, "B": 8}
    NEG = {"A": 16, "B": 32}
    S = {"A": 48, "B": 64}
    O = {"A": 80, "B": 96}
    P = {"A": 112, "B": 120}
    RING, T0 = 128, 160
    NR = 2
    TP = 2112
    GB = 8 * TP
    Kf = lambda s: RING + 12 * s
    V0 = lambda s: RING + 12 * s + 4
    V1 = lambda s: RING + 12 * s + 8
    AK, AV0, AV1, VD = 2, 3, 12, 13
    mf = lambda d, x, y, c: mfma(a, d, x, y, c)
    a(f"v_mov_b32 v{VD}, v12")
    a("s_lshr_b32 s3, s40, 1")
    a("s_lshl_b32 s60, s42, 1")
    a("s_add_u32 s60, s60, s3")
    a("s_cmp_eq_u32 s3, 0")
    a("s_cselect_b64 vcc, -1, 0")
    for i in range(4): a(f"v_cndmask_b32 v{Kf(1)+i}, v{28+i}, v{24+i}, vcc")
    a("s_and_b32 s4, s40, 1")
    a("s_lshl_b32 s61, s41, 1")
    a("s_add_u32 s61, s61, s4")
    a("s_lshl_b32 s5, s4, 12")
    a("s_lshl_b32 s6, s3, 10")
    a("s_add_u32 s5, s5, s6")
    a(f"v_add_u32 v2, s5, v{VD}")
    a(f"ds_read_b128 v[{Q['A']}:{Q['A']+3}], v2 offset:{QL}")
    a(f"ds_read_b128 v[{Q['B']}:{Q['B']+3}], v2 offset:{QL+2048}")
    a("s_lshl_b32 s5, s60, 16")
    a(f"s_add_u32 s5, s5, {WS_KH}")
    a("s_add_u32 s44, s34, s5")
    a("s_addc_u32 s45, s35, 0")
    a("s_mov_b32 s46, 65536")
    a("s_mov_b32 s47, 0x00020000")
    a(f"s_add_u32 s48, s44, {WS_VT-WS_KH}")
    a("s_addc_u32 s49, s45, 0")
    a("s_mov_b32 s50, 65536")
    a("s_mov_b32 s51, 0x00020000")
    a("s_cmp_eq_u32 s4, 0")
    a("s_cselect_b32 s52, s44, s48")
    a("s_cselect_b32 s53, s45, s49")
    a("s_mov_b32 s54, 65536")
    a("s_mov_b32 s55, 0x00020000")
    a(f"s_mul_i32 s70, s3, {2*GB}")
    a("s_lshl_b32 s71, s4, 10")
    a("s_add_u32 s71, s71, s70")
    a("v_and_b32 v14, 31, v1")
    a("v_lshrrev_b32 v15, 5, v1")
    a(f"v_add_u32 v{AK}, s70, v{VD}")
    a(f"v_lshlrev_b32 v{AV0}, 8, v15")
    a(f"v_lshl_add_u32 v{AV0}, v14, 4, v{AV0}")
    a(f"v_add_u32 v{AV0}, 1024, v{AV0}")
    a(f"v_add_u32 v{AV1}, 512, v{AV0}")
    a(f"v_mov_b32 v{T0}, 2064")
    a(f"v_mov_b32 v{T0+1}, 2048")
    a("v_cmp_eq_u32 vcc, 16, v14")
    a(f"v_mov_b32 v{T0+4}, 0x3f803f80")
    a(f"v_and_b32 v{T0+2}, 1, v1")
    a(f"v_cndmask_b32 v{T0}, v{T0}, v{T0+1}, vcc")
    a("v_cmp_gt_u32 vcc, 16, v14")
    a(f"v_lshrrev_b32 v{T0+3}, 1, v1")
    a(f"v_mul_u32_u24 v{T0+3}, {TP}, v{T0+3}")
    a(f"v_cndmask_b32 v{AV0}, v{T0}, v{AV0}, vcc")
    a(f"v_cndmask_b32 v{AV1}, v{T0}, v{AV1}, vcc")
    a(f"v_add_u32 v{AV0}, s70, v{AV0}")
    a(f"v_add_u32 v{AV1}, s70, v{AV1}")
    a(f"v_cmp_eq_u32 vcc, 0, v{T0+2}")
    a(f"v_lshl_add_u32 v{T0+3}, v{T0+2}, 4, v{T0+3}")
    a("s_lshl_b32 s4, s42, 8")
    a(f"v_cndmask_b32 v{T0+4}, 0, v{T0+4}, vcc")
    for i in range(1, 4): a(f"v_mov_b32 v{T0+4+i}, v{T0+4}")
    for X in "AB":
        for i in range(16): a(f"v_mov_b32 v{O[X]+i}, 0")
        for i in range(8): a(f"v_mov_b32 v{P[X]+i}, 0")
    for i in range(4): a(f"v_mov_b32 v{V1(1)+i}, 0")
    a(f"s_mov_b32 s64, {f2h(2.0**RESCALE_T)}")
    a("s_mov_b32 s65, 0")
    a(f"s_add_u32 s4, s4, {F1}")
    a("s_waitcnt lgkmcnt(0)")
    a("s_barrier")
    a(f"ds_write_b128 v{T0+3}, v[{T0+4}:{T0+7}] offset:2048")
    for X in "AB": mf(S[X], Kf(1), Q[X], None)
    a.nop(14)
    for X in "AB":
        m = T0 + 8
        a(f"v_max3_f32 v{m}, v{S[X]}, v{S[X]+1}, v{S[X]+2}")
        for i in range(3, 15, 2):
            a(f"v_max3_f32 v{m}, v{m}, v{S[X]+i}, v{S[X]+i+1}")
        a(f"v_max_f32 v{m}, v{m}, v{S[X]+15}")
        a(f"v_mov_b32 v{m+1}, v{m}")
        a("s_nop 1")
        a(f"v_permlane32_swap_b32 v{m+1}, v{m}")
        a("s_nop 1")
        a(f"v_max_f32 v{m}, v{m}, v{m+1}")
        for i in range(16):
            a(f"v_sub_f32 v{NEG[X]+i}, {f2h(-float(BIAS))}, v{m}")
    poll(a, "s4", 64, T0)
    stamp(a, 4)
    a("s_setprio 1")
    a("s_and_b32 s66, s41, 7")
    a("s_lshl_b32 s66, s66, 13")
    def dma(t, bufoff):
        a(f"s_add_u32 m0, {bufoff}, {t*TP - (t%4)*1024}")
        return f"buffer_load_dwordx4 v{VD}, s[52:55], {'s66' if t < 4 else 's68'} offen offset:{(t%4)*1024} sc1 lds"
    def next_group():
        a("s_add_u32 s66, s66, 8192")
        a("s_and_b32 s66, s66, 65535")
    a(f"s_add_u32 s72, s71, {GB}")
    a("s_add_u32 s68, s66, 4096")
    for t in range(8):
        i = dma(t, "s71")
        a("s_nop 0")
        a(i)
    next_group()
    a("s_add_u32 s68, s66, 4096")
    i = dma(0, "s72")
    a("s_nop 0")
    a(i)
    a("s_waitcnt vmcnt(1) lgkmcnt(0)")
    a("s_barrier")
    def reads(slot, t):
        a(f"ds_read_b128 v[{Kf(slot)}:{Kf(slot)+3}], v{AK} offset:{t*TP}")
        a(f"ds_read_b128 v[{V0(slot)}:{V0(slot)+3}], v{AV0} offset:{t*TP}")
        a(f"ds_read_b128 v[{V1(slot)}:{V1(slot)+3}], v{AV1} offset:{t*TP}")
    reads(0, 0)
    a("s_waitcnt lgkmcnt(0)")
    mf(S["A"], Kf(0), Q["A"], NEG["A"])
    a("s_mov_b32 s67, 8")
    a(f"s_mov_b32 s73, {GB}")
    a("s_and_b32 s74, s41, 7")
    a("s_add_u32 s74, s74, 2")
    a.nop(8)
    if E("ATST"): stamp(a, 4)
    a.raw(".p2align 6")
    a.label(f"{name}_loop")
    def half(X, tt):
        Y = "B" if X == "A" else "A"
        x, p = S[X], P[X]
        e = lambda i: a(f"v_exp_f32 v{x+i}, v{x+i}")
        c = lambda i: a(f"v_cvt_pk_bf16_f32 v{p+i}, v{x+2*i}, v{x+2*i+1}")
        e(0); e(1)
        ty = (tt - 1) % NR if X == "A" else tt % NR
        mf(O[Y], V1(ty), P[Y] + 4, O[Y])
        if X == "A":
            if tt == 7:
                a("s_waitcnt vmcnt(0)")
                a("s_barrier")
                a(f"v_add_u32 v{AK}, s73, v{AK}")
                a(f"v_add_u32 v{AV0}, s73, v{AV0}")
                a(f"v_add_u32 v{AV1}, s73, v{AV1}")
                a("s_sub_u32 s73, 0, s73")
                a("s_and_b32 s66, s74, 7")
                a("s_lshl_b32 s66, s66, 13")
                a("s_cmp_gt_u32 s67, 2")
                a("s_cselect_b32 s66, s66, s75")
                a("s_add_u32 s68, s66, 4096")
                a("s_add_u32 s74, s74, 1")
                reads((tt + 1) % NR, 0)
            else:
                reads((tt + 1) % NR, tt + 1)
        d = None
        k = {("B", 7): 0, ("A", 0): 1, ("B", 0): 2, ("A", 1): 3, ("B", 1): 4, ("A", 2): 5, ("B", 2): 6, ("A", 3): 7}.get((X, tt))
        e(2); e(3); c(0)
        if k is not None: d = dma(k, "s71" if k == 0 else "s72")
        e(4)
        if d: a(d)
        e(5); c(1)
        if X == "B":
            a("s_waitcnt lgkmcnt(0)")
        tk = tt % NR if X == "A" else (tt + 1) % NR
        mf(S[Y], Kf(tk), Q[Y], NEG[Y])
        e(6); e(7); c(2); e(8); c(3); e(9); e(10)
        mf(O[X], V0(tt % NR), p, O[X])
        c(4); e(11); e(12); c(5); e(13); e(14); e(15); c(6); c(7)
        if (X == "A" and tt == 5) or (X == "B" and tt == 5):
            a(f"v_cmp_nge_f32 vcc, s64, v{O[Y]+8}")
            a(f"s_cbranch_vccnz {name}_rare{Y}")
            a.label(f"{name}_ret{Y}")
    a("s_brev_b32 s75, 1")
    a0 = a
    class Filt:
        def __call__(self, s):
            if E("ATNOBAR") and "s_barrier" in s: return
            if E("ATNODMA") and " lds" in s: return
            if E("ATNORD") and "ds_read" in s: return
            if E("ATNOCHK") and ("v_cmp_nge" in s or "vccnz" in s): return
            a0(s)
        def __getattr__(self, n): return getattr(a0, n)
    a = Filt()
    for tt in range(8):
        half("A", tt)
        half("B", tt)
    a = a0
    a("s_mov_b32 s3, s71")
    a("s_mov_b32 s71, s72")
    a("s_mov_b32 s72, s3")
    a("s_sub_u32 s67, s67, 1")
    a("s_cmp_lg_u32 s67, 0")
    a(f"s_cbranch_scc1 {name}_loop")
    a("s_nop 1")
    mf(O["B"], V1(1), P["B"] + 4, O["B"])
    a("s_cmp_lg_u32 s65, 0")
    a(f"s_cbranch_scc1 {name}_safe")
    a.label(f"{name}_fin")
    stamp(a, 5)
    a.nop(14)
    a("s_mul_i32 s4, s61, 288")
    a("s_add_u32 s4, s4, s60")
    a("s_lshl_b32 s4, s4, 10")
    a(f"s_add_u32 s4, s4, {WS_AF}")
    a(f"s_add_u32 s5, s4, {144*1024}")
    a("v_lshlrev_b32 v12, 4, v1")
    for X in "AB":
        l = O[X] + 8
        a(f"v_mov_b32 v{T0}, v{l}")
        a("s_nop 1")
        a(f"v_permlane32_swap_b32 v{T0}, v{l}")
        a("s_nop 1")
        a(f"v_mul_f32 v{T0+2+(X=='B')}, 0, v{T0}")
        a(f"v_rcp_f32 v{T0}, v{T0}")
        a("s_nop 0")
        for i in range(8):
            a(f"v_mul_f32 v{O[X]+i}, v{O[X]+i}, v{T0}")
        for i in range(4):
            a(f"v_cvt_pk_bf16_f32 v{P[X]+i}, v{O[X]+2*i}, v{O[X]+2*i+1}")
        a(f"buffer_store_dwordx4 v[{P[X]}:{P[X]+3}], v12, s[36:39], {'s4' if X=='A' else 's5'} offen sc1")
    for X in "AB":
        for i in range(8):
            a(f"v_fma_f32 v{T0+2+(X=='B')}, v{O[X]+i}, 0, v{T0+2+(X=='B')}")
    a(f"v_cmp_u_f32 vcc, v{T0+2}, v{T0+3}")
    a("s_cmp_eq_u32 s65, 0")
    a("s_cselect_b64 s[4:5], vcc, 0")
    a("s_cmp_lg_u64 s[4:5], 0")
    a(f"s_cbranch_scc1 {name}_safe")
    a("s_lshl_b32 s4, s61, 7")
    a("s_lshl_b32 s5, s60, 2")
    a("s_add_u32 s4, s4, s5")
    a(f"s_add_u32 s4, s4, {FO}")
    publish(a, "s4", T0)
    dump_stamps(a, 6)
    a("s_endpgm")
    for Y in "AB":
        a.label(f"{name}_rare{Y}")
        a.nop(16)
        l = O[Y] + 8
        a(f"v_mov_b32 v{T0+2}, 0x207")
        a(f"v_cmp_class_f32 vcc, v{l}, v{T0+2}")
        a("s_cmp_lg_u64 vcc, 0")
        a("s_cselect_b32 s65, 1, s65")
        a(f"s_cbranch_scc1 {name}_ret{Y}")
        a(f"v_frexp_exp_i32_f32 v{T0}, v{l}")
        a(f"v_add_u32 v{T0}, {BIAS}, v{T0}")
        a(f"v_max_i32 v{T0}, 0, v{T0}")
        a(f"v_mov_b32 v{T0+1}, v{T0}")
        a("s_nop 1")
        a(f"v_permlane32_swap_b32 v{T0}, v{T0+1}")
        a("s_nop 1")
        a(f"v_cvt_f32_i32 v{T0+1}, v{T0}")
        a(f"v_sub_u32 v{T0}, 0, v{T0}")
        for i in range(9): a(f"v_ldexp_f32 v{O[Y]+i}, v{O[Y]+i}, v{T0}")
        for i in range(16): a(f"v_sub_f32 v{NEG[Y]+i}, v{NEG[Y]+i}, v{T0+1}")
        for i in range(16): a(f"v_sub_f32 v{S[Y]+i}, v{S[Y]+i}, v{T0+1}")
        a("s_nop 1")
        a(f"s_branch {name}_ret{Y}")
    a.label(f"{name}_safe")
    a("s_waitcnt vmcnt(0) lgkmcnt(0)")
    a.nop(16)
    a("s_mov_b32 s65, 2")
    a("v_and_b32 v14, 31, v1")
    a("v_lshrrev_b32 v15, 5, v1")
    a("v_lshlrev_b32 v3, 8, v15")
    a("v_lshl_add_u32 v3, v14, 4, v3")
    a("v_mov_b32 v15, 0x3f803f80")
    a("v_cmp_eq_u32 vcc, 16, v14")
    a("s_mov_b32 s62, 0x0000ffff")
    a("s_mov_b32 s63, 0x0000ffff")
    a("v_cndmask_b32 v15, 0, v15, vcc")
    for i in range(8): a(f"v_mov_b32 v{V0(0)+i}, v15")
    def loads(slot, soff, imm):
        a(f"buffer_load_dwordx4 v[{Kf(slot)}:{Kf(slot)+3}], v{VD}, s[44:47], {soff} offen offset:{imm} sc1")
        a("s_mov_b64 exec, s[62:63]")
        a(f"buffer_load_dwordx4 v[{V0(slot)}:{V0(slot)+3}], v3, s[48:51], {soff} offen offset:{imm} sc1")
        a(f"buffer_load_dwordx4 v[{V1(slot)}:{V1(slot)+3}], v3, s[48:51], {soff} offen offset:{imm+512} sc1")
        a("s_mov_b64 exec, -1")
    M = {"A": NEG["A"], "B": NEG["B"]}
    for X in "AB":
        for i in range(16): a(f"v_mov_b32 v{O[X]+i}, 0")
        a(f"v_mov_b32 v{M[X]}, 0xff800000")
    a("s_mov_b32 s66, 0")
    a("s_mov_b32 s67, 64")
    a.label(f"{name}_sloop")
    loads(0, "s66", 0)
    a("s_waitcnt vmcnt(0)")
    for X in "AB":
        mf(S[X], Kf(0), Q[X], None)
    a.nop(16)
    for X in "AB":
        x, p, m = S[X], P[X], M[X]
        a(f"v_max3_f32 v{T0}, v{x}, v{x+1}, v{x+2}")
        for i in range(3, 15, 2):
            a(f"v_max3_f32 v{T0}, v{T0}, v{x+i}, v{x+i+1}")
        a(f"v_max_f32 v{T0}, v{T0}, v{x+15}")
        a(f"v_mov_b32 v{T0+1}, v{T0}")
        a("s_nop 1")
        a(f"v_permlane32_swap_b32 v{T0+1}, v{T0}")
        a("s_nop 1")
        a(f"v_max3_f32 v{T0}, v{T0}, v{T0+1}, v{m}")
        a(f"v_sub_f32 v{T0+1}, v{m}, v{T0}")
        a(f"v_exp_f32 v{T0+1}, v{T0+1}")
        a(f"v_mov_b32 v{m}, v{T0}")
        for i in range(9): a(f"v_mul_f32 v{O[X]+i}, v{O[X]+i}, v{T0+1}")
        for i in range(16): a(f"v_sub_f32 v{x+i}, v{x+i}, v{T0}")
        for i in range(16): a(f"v_exp_f32 v{x+i}, v{x+i}")
        a("s_nop 0")
        for i in range(8): a(f"v_cvt_pk_bf16_f32 v{p+i}, v{x+2*i}, v{x+2*i+1}")
        a("s_nop 1")
        mf(O[X], V0(0), p, O[X])
        mf(O[X], V1(0), p + 4, O[X])
    a.nop(16)
    a("s_add_u32 s66, s66, 1024")
    a("s_sub_u32 s67, s67, 1")
    a("s_cmp_lg_u32 s67, 0")
    a(f"s_cbranch_scc1 {name}_sloop")
    a(f"s_branch {name}_fin")

def gemm2(a0, middle):
    class Filt:
        def __call__(self, s):
            if E("G2NOMFMA") and "v_mfma" in s: return
            if E("G2NOLD") and ("buffer_load_dwordx4" in s): return
            if E("G2NORD") and ("ds_read_b64_tr" in s): return
            a0(s)
        def __getattr__(self, n): return getattr(a0, n)
    a = Filt()
    D, NH, NK = 8, 28, 36
    ACC, AR, WF = 64, 128, 32
    a("s_and_b32 s3, s2, 7")
    a("s_bfe_u32 s4, s2, 0x50003")
    a("s_lshl_b32 s5, s3, 2")
    a("s_and_b32 s6, s4, 3")
    a("s_add_u32 s12, s5, s6")
    a("s_lshr_b32 s13, s4, 2")
    srd(a, 44, 20, 512 * 1024)
    srd(a, 48, 28, 1792 * 1024)
    a(f"s_mul_i32 s53, s40, {NH*16384}")
    a("s_lshl_b32 s52, s40, 17")
    a("s_mul_i32 s54, s12, 288")
    a(f"s_mul_i32 s5, s40, {NH}")
    a("s_add_u32 s5, s5, s54")
    a("s_add_u32 s5, s5, 32")
    a("s_lshl_b32 s5, s5, 10")
    a(f"s_add_u32 s60, s5, {WS_AF}")
    a(f"s_add_u32 s61, s60, {144*1024}")
    a("s_lshl_b32 s5, s40, 3")
    a("s_add_u32 s5, s5, s54")
    a("s_lshl_b32 s5, s5, 10")
    a(f"s_add_u32 s62, s5, {WS_AF}")
    a(f"s_add_u32 s63, s62, {144*1024}")
    a(f"s_mul_i32 s56, s40, {D*2048}")
    a("s_and_b32 s5, s12, 3")
    a("s_lshl_b32 s5, s5, 1")
    a("s_add_u32 s5, s5, s13")
    a("s_cmp_ge_u32 s5, 7")
    a("s_cselect_b32 s6, 7, 0")
    a("s_sub_u32 s5, s5, s6")
    if E("NOHROT"): a("s_mov_b32 s5, 0")
    a("s_lshl_b32 s6, s5, 16")
    a("s_add_u32 s53, s53, s6")
    a("s_lshl_b32 s6, s5, 12")
    a("s_add_u32 s60, s60, s6")
    a("s_add_u32 s61, s61, s6")
    a("s_sub_u32 s64, 7, s5")
    a("s_mov_b32 s65, s64")
    a("v_lshlrev_b32 v2, 4, v1")
    a("v_lshrrev_b32 v3, 5, v1")
    a("v_lshlrev_b32 v4, 2, v3")
    a("v_bfe_u32 v5, v1, 2, 2")
    a("v_add_u32 v4, v4, v5")
    a("v_lshlrev_b32 v4, 10, v4")
    a("v_bfe_u32 v6, v1, 4, 1")
    a("v_lshl_add_u32 v4, v6, 6, v4")
    a("v_and_b32 v7, 3, v1")
    a("v_lshl_add_u32 v4, v7, 4, v4")
    a("s_lshl_b32 s57, s13, 7")
    a("v_add_u32 v4, s57, v4")
    a("v_add_u32 v9, 8192, v4")
    a("v_lshlrev_b32 v8, 9, v3")
    a("v_lshl_add_u32 v8, v5, 6, v8")
    a("v_lshl_add_u32 v8, v6, 5, v8")
    a("v_lshl_add_u32 v8, v7, 3, v8")
    a("v_add_u32 v8, s56, v8")
    q = VMQ(a)
    def loadW(i):
        s = i % D
        sr_, so = ("s[48:51]", "s53") if i < NH else ("s[44:47]", "s52")
        a(f"s_add_u32 m0, s56, {s*2048}")
        a("s_nop 0")
        a(f"buffer_load_dwordx4 v4, {sr_}, {so} offen lds"); q.issue(("W", i))
        a(f"s_add_u32 m0, s56, {s*2048+1024}")
        a("s_nop 0")
        a(f"buffer_load_dwordx4 v9, {sr_}, {so} offen lds"); q.issue(("W", i))
        a(f"s_add_u32 {so}, {so}, 16384")
        if i < NH and i % 4 == 3:
            a("s_sub_u32 s64, s64, 1")
            a("s_cmp_eq_u32 s64, 0")
            a(f"s_cselect_b32 s6, {NH*16384}, 0")
            a("s_sub_u32 s53, s53, s6")
    def loadA(i):
        r = AR + (i % D) * 8
        j = i if i < NH else i - NH
        s0, s1 = ("s60", "s61") if i < NH else ("s62", "s63")
        a(f"buffer_load_dwordx4 v[{r}:{r+3}], v2, s[36:39], {s0} offen offset:{(j%4)*1024} sc1"); q.issue(("A", i))
        a(f"buffer_load_dwordx4 v[{r+4}:{r+7}], v2, s[36:39], {s1} offen offset:{(j%4)*1024} sc1"); q.issue(("A", i))
        if j % 4 == 3:
            a(f"s_add_u32 {s0}, {s0}, 4096")
            a(f"s_add_u32 {s1}, {s1}, 4096")
            if i < NH:
                a("s_sub_u32 s65, s65, 1")
                a("s_cmp_eq_u32 s65, 0")
                a(f"s_cselect_b32 s6, {NH*1024}, 0")
                a("s_sub_u32 s60, s60, s6")
                a("s_sub_u32 s61, s61, s6")
    for i in range(D): loadW(i)
    middle()
    a("s_lshl_b32 s66, s12, 7")
    a(f"s_add_u32 s4, s66, {FH}")
    a(f"s_setprio {E('PB2', '0')}")
    poll(a, "s4", 32, 12); q.drained()
    stamp(a, 4)
    for i in range(D): loadA(i)
    def rd(i):
        s = i % D
        for u in range(2):
            b = WF + (i % 2) * 8 + u * 4
            a(f"ds_read_b64_tr_b16 v[{b}:{b+1}], v8 offset:{s*2048+u*256}")
            a(f"ds_read_b64_tr_b16 v[{b+2}:{b+3}], v8 offset:{s*2048+1024+u*256}")
    rd(0)
    for i in range(NK):
        if i == NH:
            a(f"s_add_u32 s4, s66, {FO}")
            stamp(a, 5)
            poll(a, "s4", 32, 12); q.drained()
            stamp(a, 6)
            for j in range(NH, NK): loadA(j)
        tags = [("A", i)] + ([("W", i + 1)] if i + 1 < NK else [])
        tags = [t for t in tags if t in q.q]
        if tags: q.wait(tags)
        if i + 1 < NK:
            rd(i + 1)
            a("s_waitcnt lgkmcnt(4)")
        else:
            a("s_waitcnt lgkmcnt(0)")
        r = AR + (i % D) * 8
        for t in range(2):
            for u in range(2):
                w = WF + (i % 2) * 8 + u * 4
                d = ACC + (t * 2 + u) * 16
                mfma(a, d, w, r + 4 * t, d if i > 0 else None)
        if i + D < NK:
            loadW(i + D)
            if i + D < NH: loadA(i + D)
    PITCH = 272
    a("s_setprio 2")
    a("s_barrier")
    a("v_and_b32 v9, 31, v1")
    a(f"v_mul_u32_u24 v9, {PITCH}, v9")
    a("v_lshl_add_u32 v9, v3, 4, v9")
    a(f"s_mul_i32 s56, s40, {64*PITCH}")
    a("v_add_u32 v9, s56, v9")
    a("v_lshrrev_b32 v10, 3, v0")
    a("v_and_b32 v11, 7, v0")
    a("s_lshl_b32 s57, s12, 6")
    a("v_add_u32 v12, s57, v10")
    a("v_lshlrev_b32 v12, 10, v12")
    a("v_lshl_add_u32 v12, v11, 4, v12")
    a("s_lshl_b32 s57, s13, 7")
    a("v_add_u32 v12, s57, v12")
    srd(a, 44, 16, 2048 * 1024)
    srd(a, 48, 30, 2048 * 1024)
    a("s_mov_b32 s58, 32768")
    a("buffer_load_dwordx4 v[16:19], v12, s[44:47], 0 offen")
    a("buffer_load_dwordx4 v[20:23], v12, s[44:47], s58 offen")
    for t in range(2):
        for u in range(2):
            d = ACC + (t * 2 + u) * 16
            for j in range(4):
                a(f"ds_write_b128 v9, v[{d+4*j}:{d+4*j+3}] offset:{t*32*PITCH + u*128 + j*32}")
    a(f"v_mul_u32_u24 v13, {PITCH}, v10")
    a("v_lshl_add_u32 v13, v11, 5, v13")
    a("s_waitcnt lgkmcnt(0)")
    a("s_barrier")
    for it in range(2):
        for w in range(4):
            b = AR + (it * 4 + w) * 8
            off = w * 64 * PITCH + it * 32 * PITCH
            a(f"ds_read_b128 v[{b}:{b+3}], v13 offset:{off}")
            a(f"ds_read_b128 v[{b+4}:{b+7}], v13 offset:{off+16}")
    a("s_waitcnt vmcnt(0)")
    for it in range(2):
        xs = 16 + 4 * it
        for i in range(4):
            a(f"v_lshlrev_b32 v{24+it*8+2*i}, 16, v{xs+i}")
            a(f"v_and_b32 v{25+it*8+2*i}, 0xffff0000, v{xs+i}")
    for it in range(2):
        a(f"s_waitcnt lgkmcnt({8*(1-it)})")
        for w in range(4):
            b = AR + (it * 4 + w) * 8
            for i in range(8):
                a(f"v_add_f32 v{24+it*8+i}, v{24+it*8+i}, v{b+i}")
        for i in range(4):
            a(f"v_cvt_pk_bf16_f32 v{40+it*4+i}, v{24+it*8+2*i}, v{25+it*8+2*i}")
        a(f"buffer_store_dwordx4 v[{40+it*4}:{43+it*4}], v12, s[48:51], {'0' if it==0 else 's58'} offen{E('OUTF', '')}")
    dump_stamps(a, 7)
    a("s_endpgm")

def gen(a):
    a.raw(f".globl {NAME}")
    a.raw(".p2align 8")
    a.raw(f".type {NAME},@function")
    a.label(NAME)
    a("s_cmp_ge_u32 s2, 512")
    a(f"s_cbranch_scc1 {NAME}_done")
    a("s_load_dwordx16 s[16:31], s[0:1], 0")
    a("s_load_dwordx4 s[32:35], s[0:1], 64")
    a("s_memrealtime s[10:11]")
    a("v_and_b32 v1, 63, v0")
    a("v_lshrrev_b32 v2, 6, v0")
    a("s_and_b32 s3, s2, 7")
    a("v_readfirstlane_b32 s40, v2")
    a("s_bfe_u32 s4, s2, 0x50003")
    a("s_and_b32 s5, s3, 1")
    a("s_lshl_b32 s5, s5, 3")
    a("s_and_b32 s6, s4, 7")
    a("s_add_u32 s41, s5, s6")
    a("s_lshr_b32 s5, s3, 1")
    a("s_lshl_b32 s5, s5, 2")
    a("s_lshr_b32 s6, s4, 3")
    a("s_add_u32 s42, s5, s6")
    if E("CODEPF"):
        a("s_getpc_b64 s[52:53]")
        a.label("pf_pc")
        a(f"s_sub_u32 s52, s52, pf_pc-{NAME}")
        a("s_subb_u32 s53, s53, 0")
        a(f"s_mov_b32 s54, {NAME}_done-{NAME}")
        a("s_mov_b32 s55, 0x00020000")
        a("s_lshr_b32 s7, s2, 3")
        a("s_lshl_b32 s7, s7, 12")
        a("v_lshlrev_b32 v3, 4, v0")
        a("buffer_load_dwordx4 v[248:251], v3, s[52:55], s7 offen")
    a("s_waitcnt lgkmcnt(0)")
    stamp(a, 0)
    srd(a, 36, 34, WS_NREC)
    srd(a, 56, 32, 256)
    a("s_cmp_ge_u32 s2, 256")
    a(f"s_cbranch_scc1 {NAME}_B")
    a("s_setprio 2")
    a("s_or_b32 s3, s2, s40")
    a("s_cmp_lg_u32 s3, 0")
    a(f"s_cbranch_scc1 {NAME}_A")
    a("s_or_b32 s10, s10, 1")
    a("v_mov_b32 v2, s10")
    a("v_mov_b32 v3, 0")
    a("s_mov_b64 exec, 1")
    a("buffer_store_dword v2, v3, s[56:59], 0 offen sc1")
    a("s_mov_b64 exec, -1")
    a("s_waitcnt vmcnt(0)")
    a.label(f"{NAME}_A")
    if E("ONLY_B"): a("s_endpgm")
    QL = gemm1A(a)
    if E("ONLY_G1"):
        dump_stamps(a, 7 if E("ITER") else 4)
        a("s_endpgm")
    attention(a, QL)
    a.label(f"{NAME}_B")
    if E("ONLY_A"): a("s_endpgm")
    a("s_setprio 3")
    epi = gemm1B(a)
    gemm2(a, epi)
    a.label(f"{NAME}_done")
    a("s_endpgm")

if __name__ == "__main__":
    out = sys.argv[1] if len(sys.argv) > 1 else "v3.s"
    a = Asm()
    gen(a)
    for p in check_hazards(a.lines, NAME): print("HAZARD", p, file=sys.stderr)
    txt = HEADER + ("; @launch grid=(512,1,1) block=(256,1,1) lds=81920\n" if E("FINAL") else f"; @launch kernel={NAME} grid=(512,1,1) block=(256,1,1) lds=81920\n") + '.amdgcn_target "amdgcn-amd-amdhsa--gfx950"\n.text\n' + a.text()
    txt += f""".section .rodata,"a"
.p2align 6
.amdhsa_kernel {NAME}
  .amdhsa_next_free_vgpr 256
  .amdhsa_next_free_sgpr 102
  .amdhsa_accum_offset 256
  .amdhsa_group_segment_fixed_size 0
  .amdhsa_kernarg_size 80
  .amdhsa_user_sgpr_count 2
  .amdhsa_user_sgpr_kernarg_segment_ptr 1
  .amdhsa_system_sgpr_workgroup_id_x 1
.end_amdhsa_kernel
"""
    open(out, "w").write(txt)
```

```python
import sys, math, struct, os
from asmlib import *

def f2h(x):
    return "0x%08x" % struct.unpack("<I", struct.pack("<f", x))[0]
E = os.environ.get
WS_KH = 4 << 20
WS_VT = 6 << 20
WS_AF = 8 << 20
WS_FL = 20 << 20
F1, FH, FO, FX = WS_FL, WS_FL + 4096, WS_FL + 8192, WS_FL + 12288
WS_ST = 21 << 20
WS_NREC = 32 << 20
LOG2E = math.log2(math.e)
QSCALE = 0.25 * LOG2E
TIMING = bool(E("TIMING"))
SPIN_MAX = 200000
NAME = "parallel_sum__mha_block__swiglu_ffn__prompt_kernel" if E("FINAL") else "fused_kernel"

HEADER = """; Kernarg layout for this problem (80 bytes, ptrs only, base s[0:1]):
;
;  Hand-offs between workgroups: sc1 (write-through) stores, s_waitcnt vmcnt(0), flag word = per-launch nonce (d_debug[0]);
;  consumers poll the flags with sc1 loads (bounded spins) and read the data with sc1 loads.  Placement only affects speed.
"""

def srd(a, d, base, nrec):
    a(f"s_mov_b32 s{d}, s{base}")
    a(f"s_mov_b32 s{d+1}, s{base+1}")
    a(f"s_mov_b32 s{d+2}, {nrec}")
    a(f"s_mov_b32 s{d+3}, 0x00020000")

def stamp(a, idx):
    if TIMING:
        a(f"{'s_memtime' if E('CYC') else 's_memrealtime'} s[{84+2*idx}:{85+2*idx}]")
        a("s_waitcnt lgkmcnt(0)")
def dump_stamps(a, last):
    if E("DBGT"):
        a("s_waitcnt vmcnt(0)")
        stamp(a, last)
        a("s_mov_b32 s76, s32")
        a("s_mov_b32 s77, s33")
        a("s_mov_b32 s78, 256")
        a("s_mov_b32 s79, 0x00020000")
        a("s_mov_b64 exec, 1")
        a("v_mov_b32 v250, 0")
        base = 1 if last == 6 else 8
        for i in range(1, last + 1):
            a(f"s_sub_u32 s80, s{84+2*i}, s83")
            a("v_mov_b32 v252, s80")
            a(f"buffer_atomic_umax v252, v250, s[76:79], 0 offen offset:{4*(base+i-1)}")
            a("s_nop 1")
        return
    if TIMING:
        a("s_waitcnt vmcnt(0)")
        stamp(a, last)
        a("s_add_u32 s76, s34, 0x8000000")
        a("s_addc_u32 s77, s35, 0")
        a("s_mov_b32 s78, 0x100000")
        a("s_mov_b32 s79, 0x00020000")
        a("s_lshl_b32 s80, s2, 7")
        a("s_lshl_b32 s81, s40, 5")
        a("s_add_u32 s80, s80, s81")
        a("v_mov_b32 v250, s80")
        for i in range(8):
            a(f"v_mov_b32 v252, s{84+2*i}")
            a(f"buffer_store_dword v252, v250, s[76:79], 0 offen offset:{4*i}")
            a("s_nop 1")

def round_bf16(a, v, t):
    a(f"v_cvt_pk_bf16_f32 v{t}, v{v}, v{v}")
    a(f"v_lshlrev_b32 v{v}, 16, v{t}")

def mfma(a, d, x, y, c):
    a(f"v_mfma_f32_32x32x16_bf16 v[{d}:{d+15}], v[{x}:{x+3}], v[{y}:{y+3}], " + (f"v[{c}:{c+15}]" if c is not None else "0"))

class VMQ:
    def __init__(self, a): self.a, self.q = a, []
    def issue(self, tag): self.q.append(tag)
    def wait(self, tags):
        idx = max(i for i, t in enumerate(self.q) if t in tags)
        self.a(f"s_waitcnt vmcnt({len(self.q)-1-idx})")
    def drained(self): self.q = []

UID = [0]
def uid():
    UID[0] += 1
    return UID[0]

def get_nonce(a, vt):
    n = uid()
    a(f"v_mov_b32 v{vt+1}, 0")
    a(f"s_mov_b32 s3, {SPIN_MAX}")
    a.label(f"nonce{n}")
    a(f"buffer_load_dword v{vt}, v{vt+1}, s[56:59], 0 offen sc1")
    a("s_waitcnt vmcnt(0)")
    a(f"v_readfirstlane_b32 s83, v{vt}")
    a("s_sub_u32 s3, s3, 1")
    a("s_cmp_eq_u32 s3, 0")
    a(f"s_cbranch_scc1 nonce{n}_ok")
    a("s_cmp_lg_u32 s83, 0")
    a(f"s_cbranch_scc1 nonce{n}_ok")
    a("s_sleep 8")
    a(f"s_branch nonce{n}")
    a.label(f"nonce{n}_ok")

def publish(a, soff, vt):
    a(f"v_mov_b32 v{vt}, s83")
    a(f"v_mov_b32 v{vt+1}, 0")
    a("s_waitcnt vmcnt(0)")
    a("s_mov_b64 exec, 1")
    a(f"buffer_store_dword v{vt}, v{vt+1}, s[36:39], {soff} offen sc1")
    a("s_mov_b64 exec, -1")

def poll(a, soff, nflags, vt):
    n = uid()
    a("s_cmp_lg_u32 s40, 0")
    a(f"s_cbranch_scc1 poll{n}_ok")
    a(f"v_and_b32 v{vt+1}, {nflags-1}, v1")
    a(f"v_lshlrev_b32 v{vt+1}, 2, v{vt+1}")
    a(f"s_mov_b32 s3, {SPIN_MAX}")
    a.label(f"poll{n}")
    a(f"buffer_load_dword v{vt}, v{vt+1}, s[36:39], {soff} offen sc1")
    a("s_waitcnt vmcnt(0)")
    a(f"v_cmp_ne_u32 vcc, s83, v{vt}")
    a(f"s_cbranch_vccz poll{n}_ok")
    a(f"s_sleep {E('SLEEP', '4')}")
    a("s_sub_u32 s3, s3, 1")
    a("s_cmp_lg_u32 s3, 0")
    a(f"s_cbranch_scc1 poll{n}")
    a.label(f"poll{n}_ok")
    a("s_waitcnt vmcnt(0)")
    a("s_barrier")

def ln_load(a):
    srd(a, 44, 16, 2048 * 1024)
    a("s_lshl_b32 s3, s41, 7")
    a("s_lshl_b32 s4, s42, 3")
    a("s_add_u32 s3, s3, s4")
    a("s_lshl_b32 s4, s40, 1")
    a("s_add_u32 s3, s3, s4")
    a("s_lshl_b32 s3, s3, 10")
    a("v_lshlrev_b32 v2, 4, v1")
    a("buffer_load_dwordx4 v[208:211], v2, s[44:47], s3 offen")
    a("buffer_load_dwordx4 v[212:215], v2, s[44:47], s3 offen offset:1024")
    a("v_mov_b32 v247, 0")
    a("buffer_load_dword v246, v247, s[56:59], 0 offen sc1")

def ln_addr(a):
    a("v_lshlrev_b32 v240, 7, v1")
    a("s_lshl_b32 s3, s40, 5")
    a("v_add_u32 v240, s3, v240")
    a("v_lshlrev_b32 v241, 4, v1")
    a("s_lshl_b32 s3, s40, 12")
    a("v_add_u32 v241, s3, v241")
    a("v_lshrrev_b32 v242, 3, v1")
    a("v_lshrrev_b32 v243, 1, v242")
    a("v_lshlrev_b32 v243, 10, v243")
    a("v_and_b32 v242, 1, v242")
    a("v_lshl_add_u32 v243, v242, 9, v243")
    a("v_and_b32 v242, 7, v1")
    a("v_lshl_add_u32 v243, v242, 4, v243")
    a("s_lshl_b32 s3, s41, 2")
    a("s_lshr_b32 s4, s42, 2")
    a("s_add_u32 s5, s3, s4")
    a("s_lshl_b32 s60, s5, 15")
    a("s_and_b32 s4, s42, 3")
    a("s_lshl_b32 s6, s4, 7")
    a("s_add_u32 s60, s60, s6")
    a("s_lshl_b32 s6, s40, 14")
    a("s_add_u32 s60, s60, s6")
    a("s_lshl_b32 s5, s5, 6")
    a("s_lshl_b32 s4, s4, 4")
    a("s_add_u32 s5, s5, s4")
    a("s_lshl_b32 s4, s40, 3")
    a("s_add_u32 s5, s5, s4")
    a(f"s_add_u32 s66, s5, {FX}")

def ln_compute(a, LS):
    X = (216, 224)
    S = 232
    a("v_readfirstlane_b32 s83, v246")
    if E("LNST"): stamp(a, 2)
    for r in range(2):
        for i in range(4):
            a(f"v_lshlrev_b32 v{X[r]+2*i}, 16, v{208+4*r+i}")
            a(f"v_and_b32 v{X[r]+2*i+1}, 0xffff0000, v{208+4*r+i}")
    for r in range(2):
        a(f"v_add_f32 v{S+r}, v{X[r]}, v{X[r]+1}")
        a(f"v_mul_f32 v{S+2+r}, v{X[r]}, v{X[r]}")
    for i in range(1, 8):
        for r in range(2):
            if i >= 2: a(f"v_add_f32 v{S+r}, v{S+r}, v{X[r]+i}")
            a(f"v_fmac_f32 v{S+2+r}, v{X[r]+i}, v{X[r]+i}")
    for off in (0x041F, 0x081F, 0x101F, 0x201F, 0x401F):
        for i in range(4): a(f"ds_swizzle_b32 v{S+4+i}, v{S+i} offset:{off}")
        a("s_waitcnt lgkmcnt(0)")
        for i in range(4): a(f"v_add_f32 v{S+i}, v{S+i}, v{S+4+i}")
    for i in range(4): a(f"v_mov_b32 v{S+4+i}, v{S+i}")
    a("s_nop 1")
    for i in range(4): a(f"v_permlane32_swap_b32 v{S+4+i}, v{S+i}")
    a("s_nop 1")
    for i in range(4): a(f"v_add_f32 v{S+i}, v{S+i}, v{S+4+i}")
    for i in range(4): a(f"v_mul_f32 v{S+i}, {f2h(1.0/512)}, v{S+i}")
    for r in range(2): a(f"v_fma_f32 v{S+2+r}, -v{S+r}, v{S+r}, v{S+2+r}")
    for r in range(2): a(f"v_max_f32 v{S+2+r}, 0, v{S+2+r}")
    def rnd(regs):
        for k, v in enumerate(regs): a(f"v_cvt_pk_bf16_f32 v{S+4+k}, v{v}, v{v}")
        for k, v in enumerate(regs): a(f"v_lshlrev_b32 v{v}, 16, v{S+4+k}")
    rnd((S, S + 1, S + 2, S + 3))
    for r in range(2): a(f"v_add_f32 v{S+2+r}, {f2h(1e-5)}, v{S+2+r}")
    rnd((S + 2, S + 3))
    for r in range(2): a(f"v_sqrt_f32 v{S+2+r}, v{S+2+r}")
    a("s_nop 0")
    rnd((S + 2, S + 3))
    for r in range(2): a(f"v_rcp_f32 v{S+2+r}, v{S+2+r}")
    for r in range(2):
        for i in range(8): a(f"v_sub_f32 v{X[r]+i}, v{X[r]+i}, v{S+r}")
    for r in range(2):
        for i in range(4): a(f"v_cvt_pk_bf16_f32 v{208+4*r+i}, v{X[r]+2*i}, v{X[r]+2*i+1}")
    for r in range(2):
        for i in range(4):
            a(f"v_lshlrev_b32 v{X[r]+2*i}, 16, v{208+4*r+i}")
            a(f"v_and_b32 v{X[r]+2*i+1}, 0xffff0000, v{208+4*r+i}")
    for r in range(2):
        for i in range(8): a(f"v_mul_f32 v{X[r]+i}, v{X[r]+i}, v{S+2+r}")
    for r in range(2):
        for i in range(4): a(f"v_cvt_pk_bf16_f32 v{208+4*r+i}, v{X[r]+2*i}, v{X[r]+2*i+1}")
    a(f"ds_write_b128 v240, v[208:211] offset:{LS}")
    a(f"ds_write_b128 v240, v[212:215] offset:{LS+16}")
    a("s_cmp_lg_u32 s83, 0")
    a("s_cbranch_scc1 ln_have_nonce")
    get_nonce(a, 244)
    a.label("ln_have_nonce")
    a("s_waitcnt lgkmcnt(0)")
    a("s_barrier")
    a("s_cmp_ge_u32 s40, 2")
    a("s_cbranch_scc1 ln_done")
    for q in range(4): a(f"ds_read_b128 v[{208+4*q}:{211+4*q}], v241 offset:{LS+1024*q}")
    a("v_mov_b32 v244, s83")
    a("v_mov_b32 v245, s83")
    for q in range(4):
        a(f"s_waitcnt lgkmcnt({3-q})")
        a(f"buffer_store_dwordx4 v[{208+4*q}:{211+4*q}], v243, s[36:39], s60 offen sc1")
        if q < 3: a("s_add_u32 s60, s60, 4096")
    a("s_waitcnt vmcnt(0)")
    a("s_mov_b64 exec, 1")
    a("buffer_store_dwordx2 v[244:245], v247, s[36:39], s66 offen sc1")
    a("s_mov_b64 exec, -1")

def poll_xn(a, vt):
    a("s_lshl_b32 s43, s41, 2")
    a("s_add_u32 s43, s43, s40")
    a("s_lshl_b32 s4, s41, 8")
    a(f"s_add_u32 s4, s4, {FX}")
    poll(a, "s4", 64, vt)
    a("s_lshl_b32 s70, s43, 15")
    a("s_lshl_b32 s73, s74, 12")
    a("s_add_u32 s72, s70, s73")

def rot_setup(a, add, pitch):
    a("s_and_b32 s10, s41, 7")
    a("s_and_b32 s11, s42, 3")
    a("s_lshl_b32 s11, s11, 1")
    a("s_add_u32 s10, s10, s11")
    if add: a(f"s_add_u32 s10, s10, {add}")
    a("s_and_b32 s74, s10, 7")
    if E("NOROT"): a("s_mov_b32 s74, 0")
    a(f"s_mul_i32 s11, s74, {64*pitch}")
    a("s_add_u32 s64, s64, s11")
    a("s_sub_u32 s67, 8, s74")
def w_wrap(pitch):
    return ["s_sub_u32 s67, s67, 1", "s_cmp_eq_u32 s67, 0", f"s_cselect_b32 s10, {512*pitch}, 0", "s_sub_u32 s64, s64, s10"]
X_ADV = ["s_add_u32 s73, s73, 4096", "s_and_b32 s73, s73, 32767", "s_add_u32 s72, s70, s73"]

def tr_base(a, RW, base):
    a("v_lshrrev_b32 v17, 5, v1")
    a("v_bfe_u32 v18, v1, 2, 2")
    a("v_lshl_add_u32 v18, v17, 3, v18")
    a("v_and_b32 v19, 3, v1")
    a("v_bfe_u32 v20, v1, 4, 1")
    a(f"v_lshlrev_b32 v{RW}, 6, v18")
    a(f"v_lshl_add_u32 v{RW}, v20, 5, v{RW}")
    a(f"v_lshl_add_u32 v{RW}, v19, 3, v{RW}")
    if base: a(f"v_add_u32 v{RW}, {base}, v{RW}")

def gemm1A(a):
    KV, NS = 32768, 12
    VW, VW3, RW, RW2 = 6, 7, 8, 9
    WF, ACC, XN = 16, 64, 112
    srd(a, 48, 18, 512 * 3072)
    a("s_and_b32 s3, s40, 1")
    a("s_lshr_b32 s4, s40, 1")
    a("v_lshrrev_b32 v16, 2, v1")
    a("v_and_b32 v17, 3, v1")
    a(f"v_mul_u32_u24 v{VW}, 3072, v16")
    a(f"v_lshl_add_u32 v{VW}, v17, 4, v{VW}")
    a("s_lshl_b32 s64, s42, 6")
    a(f"s_mul_i32 s5, s3, {16*3072}")
    a("s_add_u32 s64, s64, s5")
    a(f"v_add_u32 v{VW3}, 2048, v{VW}")
    a("s_lshl_b32 s5, s4, 10")
    a(f"v_add_u32 v{VW}, s5, v{VW}")
    a("s_lshl_b32 s6, s3, 10")
    a(f"s_add_u32 s69, s6, {KV+2048}")
    a("s_lshl_b32 s5, s4, 15")
    a("s_add_u32 s68, s5, s6")
    a("s_cmp_eq_u32 s4, 0")
    a("s_cselect_b32 s14, -1, 0")
    a("s_cselect_b32 s15, 0, -1")
    a(f"s_cselect_b32 s66, 0, {NS*4096}")
    a("s_movk_i32 s65, 2048")
    a("s_lshl_b32 s65, s65, s4")
    rot_setup(a, 1, 3072)
    def loadW(st):
        if st == NS: a("s_sub_u32 s68, s68, s66")
        a("s_mov_b32 m0, s68")
        a("s_add_u32 s68, s68, s65")
        a(f"buffer_load_dwordx4 v{VW}, s[48:51], s64 offen lds")
        a(f"s_add_u32 m0, s69, {(st % NS)*4096}")
        a("s_mov_b64 exec, s[14:15]")
        a(f"buffer_load_dwordx4 v{VW3}, s[48:51], s64 offen lds")
        a("s_mov_b64 exec, -1")
        a(f"s_add_u32 s64, s64, {32*3072}")
        if st % 2 == 1:
            for i in w_wrap(3072): a(i)
    tr_base(a, RW, 0)
    a(f"v_add_u32 v{RW2}, {KV}, v{RW}")
    for i in range(48): a(f"v_mov_b32 v{ACC+i}, 0")
    a("v_lshlrev_b32 v2, 4, v1")
    W0 = int(E("W0", "0"))
    if E("NONCE_OLD"):
        get_nonce(a, 240)
        for st in range(NS): loadW(st)
    else:
        a("v_mov_b32 v241, 0")
        a("buffer_load_dword v240, v241, s[56:59], 0 offen sc1")
        a("s_waitcnt vmcnt(0)")
        for st in range(NS): loadW(st)
        a("v_readfirstlane_b32 s83, v240")
        a("s_nop 3")
        a("s_cmp_lg_u32 s83, 0")
        a("s_cbranch_scc1 g1A_nonce")
        get_nonce(a, 240)
        a.label("g1A_nonce")
    poll_xn(a, 240)
    stamp(a, 1)
    XA = int(E("XA", "12"))
    q = VMQ(a)
    def loadX(ks):
        if ks and ks % 4 == 0:
            for i in X_ADV: a(i)
        a(f"buffer_load_dwordx4 v[{XN+4*ks}:{XN+4*ks+3}], v2, s[36:39], s72 offen offset:{(ks%4)*1024} sc1")
        q.issue(("x", ks))
    for ks in range(XA): loadX(ks)
    def rd(ks):
        st, kk = ks // 2, ks % 2
        o = (st % NS) * 4096 + kk * 1024
        out = []
        for u in range(2):
            r = WF + (ks % 4) * 8 + u * 4
            out.append(f"ds_read_b64_tr_b16 v[{r}:{r+1}], v{RW2} offset:{o+u*2048}")
            out.append(f"ds_read_b64_tr_b16 v[{r+2}:{r+3}], v{RW2} offset:{o+u*2048+256}")
        return out
    for i in rd(0) + rd(1): a(i)
    for ks in range(32):
        if ks == 10:
            a("s_barrier")
            for st in range(NS, 16):
                loadW(st); q.issue("w"); q.issue("w")
        if ks + XA < 32: loadX(ks + XA)
        if ks == 22:
            q.wait(["w", ("x", ks)])
            a("s_barrier")
        else:
            q.wait([("x", ks)])
        a(f"s_waitcnt lgkmcnt({4 if ks < 31 else 0})")
        RL = rd(ks + 2) if ks + 2 < 32 else []
        x, w = XN + 4 * ks, WF + (ks % 4) * 8
        mfma(a, ACC + 16, w, x, ACC + 16)
        for i in RL[:2]: a(i)
        mfma(a, ACC + 32, x, w + 4, ACC + 32)
        for i in RL[2:]: a(i)
    stamp(a, 2)
    def rdq(ks):
        r = 48 + (ks % 4) * 4
        a(f"ds_read_b64_tr_b16 v[{r}:{r+1}], v{RW} offset:{ks*1024}")
        a(f"ds_read_b64_tr_b16 v[{r+2}:{r+3}], v{RW} offset:{ks*1024+256}")
    for ks in range(3): rdq(ks)
    P = 16
    a("v_lshrrev_b32 v11, 5, v1")
    a("v_lshlrev_b32 v12, 4, v1")
    a("v_bfe_u32 v13, v1, 4, 1")
    a("v_lshlrev_b32 v13, 16, v13")
    a("v_lshl_add_u32 v13, v11, 8, v13")
    a("v_and_b32 v14, 15, v1")
    a("v_lshl_add_u32 v13, v14, 4, v13")
    a("s_lshl_b32 s3, s42, 17")
    a("s_lshl_b32 s4, s43, 10")
    a("s_add_u32 s3, s3, s4")
    a(f"s_add_u32 s6, s3, {WS_KH}")
    a(f"s_add_u32 s7, s3, {WS_KH+65536}")
    a(f"s_add_u32 s8, s3, {WS_VT}")
    for i in range(8): a(f"v_cvt_pk_bf16_f32 v{P+8+i}, v{ACC+16+2*i}, v{ACC+17+2*i}")
    a(f"buffer_store_dwordx4 v[{P+8}:{P+11}], v12, s[36:39], s6 offen sc1")
    a(f"buffer_store_dwordx4 v[{P+12}:{P+15}], v12, s[36:39], s7 offen sc1")
    for i in range(8): a(f"v_cvt_pk_bf16_f32 v{P+16+i}, v{ACC+32+2*i}, v{ACC+33+2*i}")
    a(f"buffer_store_dwordx4 v[{P+16}:{P+19}], v13, s[36:39], s8 offen sc1")
    a(f"buffer_store_dwordx4 v[{P+20}:{P+23}], v13, s[36:39], s8 offen offset:512 sc1")
    a("s_lshl_b32 s4, s42, 8")
    a("s_lshl_b32 s5, s43, 2")
    a("s_add_u32 s4, s4, s5")
    a(f"s_add_u32 s4, s4, {F1}")
    a(f"s_mov_b32 s9, {f2h(QSCALE)}")
    for ks in range(32):
        if ks == 14:
            publish(a, "s4", 240)
            stamp(a, 3)
        if ks + 3 < 32: rdq(ks + 3)
        a(f"s_waitcnt lgkmcnt({2*min(3, 31-ks)})")
        mfma(a, ACC, 48 + (ks % 4) * 4, XN + 4 * ks, ACC)
    QL = KV + 5 * 4096
    a("s_lshl_b32 s3, s40, 11")
    a("v_add_u32 v14, s3, v12")
    a.nop(12)
    for i in range(16): a(f"v_mul_f32 v{ACC+i}, s9, v{ACC+i}")
    for i in range(8): a(f"v_cvt_pk_bf16_f32 v{P+i}, v{ACC+2*i}, v{ACC+2*i+1}")
    a(f"ds_write_b128 v14, v[{P}:{P+3}] offset:{QL}")
    a(f"ds_write_b128 v14, v[{P+4}:{P+7}] offset:{QL+1024}")
    a("s_waitcnt lgkmcnt(0)")
    a("s_barrier")
    return QL

def gemm1B(a):
    NU, R, PITCH, SB, NLD = 7, 4, 3584, 14336, 6
    VW, VW3, RW, RM, RM2 = 6, 7, 8, 9, 10
    XN, WF, ACC = 12, 44, 100
    ln_load(a)
    a("s_and_b32 s3, s40, 1")
    a("s_lshr_b32 s4, s40, 1")
    a("v_lshrrev_b32 v16, 2, v1")
    a("v_and_b32 v17, 3, v1")
    a(f"v_mul_u32_u24 v{VW}, {PITCH}, v16")
    a(f"v_lshl_add_u32 v{VW}, v17, 4, v{VW}")
    a("s_cmp_eq_u32 s4, 0")
    a("s_cselect_b32 s48, s24, s26")
    a("s_cselect_b32 s49, s25, s27")
    a(f"s_mov_b32 s50, {512*3584}")
    a("s_mov_b32 s51, 0x00020000")
    a("s_mul_i32 s64, s42, 224")
    a(f"s_mul_i32 s5, s3, {16*PITCH}")
    a("s_add_u32 s64, s64, s5")
    a("s_lshl_b32 s5, s4, 11")
    a("s_lshl_b32 s6, s3, 10")
    a("s_add_u32 s68, s5, s6")
    a("s_lshl_b32 s5, s4, 10")
    a("s_add_u32 s5, s5, 12288")
    a("s_add_u32 s6, s68, 8192")
    a("s_cmp_eq_u32 s3, 0")
    a("s_cselect_b32 s71, s5, s6")
    a("s_cselect_b64 s[14:15], -1, 1")
    a("s_and_b32 s7, s42, 1")
    a("s_lshl_b32 s8, s7, 5")
    a(f"v_add_u32 v{VW}, s8, v{VW}")
    a("s_cmp_eq_u32 s7, 0")
    a("s_cselect_b32 s8, 192, 0")
    a("v_lshrrev_b32 v18, 1, v1")
    a("s_lshl_b32 s9, s4, 2")
    a("v_xor_b32 v18, s9, v18")
    a(f"v_mul_u32_u24 v18, {PITCH}, v18")
    a("v_and_b32 v19, 1, v1")
    a("v_lshl_add_u32 v18, v19, 4, v18")
    a("v_add_u32 v18, s8, v18")
    a(f"v_add_u32 v19, 128, v{VW}")
    a("s_cmp_eq_u32 s3, 0")
    a("s_cselect_b64 vcc, -1, 0")
    a(f"v_cndmask_b32 v{VW3}, v19, v18, vcc")
    def wlist(slot):
        o = slot * SB
        g = []
        for i in range(3):
            g.append(([f"s_add_u32 m0, s68, {o+i*(4096-64)}"], f"buffer_load_dwordx4 v{VW}, s[48:51], s64 offen offset:{64*i} lds", []))
        g.append(([f"s_add_u32 m0, s71, {o}"], f"s_mov_b64 exec, s[14:15]\nbuffer_load_dwordx4 v{VW3}, s[48:51], s64 offen lds\ns_mov_b64 exec, -1",
                  [f"s_add_u32 s64, s64, {32*PITCH}"] + (w_wrap(PITCH) if slot % 2 == 1 else [])))
        return g
    def xlist(slot):
        g = []
        for kk in range(2):
            r = XN + (2 * slot + kk) * 4
            g.append(([], f"buffer_load_dwordx4 v[{r}:{r+3}], v2, s[36:39], s72 offen offset:{((2*slot+kk)%4)*1024} sc1",
                      X_ADV if (kk == 1 and slot % 2 == 1) else []))
        return g
    def emit(g):
        for pre, ins, post in g:
            for i in pre: a(i)
            if pre: a("s_nop 0")
            a(ins)
            for i in post: a(i)
    rot_setup(a, 0, PITCH)
    ln_addr(a)
    a("s_waitcnt vmcnt(0)")
    ln_compute(a, 3 * SB)
    for st in range(R - 1):
        for i in wlist(st)[3][2]: a(i)
    a("s_branch g1B_pro")
    a.label("ln_done")
    srd(a, 52, 24, 512 * 3584)
    a("v_lshrrev_b32 v18, 1, v1")
    a(f"v_mul_u32_u24 v18, {PITCH}, v18")
    a("v_and_b32 v20, 1, v1")
    a("v_lshl_add_u32 v18, v20, 4, v18")
    a("v_add_u32 v18, s8, v18")
    a("s_sub_u32 s69, s68, 2048")
    a("s_add_u32 s6, s69, 8192")
    a("s_and_b32 s3, s40, 1")
    a("s_cmp_eq_u32 s3, 0")
    a("s_cselect_b32 s70, 12288, s6")
    a("s_cselect_b64 vcc, -1, 0")
    a("v_cndmask_b32 v11, v19, v18, vcc")
    for st in range(R - 1):
        o = st * SB
        for i in range(3):
            a(f"s_add_u32 m0, s69, {o+i*(4096-64)}")
            a("s_nop 0")
            a(f"buffer_load_dwordx4 v{VW}, s[52:55], s64 offen offset:{64*i} lds")
        a(f"s_add_u32 m0, s70, {o}")
        a("s_mov_b64 exec, s[14:15]")
        a("buffer_load_dwordx4 v11, s[52:55], s64 offen lds")
        a("s_mov_b64 exec, -1")
        emit(wlist(st))
    if E("WPF"):
        a("v_min_u32 v18, 55, v1")
        a("v_lshlrev_b32 v18, 4, v18")
        a("s_bfe_u32 s3, s2, 0x20001")
        a("s_mul_i32 s3, s3, 896")
        a("s_bfe_u32 s4, s2, 0x50003")
        a(f"s_mul_i32 s4, s4, {16*PITCH}")
        a("s_add_u32 s3, s3, s4")
        a("s_cmp_eq_u32 s40, 3")
        a("s_cselect_b32 s52, s48, s52")
        a("s_cselect_b32 s53, s49, s53")
        for r_ in range(16):
            a("buffer_load_dwordx4 v[248:251], v18, s[52:55], s3 offen")
            if r_ < 15: a(f"s_add_u32 s3, s3, {PITCH}")
    a.label("g1B_pro")
    stamp(a, 1)
    if E("LNONLY"): a("s_endpgm")
    tr_base(a, RW, 0)
    a("v_lshlrev_b32 v21, 2, v20")
    a("v_xor_b32 v21, v21, v18")
    a(f"v_lshlrev_b32 v{RM}, 5, v21")
    a(f"v_lshl_add_u32 v{RM}, v20, 10, v{RM}")
    a(f"v_lshl_add_u32 v{RM}, v19, 3, v{RM}")
    a(f"v_add_u32 v{RM}, 12288, v{RM}")
    a(f"v_xor_b32 v{RM2}, 128, v{RM}")
    for i in range(NU * 16): a(f"v_mov_b32 v{ACC+i}, 0")
    a(f"s_setprio {E('PB1', '0')}")
    poll_xn(a, 240)
    for st in range(R - 1): emit(xlist(st))
    def rd_w(kk, slot, u):
        b, o = WF + kk * 28 + u * 4, slot * SB
        if u == 6:
            return [f"ds_read_b64_tr_b16 v[{b}:{b+1}], v{RM} offset:{o+kk*512}", f"ds_read_b64_tr_b16 v[{b+2}:{b+3}], v{RM2} offset:{o+kk*512}"]
        return [f"ds_read_b64_tr_b16 v[{b}:{b+1}], v{RW} offset:{o+u*2048+kk*1024}", f"ds_read_b64_tr_b16 v[{b+2}:{b+3}], v{RW} offset:{o+u*2048+kk*1024+256}"]
    def body(slot, ld, vmw, last=False):
        LL = (wlist((slot + 3) % 4) + xlist((slot + 3) % 4)) if ld else []
        li = 0
        for kk in range(2):
            if kk == 1 and not last:
                a(f"s_waitcnt vmcnt({vmw})")
                a("s_barrier")
            x = XN + (2 * slot + kk) * 4
            for u in range(NU):
                nxt = rd_w(1, slot, u) if kk == 0 else ([] if last else rd_w(0, (slot + 1) % 4, u))
                if u % 2 == 0:
                    rest = max(0, 2 * (NU - 2 - u))
                    a(f"s_waitcnt lgkmcnt({rest + (2*u if (kk == 0 or not last) else 0)})")
                l = LL[li] if (ld and kk == 1 and u >= 1) else None
                if l:
                    for i in l[0]: a(i)
                mfma(a, ACC + u * 16, WF + kk * 28 + u * 4, x, ACC + u * 16)
                for i in nxt: a(i)
                if l:
                    a(l[1])
                    for i in l[2]: a(i)
                    li += 1
    stamp(a, 3 if E("BSTAMP") else 7)
    if E("LNST"):
        dump_stamps(a, 6)
        a("s_endpgm")
    a0 = a
    class Filt:
        def __call__(self, s):
            if E("NODMA") and " lds" in s: return
            if E("NOX") and "sc1" in s: return
            if E("NOMFMA") and "v_mfma" in s: return
            if E("NOWRD") and "ds_read_b64_tr" in s: return
            if E("NOBAR") and "s_barrier" in s: return
            a0(s)
        def __getattr__(self, n): return getattr(a0, n)
    a = Filt()
    a("s_waitcnt vmcnt(4)")
    a("s_barrier")
    for u in range(NU):
        for i in rd_w(0, 0, u): a(i)
    body(0, True, 2)
    body(1, True, NLD)
    body(2, True, NLD)
    body(3, True, NLD)
    if E("BITER"):
        stamp(a, 4)
        for it in range(2):
            for slot in range(4): body(slot, True, NLD)
            stamp(a, 5 + it)
    else:
        a("s_mov_b32 s75, 2")
        a.raw(".p2align 6")
        a.label("g1B_loop")
        for slot in range(4): body(slot, True, NLD)
        a("s_sub_u32 s75, s75, 1")
        a("s_cmp_lg_u32 s75, 0")
        a("s_cbranch_scc1 g1B_loop")
    body(0, True, NLD)
    body(1, False, NLD)
    body(2, False, 0)
    body(3, False, 0, last=True)
    a = a0
    stamp(a, 2)
    a("s_barrier")
    return lambda: gemm1B_epilogue(a, ACC)

def gemm1B_epilogue(a, ACC):
    T, P = 212, 44
    a("v_lshlrev_b32 v2, 4, v1")
    a("s_mul_i32 s3, s43, 144")
    a("s_mul_i32 s4, s42, 7")
    a("s_add_u32 s3, s3, s4")
    a("s_add_u32 s3, s3, 32")
    a("s_and_b32 s7, s42, 1")
    a("s_add_u32 s4, s3, s7")
    a("s_cmp_eq_u32 s7, 0")
    a("s_cselect_b32 s5, 6, 0")
    a("s_add_u32 s5, s3, s5")
    a("s_lshl_b32 s4, s4, 10")
    a(f"s_add_u32 s4, s4, {WS_AF}")
    a("s_lshl_b32 s5, s5, 10")
    a(f"s_add_u32 s5, s5, {WS_AF}")
    a(f"s_add_u32 s6, s4, 4096")
    a(f"s_mov_b32 s9, {f2h(-LOG2E)}")
    a("s_mov_b32 s8, s9")
    a("s_mov_b32 s10, 1.0")
    a("s_mov_b32 s11, 1.0")
    pr = lambda r: f"v[{r}:{r+1}]"
    def silu_mul(g, u_, n, dst):
        for i in range(0, n, 2): a(f"v_pk_mul_f32 {pr(T+i)}, {pr(g+i)}, s[8:9]")
        for i in range(n): a(f"v_exp_f32 v{T+i}, v{T+i}")
        for i in range(0, n, 2): a(f"v_pk_mul_f32 {pr(g+i)}, {pr(g+i)}, {pr(u_+i)}")
        for i in range(0, n, 2): a(f"v_pk_add_f32 {pr(T+i)}, {pr(T+i)}, s[10:11]")
        for i in range(n): a(f"v_rcp_f32 v{T+i}, v{T+i}")
        a("s_nop 0")
        for i in range(0, n, 2): a(f"v_pk_mul_f32 {pr(g+i)}, {pr(g+i)}, {pr(T+i)}")
        for i in range(n // 2): a(f"v_cvt_pk_bf16_f32 v{dst+i}, v{g+2*i}, v{g+2*i+1}")
    NHI = int(E("NHI", "0"))
    if NHI: a("s_setprio 2")
    for p in range(3):
        if NHI and p == NHI: a("s_setprio 0")
        silu_mul(ACC + 32 * p, ACC + 32 * p + 16, 16, P + 8 * p)
        so, im = ("s4", 2048 * p) if p < 2 else ("s6", 0)
        a(f"buffer_store_dwordx4 v[{P+8*p}:{P+8*p+3}], v2, s[36:39], {so} offen offset:{im} sc1")
        a(f"buffer_store_dwordx4 v[{P+8*p+4}:{P+8*p+7}], v2, s[36:39], {so} offen offset:{im+1024} sc1")
    if NHI == 3: a("s_setprio 0")
    silu_mul(ACC + 96, ACC + 104, 8, P + 24)
    a(f"buffer_store_dwordx4 v[{P+24}:{P+27}], v2, s[36:39], s5 offen sc1")
    a("s_lshl_b32 s4, s43, 6")
    a("s_lshl_b32 s5, s42, 2")
    a("s_add_u32 s4, s4, s5")
    a(f"s_add_u32 s4, s4, {FH}")
    publish(a, "s4", T)
    stamp(a, 3)

RESCALE_T = 30
BIAS = int(E("BIAS", "88"))
def attention(a, QL):
    name = "at"
    Q = {"A": 4, "B": 8}
    NEG = {"A": 16, "B": 32}
    S = {"A": 48, "B": 64}
    O = {"A": 80, "B": 96}
    P = {"A": 112, "B": 120}
    RING, T0 = 128, 160
    NR = 2
    TP = 2112
    GB = 8 * TP
    Kf = lambda s: RING + 12 * s
    V0 = lambda s: RING + 12 * s + 4
    V1 = lambda s: RING + 12 * s + 8
    AK, AV0, AV1, VD = 2, 3, 12, 13
    mf = lambda d, x, y, c: mfma(a, d, x, y, c)
    a(f"v_mov_b32 v{VD}, v12")
    a("s_lshr_b32 s3, s40, 1")
    a("s_lshl_b32 s60, s42, 1")
    a("s_add_u32 s60, s60, s3")
    a("s_cmp_eq_u32 s3, 0")
    a("s_cselect_b64 vcc, -1, 0")
    for i in range(4): a(f"v_cndmask_b32 v{Kf(1)+i}, v{28+i}, v{24+i}, vcc")
    a("s_and_b32 s4, s40, 1")
    a("s_lshl_b32 s61, s41, 1")
    a("s_add_u32 s61, s61, s4")
    a("s_lshl_b32 s5, s4, 12")
    a("s_lshl_b32 s6, s3, 10")
    a("s_add_u32 s5, s5, s6")
    a(f"v_add_u32 v2, s5, v{VD}")
    a(f"ds_read_b128 v[{Q['A']}:{Q['A']+3}], v2 offset:{QL}")
    a(f"ds_read_b128 v[{Q['B']}:{Q['B']+3}], v2 offset:{QL+2048}")
    a("s_lshl_b32 s5, s60, 16")
    a(f"s_add_u32 s5, s5, {WS_KH}")
    a("s_add_u32 s44, s34, s5")
    a("s_addc_u32 s45, s35, 0")
    a("s_mov_b32 s46, 65536")
    a("s_mov_b32 s47, 0x00020000")
    a(f"s_add_u32 s48, s44, {WS_VT-WS_KH}")
    a("s_addc_u32 s49, s45, 0")
    a("s_mov_b32 s50, 65536")
    a("s_mov_b32 s51, 0x00020000")
    a("s_cmp_eq_u32 s4, 0")
    a("s_cselect_b32 s52, s44, s48")
    a("s_cselect_b32 s53, s45, s49")
    a("s_mov_b32 s54, 65536")
    a("s_mov_b32 s55, 0x00020000")
    a(f"s_mul_i32 s70, s3, {2*GB}")
    a("s_lshl_b32 s71, s4, 10")
    a("s_add_u32 s71, s71, s70")
    a("v_and_b32 v14, 31, v1")
    a("v_lshrrev_b32 v15, 5, v1")
    a(f"v_add_u32 v{AK}, s70, v{VD}")
    a(f"v_lshlrev_b32 v{AV0}, 8, v15")
    a(f"v_lshl_add_u32 v{AV0}, v14, 4, v{AV0}")
    a(f"v_add_u32 v{AV0}, 1024, v{AV0}")
    a(f"v_add_u32 v{AV1}, 512, v{AV0}")
    a(f"v_mov_b32 v{T0}, 2064")
    a(f"v_mov_b32 v{T0+1}, 2048")
    a("v_cmp_eq_u32 vcc, 16, v14")
    a(f"v_mov_b32 v{T0+4}, 0x3f803f80")
    a(f"v_and_b32 v{T0+2}, 1, v1")
    a(f"v_cndmask_b32 v{T0}, v{T0}, v{T0+1}, vcc")
    a("v_cmp_gt_u32 vcc, 16, v14")
    a(f"v_lshrrev_b32 v{T0+3}, 1, v1")
    a(f"v_mul_u32_u24 v{T0+3}, {TP}, v{T0+3}")
    a(f"v_cndmask_b32 v{AV0}, v{T0}, v{AV0}, vcc")
    a(f"v_cndmask_b32 v{AV1}, v{T0}, v{AV1}, vcc")
    a(f"v_add_u32 v{AV0}, s70, v{AV0}")
    a(f"v_add_u32 v{AV1}, s70, v{AV1}")
    a(f"v_cmp_eq_u32 vcc, 0, v{T0+2}")
    a(f"v_lshl_add_u32 v{T0+3}, v{T0+2}, 4, v{T0+3}")
    a("s_lshl_b32 s4, s42, 8")
    a(f"v_cndmask_b32 v{T0+4}, 0, v{T0+4}, vcc")
    for i in range(1, 4): a(f"v_mov_b32 v{T0+4+i}, v{T0+4}")
    for X in "AB":
        for i in range(16): a(f"v_mov_b32 v{O[X]+i}, 0")
        for i in range(8): a(f"v_mov_b32 v{P[X]+i}, 0")
    for i in range(4): a(f"v_mov_b32 v{V1(1)+i}, 0")
    a(f"s_mov_b32 s64, {f2h(2.0**RESCALE_T)}")
    a("s_mov_b32 s65, 0")
    a(f"s_add_u32 s4, s4, {F1}")
    a("s_waitcnt lgkmcnt(0)")
    a("s_barrier")
    a(f"ds_write_b128 v{T0+3}, v[{T0+4}:{T0+7}] offset:2048")
    for X in "AB": mf(S[X], Kf(1), Q[X], None)
    a.nop(14)
    for X in "AB":
        m = T0 + 8
        a(f"v_max3_f32 v{m}, v{S[X]}, v{S[X]+1}, v{S[X]+2}")
        for i in range(3, 15, 2):
            a(f"v_max3_f32 v{m}, v{m}, v{S[X]+i}, v{S[X]+i+1}")
        a(f"v_max_f32 v{m}, v{m}, v{S[X]+15}")
        a(f"v_mov_b32 v{m+1}, v{m}")
        a("s_nop 1")
        a(f"v_permlane32_swap_b32 v{m+1}, v{m}")
        a("s_nop 1")
        a(f"v_max_f32 v{m}, v{m}, v{m+1}")
        for i in range(16):
            a(f"v_sub_f32 v{NEG[X]+i}, {f2h(-float(BIAS))}, v{m}")
    poll(a, "s4", 64, T0)
    stamp(a, 4)
    a("s_setprio 1")
    a("s_and_b32 s66, s41, 7")
    a("s_lshl_b32 s66, s66, 13")
    def dma(t, bufoff):
        a(f"s_add_u32 m0, {bufoff}, {t*TP - (t%4)*1024}")
        return f"buffer_load_dwordx4 v{VD}, s[52:55], {'s66' if t < 4 else 's68'} offen offset:{(t%4)*1024} sc1 lds"
    def next_group():
        a("s_add_u32 s66, s66, 8192")
        a("s_and_b32 s66, s66, 65535")
    a(f"s_add_u32 s72, s71, {GB}")
    a("s_add_u32 s68, s66, 4096")
    for t in range(8):
        i = dma(t, "s71")
        a("s_nop 0")
        a(i)
    next_group()
    a("s_add_u32 s68, s66, 4096")
    i = dma(0, "s72")
    a("s_nop 0")
    a(i)
    a("s_waitcnt vmcnt(1) lgkmcnt(0)")
    a("s_barrier")
    def reads(slot, t):
        a(f"ds_read_b128 v[{Kf(slot)}:{Kf(slot)+3}], v{AK} offset:{t*TP}")
        a(f"ds_read_b128 v[{V0(slot)}:{V0(slot)+3}], v{AV0} offset:{t*TP}")
        a(f"ds_read_b128 v[{V1(slot)}:{V1(slot)+3}], v{AV1} offset:{t*TP}")
    reads(0, 0)
    a("s_waitcnt lgkmcnt(0)")
    mf(S["A"], Kf(0), Q["A"], NEG["A"])
    a("s_mov_b32 s67, 8")
    a(f"s_mov_b32 s73, {GB}")
    a("s_and_b32 s74, s41, 7")
    a("s_add_u32 s74, s74, 2")
    a.nop(8)
    if E("ATST"): stamp(a, 4)
    a.raw(".p2align 6")
    a.label(f"{name}_loop")
    def half(X, tt):
        Y = "B" if X == "A" else "A"
        x, p = S[X], P[X]
        e = lambda i: a(f"v_exp_f32 v{x+i}, v{x+i}")
        c = lambda i: a(f"v_cvt_pk_bf16_f32 v{p+i}, v{x+2*i}, v{x+2*i+1}")
        e(0); e(1)
        ty = (tt - 1) % NR if X == "A" else tt % NR
        mf(O[Y], V1(ty), P[Y] + 4, O[Y])
        if X == "A":
            if tt == 7:
                a("s_waitcnt vmcnt(0)")
                a("s_barrier")
                a(f"v_add_u32 v{AK}, s73, v{AK}")
                a(f"v_add_u32 v{AV0}, s73, v{AV0}")
                a(f"v_add_u32 v{AV1}, s73, v{AV1}")
                a("s_sub_u32 s73, 0, s73")
                a("s_and_b32 s66, s74, 7")
                a("s_lshl_b32 s66, s66, 13")
                a("s_cmp_gt_u32 s67, 2")
                a("s_cselect_b32 s66, s66, s75")
                a("s_add_u32 s68, s66, 4096")
                a("s_add_u32 s74, s74, 1")
                reads((tt + 1) % NR, 0)
            else:
                reads((tt + 1) % NR, tt + 1)
        d = None
        k = {("B", 7): 0, ("A", 0): 1, ("B", 0): 2, ("A", 1): 3, ("B", 1): 4, ("A", 2): 5, ("B", 2): 6, ("A", 3): 7}.get((X, tt))
        e(2); e(3); c(0)
        if k is not None: d = dma(k, "s71" if k == 0 else "s72")
        e(4)
        if d: a(d)
        e(5); c(1)
        if X == "B":
            a("s_waitcnt lgkmcnt(0)")
        tk = tt % NR if X == "A" else (tt + 1) % NR
        mf(S[Y], Kf(tk), Q[Y], NEG[Y])
        e(6); e(7); c(2); e(8); c(3); e(9); e(10)
        mf(O[X], V0(tt % NR), p, O[X])
        c(4); e(11); e(12); c(5); e(13); e(14); e(15); c(6); c(7)
        if (X == "A" and tt == 5) or (X == "B" and tt == 5):
            a(f"v_cmp_nge_f32 vcc, s64, v{O[Y]+8}")
            a(f"s_cbranch_vccnz {name}_rare{Y}")
            a.label(f"{name}_ret{Y}")
    a("s_brev_b32 s75, 1")
    a0 = a
    class Filt:
        def __call__(self, s):
            if E("ATNOBAR") and "s_barrier" in s: return
            if E("ATNODMA") and " lds" in s: return
            if E("ATNORD") and "ds_read" in s: return
            if E("ATNOCHK") and ("v_cmp_nge" in s or "vccnz" in s): return
            a0(s)
        def __getattr__(self, n): return getattr(a0, n)
    a = Filt()
    for tt in range(8):
        half("A", tt)
        half("B", tt)
    a = a0
    a("s_mov_b32 s3, s71")
    a("s_mov_b32 s71, s72")
    a("s_mov_b32 s72, s3")
    a("s_sub_u32 s67, s67, 1")
    a("s_cmp_lg_u32 s67, 0")
    a(f"s_cbranch_scc1 {name}_loop")
    a("s_nop 1")
    mf(O["B"], V1(1), P["B"] + 4, O["B"])
    a("s_cmp_lg_u32 s65, 0")
    a(f"s_cbranch_scc1 {name}_safe")
    a.label(f"{name}_fin")
    stamp(a, 5)
    a.nop(14)
    a("s_mul_i32 s4, s61, 288")
    a("s_add_u32 s4, s4, s60")
    a("s_lshl_b32 s4, s4, 10")
    a(f"s_add_u32 s4, s4, {WS_AF}")
    a(f"s_add_u32 s5, s4, {144*1024}")
    a("v_lshlrev_b32 v12, 4, v1")
    for X in "AB":
        l = O[X] + 8
        a(f"v_mov_b32 v{T0}, v{l}")
        a("s_nop 1")
        a(f"v_permlane32_swap_b32 v{T0}, v{l}")
        a("s_nop 1")
        a(f"v_mul_f32 v{T0+2+(X=='B')}, 0, v{T0}")
        a(f"v_rcp_f32 v{T0}, v{T0}")
        a("s_nop 0")
        for i in range(8):
            a(f"v_mul_f32 v{O[X]+i}, v{O[X]+i}, v{T0}")
        for i in range(4):
            a(f"v_cvt_pk_bf16_f32 v{P[X]+i}, v{O[X]+2*i}, v{O[X]+2*i+1}")
        a(f"buffer_store_dwordx4 v[{P[X]}:{P[X]+3}], v12, s[36:39], {'s4' if X=='A' else 's5'} offen sc1")
    for X in "AB":
        for i in range(8):
            a(f"v_fma_f32 v{T0+2+(X=='B')}, v{O[X]+i}, 0, v{T0+2+(X=='B')}")
    a(f"v_cmp_u_f32 vcc, v{T0+2}, v{T0+3}")
    a("s_cmp_eq_u32 s65, 0")
    a("s_cselect_b64 s[4:5], vcc, 0")
    a("s_cmp_lg_u64 s[4:5], 0")
    a(f"s_cbranch_scc1 {name}_safe")
    a("s_lshl_b32 s4, s61, 7")
    a("s_lshl_b32 s5, s60, 2")
    a("s_add_u32 s4, s4, s5")
    a(f"s_add_u32 s4, s4, {FO}")
    publish(a, "s4", T0)
    dump_stamps(a, 6)
    a("s_endpgm")
    for Y in "AB":
        a.label(f"{name}_rare{Y}")
        a.nop(16)
        l = O[Y] + 8
        a(f"v_mov_b32 v{T0+2}, 0x207")
        a(f"v_cmp_class_f32 vcc, v{l}, v{T0+2}")
        a("s_cmp_lg_u64 vcc, 0")
        a("s_cselect_b32 s65, 1, s65")
        a(f"s_cbranch_scc1 {name}_ret{Y}")
        if E("CNTSAFE"):
            a(f"v_mov_b32 v{T0}, 1")
            a(f"v_mov_b32 v{T0+1}, 0")
            a("s_mov_b64 exec, 1")
            a(f"buffer_atomic_add v{T0}, v{T0+1}, s[56:59], 0 offen offset:16")
            a("s_mov_b64 exec, -1")
            a("s_nop 1")
        a(f"v_max_f32 v{T0}, 0x00800000, v{l}")
        a(f"v_frexp_exp_i32_f32 v{T0}, v{T0}")
        a(f"v_add_u32 v{T0}, {BIAS}, v{T0}")
        a(f"v_max_i32 v{T0}, 0, v{T0}")
        a(f"v_mov_b32 v{T0+1}, v{T0}")
        a("s_nop 1")
        a(f"v_permlane32_swap_b32 v{T0}, v{T0+1}")
        a("s_nop 1")
        a(f"v_cvt_f32_i32 v{T0+1}, v{T0}")
        a(f"v_sub_u32 v{T0}, 0, v{T0}")
        for i in range(9): a(f"v_ldexp_f32 v{O[Y]+i}, v{O[Y]+i}, v{T0}")
        for i in range(16): a(f"v_sub_f32 v{NEG[Y]+i}, v{NEG[Y]+i}, v{T0+1}")
        for i in range(16): a(f"v_sub_f32 v{S[Y]+i}, v{S[Y]+i}, v{T0+1}")
        a("s_nop 1")
        a(f"s_branch {name}_ret{Y}")
    a.label(f"{name}_safe")
    a("s_waitcnt vmcnt(0) lgkmcnt(0)")
    a.nop(16)
    if E("CNTSAFE"):
        a("v_mov_b32 v14, 1")
        a("v_mov_b32 v15, s65")
        a("v_lshlrev_b32 v15, 2, v15")
        a("s_mov_b64 exec, 1")
        a("buffer_atomic_add v14, v15, s[56:59], 0 offen offset:4")
        a("s_mov_b64 exec, -1")
    a("s_mov_b32 s65, 2")
    a("v_and_b32 v14, 31, v1")
    a("v_lshrrev_b32 v15, 5, v1")
    a("v_lshlrev_b32 v3, 8, v15")
    a("v_lshl_add_u32 v3, v14, 4, v3")
    a("v_mov_b32 v15, 0x3f803f80")
    a("v_cmp_eq_u32 vcc, 16, v14")
    a("s_mov_b32 s62, 0x0000ffff")
    a("s_mov_b32 s63, 0x0000ffff")
    a("v_cndmask_b32 v15, 0, v15, vcc")
    for i in range(8): a(f"v_mov_b32 v{V0(0)+i}, v15")
    def loads(slot, soff, imm):
        a(f"buffer_load_dwordx4 v[{Kf(slot)}:{Kf(slot)+3}], v{VD}, s[44:47], {soff} offen offset:{imm} sc1")
        a("s_mov_b64 exec, s[62:63]")
        a(f"buffer_load_dwordx4 v[{V0(slot)}:{V0(slot)+3}], v3, s[48:51], {soff} offen offset:{imm} sc1")
        a(f"buffer_load_dwordx4 v[{V1(slot)}:{V1(slot)+3}], v3, s[48:51], {soff} offen offset:{imm+512} sc1")
        a("s_mov_b64 exec, -1")
    M = {"A": NEG["A"], "B": NEG["B"]}
    for X in "AB":
        for i in range(16): a(f"v_mov_b32 v{O[X]+i}, 0")
        a(f"v_mov_b32 v{M[X]}, 0xff800000")
    a("s_mov_b32 s66, 0")
    a("s_mov_b32 s67, 64")
    a.label(f"{name}_sloop")
    loads(0, "s66", 0)
    a("s_waitcnt vmcnt(0)")
    for X in "AB":
        mf(S[X], Kf(0), Q[X], None)
    a.nop(16)
    for X in "AB":
        x, p, m = S[X], P[X], M[X]
        a(f"v_max3_f32 v{T0}, v{x}, v{x+1}, v{x+2}")
        for i in range(3, 15, 2):
            a(f"v_max3_f32 v{T0}, v{T0}, v{x+i}, v{x+i+1}")
        a(f"v_max_f32 v{T0}, v{T0}, v{x+15}")
        a(f"v_mov_b32 v{T0+1}, v{T0}")
        a("s_nop 1")
        a(f"v_permlane32_swap_b32 v{T0+1}, v{T0}")
        a("s_nop 1")
        a(f"v_max3_f32 v{T0}, v{T0}, v{T0+1}, v{m}")
        a(f"v_sub_f32 v{T0+1}, v{m}, v{T0}")
        a(f"v_exp_f32 v{T0+1}, v{T0+1}")
        a(f"v_mov_b32 v{m}, v{T0}")
        for i in range(9): a(f"v_mul_f32 v{O[X]+i}, v{O[X]+i}, v{T0+1}")
        for i in range(16): a(f"v_sub_f32 v{x+i}, v{x+i}, v{T0}")
        for i in range(16): a(f"v_exp_f32 v{x+i}, v{x+i}")
        a("s_nop 0")
        for i in range(8): a(f"v_cvt_pk_bf16_f32 v{p+i}, v{x+2*i}, v{x+2*i+1}")
        a("s_nop 1")
        mf(O[X], V0(0), p, O[X])
        mf(O[X], V1(0), p + 4, O[X])
    a.nop(16)
    a("s_add_u32 s66, s66, 1024")
    a("s_sub_u32 s67, s67, 1")
    a("s_cmp_lg_u32 s67, 0")
    a(f"s_cbranch_scc1 {name}_sloop")
    a(f"s_branch {name}_fin")

def gemm2(a0, middle):
    class Filt:
        def __call__(self, s):
            if E("G2NOMFMA") and "v_mfma" in s: return
            if E("G2NOLD") and ("buffer_load_dwordx4" in s): return
            if E("G2NORD") and ("ds_read_b64_tr" in s): return
            a0(s)
        def __getattr__(self, n): return getattr(a0, n)
    a = Filt()
    D, NH, NK = 8, 28, 36
    ACC, AR, WF = 64, 128, 32
    a("s_and_b32 s3, s2, 7")
    a("s_bfe_u32 s4, s2, 0x50003")
    a("s_lshl_b32 s5, s3, 2")
    a("s_and_b32 s6, s4, 3")
    a("s_add_u32 s12, s5, s6")
    a("s_lshr_b32 s13, s4, 2")
    srd(a, 44, 20, 512 * 1024)
    srd(a, 48, 28, 1792 * 1024)
    a(f"s_mul_i32 s53, s40, {NH*16384}")
    a("s_lshl_b32 s52, s40, 17")
    a("s_mul_i32 s54, s12, 288")
    a(f"s_mul_i32 s5, s40, {NH}")
    a("s_add_u32 s5, s5, s54")
    a("s_add_u32 s5, s5, 32")
    a("s_lshl_b32 s5, s5, 10")
    a(f"s_add_u32 s60, s5, {WS_AF}")
    a(f"s_add_u32 s61, s60, {144*1024}")
    a("s_lshl_b32 s5, s40, 3")
    a("s_add_u32 s5, s5, s54")
    a("s_lshl_b32 s5, s5, 10")
    a(f"s_add_u32 s62, s5, {WS_AF}")
    a(f"s_add_u32 s63, s62, {144*1024}")
    a(f"s_mul_i32 s56, s40, {D*2048}")
    a("s_and_b32 s5, s12, 3")
    a("s_lshl_b32 s5, s5, 1")
    a("s_add_u32 s5, s5, s13")
    a("s_cmp_ge_u32 s5, 7")
    a("s_cselect_b32 s6, 7, 0")
    a("s_sub_u32 s5, s5, s6")
    if E("NOHROT"): a("s_mov_b32 s5, 0")
    a("s_lshl_b32 s6, s5, 16")
    a("s_add_u32 s53, s53, s6")
    a("s_lshl_b32 s6, s5, 12")
    a("s_add_u32 s60, s60, s6")
    a("s_add_u32 s61, s61, s6")
    a("s_sub_u32 s64, 7, s5")
    a("s_mov_b32 s65, s64")
    a("v_lshlrev_b32 v2, 4, v1")
    a("v_lshrrev_b32 v3, 5, v1")
    a("v_lshlrev_b32 v4, 2, v3")
    a("v_bfe_u32 v5, v1, 2, 2")
    a("v_add_u32 v4, v4, v5")
    a("v_lshlrev_b32 v4, 10, v4")
    a("v_bfe_u32 v6, v1, 4, 1")
    a("v_lshl_add_u32 v4, v6, 6, v4")
    a("v_and_b32 v7, 3, v1")
    a("v_lshl_add_u32 v4, v7, 4, v4")
    a("s_lshl_b32 s57, s13, 7")
    a("v_add_u32 v4, s57, v4")
    a("v_add_u32 v9, 8192, v4")
    a("v_lshlrev_b32 v8, 9, v3")
    a("v_lshl_add_u32 v8, v5, 6, v8")
    a("v_lshl_add_u32 v8, v6, 5, v8")
    a("v_lshl_add_u32 v8, v7, 3, v8")
    a("v_add_u32 v8, s56, v8")
    q = VMQ(a)
    def loadW(i):
        s = i % D
        sr_, so = ("s[48:51]", "s53") if i < NH else ("s[44:47]", "s52")
        a(f"s_add_u32 m0, s56, {s*2048}")
        a("s_nop 0")
        a(f"buffer_load_dwordx4 v4, {sr_}, {so} offen lds"); q.issue(("W", i))
        a(f"s_add_u32 m0, s56, {s*2048+1024}")
        a("s_nop 0")
        a(f"buffer_load_dwordx4 v9, {sr_}, {so} offen lds"); q.issue(("W", i))
        a(f"s_add_u32 {so}, {so}, 16384")
        if i < NH and i % 4 == 3:
            a("s_sub_u32 s64, s64, 1")
            a("s_cmp_eq_u32 s64, 0")
            a(f"s_cselect_b32 s6, {NH*16384}, 0")
            a("s_sub_u32 s53, s53, s6")
    def loadA(i):
        r = AR + (i % D) * 8
        j = i if i < NH else i - NH
        s0, s1 = ("s60", "s61") if i < NH else ("s62", "s63")
        a(f"buffer_load_dwordx4 v[{r}:{r+3}], v2, s[36:39], {s0} offen offset:{(j%4)*1024} sc1"); q.issue(("A", i))
        a(f"buffer_load_dwordx4 v[{r+4}:{r+7}], v2, s[36:39], {s1} offen offset:{(j%4)*1024} sc1"); q.issue(("A", i))
        if j % 4 == 3:
            a(f"s_add_u32 {s0}, {s0}, 4096")
            a(f"s_add_u32 {s1}, {s1}, 4096")
            if i < NH:
                a("s_sub_u32 s65, s65, 1")
                a("s_cmp_eq_u32 s65, 0")
                a(f"s_cselect_b32 s6, {NH*1024}, 0")
                a("s_sub_u32 s60, s60, s6")
                a("s_sub_u32 s61, s61, s6")
    for i in range(D): loadW(i)
    middle()
    a("s_lshl_b32 s66, s12, 7")
    a(f"s_add_u32 s4, s66, {FH}")
    a(f"s_setprio {E('PB2', '0')}")
    poll(a, "s4", 32, 12); q.drained()
    stamp(a, 4)
    for i in range(D): loadA(i)
    def rd(i):
        s = i % D
        for u in range(2):
            b = WF + (i % 2) * 8 + u * 4
            a(f"ds_read_b64_tr_b16 v[{b}:{b+1}], v8 offset:{s*2048+u*256}")
            a(f"ds_read_b64_tr_b16 v[{b+2}:{b+3}], v8 offset:{s*2048+1024+u*256}")
    rd(0)
    for i in range(NK):
        if i == NH:
            a(f"s_add_u32 s4, s66, {FO}")
            stamp(a, 5)
            poll(a, "s4", 32, 12); q.drained()
            stamp(a, 6)
            for j in range(NH, NK): loadA(j)
        tags = [("A", i)] + ([("W", i + 1)] if i + 1 < NK else [])
        tags = [t for t in tags if t in q.q]
        if tags: q.wait(tags)
        if i + 1 < NK:
            rd(i + 1)
            a("s_waitcnt lgkmcnt(4)")
        else:
            a("s_waitcnt lgkmcnt(0)")
        r = AR + (i % D) * 8
        for t in range(2):
            for u in range(2):
                w = WF + (i % 2) * 8 + u * 4
                d = ACC + (t * 2 + u) * 16
                mfma(a, d, w, r + 4 * t, d if i > 0 else None)
        if i + D < NK:
            loadW(i + D)
            if i + D < NH: loadA(i + D)
    PITCH = 272
    a("s_setprio 2")
    a("s_barrier")
    a("v_and_b32 v9, 31, v1")
    a(f"v_mul_u32_u24 v9, {PITCH}, v9")
    a("v_lshl_add_u32 v9, v3, 4, v9")
    a(f"s_mul_i32 s56, s40, {64*PITCH}")
    a("v_add_u32 v9, s56, v9")
    a("v_lshrrev_b32 v10, 3, v0")
    a("v_and_b32 v11, 7, v0")
    a("s_lshl_b32 s57, s12, 6")
    a("v_add_u32 v12, s57, v10")
    a("v_lshlrev_b32 v12, 10, v12")
    a("v_lshl_add_u32 v12, v11, 4, v12")
    a("s_lshl_b32 s57, s13, 7")
    a("v_add_u32 v12, s57, v12")
    srd(a, 44, 16, 2048 * 1024)
    srd(a, 48, 30, 2048 * 1024)
    a("s_mov_b32 s58, 32768")
    a("buffer_load_dwordx4 v[16:19], v12, s[44:47], 0 offen")
    a("buffer_load_dwordx4 v[20:23], v12, s[44:47], s58 offen")
    for t in range(2):
        for u in range(2):
            d = ACC + (t * 2 + u) * 16
            for j in range(4):
                a(f"ds_write_b128 v9, v[{d+4*j}:{d+4*j+3}] offset:{t*32*PITCH + u*128 + j*32}")
    a(f"v_mul_u32_u24 v13, {PITCH}, v10")
    a("v_lshl_add_u32 v13, v11, 5, v13")
    a("s_waitcnt lgkmcnt(0)")
    a("s_barrier")
    for it in range(2):
        for w in range(4):
            b = AR + (it * 4 + w) * 8
            off = w * 64 * PITCH + it * 32 * PITCH
            a(f"ds_read_b128 v[{b}:{b+3}], v13 offset:{off}")
            a(f"ds_read_b128 v[{b+4}:{b+7}], v13 offset:{off+16}")
    a("s_waitcnt vmcnt(0)")
    for it in range(2):
        xs = 16 + 4 * it
        for i in range(4):
            a(f"v_lshlrev_b32 v{24+it*8+2*i}, 16, v{xs+i}")
            a(f"v_and_b32 v{25+it*8+2*i}, 0xffff0000, v{xs+i}")
    for it in range(2):
        a(f"s_waitcnt lgkmcnt({8*(1-it)})")
        for w in range(4):
            b = AR + (it * 4 + w) * 8
            for i in range(8):
                a(f"v_add_f32 v{24+it*8+i}, v{24+it*8+i}, v{b+i}")
        for i in range(4):
            a(f"v_cvt_pk_bf16_f32 v{40+it*4+i}, v{24+it*8+2*i}, v{25+it*8+2*i}")
        a(f"buffer_store_dwordx4 v[{40+it*4}:{43+it*4}], v12, s[48:51], {'0' if it==0 else 's58'} offen{E('OUTF', '')}")
    dump_stamps(a, 7)
    a("s_endpgm")

def gen(a):
    a.raw(f".globl {NAME}")
    a.raw(".p2align 8")
    a.raw(f".type {NAME},@function")
    a.label(NAME)
    a("s_cmp_ge_u32 s2, 512")
    a(f"s_cbranch_scc1 {NAME}_done")
    a("s_load_dwordx16 s[16:31], s[0:1], 0")
    a("s_load_dwordx4 s[32:35], s[0:1], 64")
    a("s_memrealtime s[10:11]")
    a("v_and_b32 v1, 63, v0")
    a("v_lshrrev_b32 v2, 6, v0")
    a("s_and_b32 s3, s2, 7")
    a("v_readfirstlane_b32 s40, v2")
    a("s_bfe_u32 s4, s2, 0x50003")
    a("s_and_b32 s5, s3, 1")
    a("s_lshl_b32 s5, s5, 3")
    a("s_and_b32 s6, s4, 7")
    a("s_add_u32 s41, s5, s6")
    a("s_lshr_b32 s5, s3, 1")
    a("s_lshl_b32 s5, s5, 2")
    a("s_lshr_b32 s6, s4, 3")
    a("s_add_u32 s42, s5, s6")
    if E("CODEPF"):
        a("s_getpc_b64 s[52:53]")
        a.label("pf_pc")
        a(f"s_sub_u32 s52, s52, pf_pc-{NAME}")
        a("s_subb_u32 s53, s53, 0")
        a(f"s_mov_b32 s54, {NAME}_done-{NAME}")
        a("s_mov_b32 s55, 0x00020000")
        a("s_lshr_b32 s7, s2, 3")
        a("s_lshl_b32 s7, s7, 12")
        a("v_lshlrev_b32 v3, 4, v0")
        a("buffer_load_dwordx4 v[248:251], v3, s[52:55], s7 offen")
    a("s_waitcnt lgkmcnt(0)")
    stamp(a, 0)
    srd(a, 36, 34, WS_NREC)
    srd(a, 56, 32, 256)
    a("s_cmp_ge_u32 s2, 256")
    a(f"s_cbranch_scc1 {NAME}_B")
    a("s_setprio 2")
    a("s_or_b32 s3, s2, s40")
    a("s_cmp_lg_u32 s3, 0")
    a(f"s_cbranch_scc1 {NAME}_A")
    a("s_or_b32 s10, s10, 1")
    a("v_mov_b32 v2, s10")
    a("v_mov_b32 v3, 0")
    a("s_mov_b64 exec, 1")
    a("buffer_store_dword v2, v3, s[56:59], 0 offen sc1")
    a("s_mov_b64 exec, -1")
    a("s_waitcnt vmcnt(0)")
    a.label(f"{NAME}_A")
    if E("ONLY_B"): a("s_endpgm")
    QL = gemm1A(a)
    if E("ONLY_G1"):
        dump_stamps(a, 7 if E("ITER") else 4)
        a("s_endpgm")
    attention(a, QL)
    a.label(f"{NAME}_B")
    if E("ONLY_A"): a("s_endpgm")
    a("s_setprio 3")
    epi = gemm1B(a)
    gemm2(a, epi)
    a.label(f"{NAME}_done")
    a("s_endpgm")

if __name__ == "__main__":
    out = sys.argv[1] if len(sys.argv) > 1 else "v3.s"
    a = Asm()
    gen(a)
    for p in check_hazards(a.lines, NAME): print("HAZARD", p, file=sys.stderr)
    txt = HEADER + ("; @launch grid=(512,1,1) block=(256,1,1) lds=81920\n" if E("FINAL") else f"; @launch kernel={NAME} grid=(512,1,1) block=(256,1,1) lds=81920\n") + '.amdgcn_target "amdgcn-amd-amdhsa--gfx950"\n.text\n' + a.text()
    txt += f""".section .rodata,"a"
.p2align 6
.amdhsa_kernel {NAME}
  .amdhsa_next_free_vgpr 256
  .amdhsa_next_free_sgpr 102
  .amdhsa_accum_offset 256
  .amdhsa_group_segment_fixed_size 0
  .amdhsa_kernarg_size 80
  .amdhsa_user_sgpr_count 2
  .amdhsa_user_sgpr_kernarg_segment_ptr 1
  .amdhsa_system_sgpr_workgroup_id_x 1
.end_amdhsa_kernel
"""
    open(out, "w").write(txt)
```

```python
import sys, math, struct, os
from asmlib import *

def f2h(x):
    return "0x%08x" % struct.unpack("<I", struct.pack("<f", x))[0]
E = os.environ.get
WS_KH = 4 << 20
WS_VT = 6 << 20
WS_AF = 8 << 20
WS_FL = 20 << 20
F1, FH, FO, FX = WS_FL, WS_FL + 4096, WS_FL + 8192, WS_FL + 12288
WS_ST = 21 << 20
WS_NREC = 32 << 20
LOG2E = math.log2(math.e)
QSCALE = 0.25 * LOG2E
TIMING = bool(E("TIMING"))
SPIN_MAX = 200000
NAME = "parallel_sum__mha_block__swiglu_ffn__prompt_kernel" if E("FINAL") else "fused_kernel"

HEADER = """; Kernarg layout for this problem (80 bytes, ptrs only, base s[0:1]):
;
;  Hand-offs between workgroups: sc1 (write-through) stores, s_waitcnt vmcnt(0), flag word = per-launch nonce (d_debug[0]);
;  consumers poll the flags with sc1 loads (bounded spins) and read the data with sc1 loads.  Placement only affects speed.
"""

def srd(a, d, base, nrec):
    a(f"s_mov_b32 s{d}, s{base}")
    a(f"s_mov_b32 s{d+1}, s{base+1}")
    a(f"s_mov_b32 s{d+2}, {nrec}")
    a(f"s_mov_b32 s{d+3}, 0x00020000")

def stamp(a, idx):
    if TIMING:
        a(f"{'s_memtime' if E('CYC') else 's_memrealtime'} s[{84+2*idx}:{85+2*idx}]")
        a("s_waitcnt lgkmcnt(0)")
def dump_stamps(a, last):
    if E("DBGT"):
        a("s_waitcnt vmcnt(0)")
        stamp(a, last)
        a("s_mov_b32 s76, s32")
        a("s_mov_b32 s77, s33")
        a("s_mov_b32 s78, 256")
        a("s_mov_b32 s79, 0x00020000")
        a("s_mov_b64 exec, 1")
        a("v_mov_b32 v250, 0")
        base = 1 if last == 6 else 8
        for i in range(1, last + 1):
            a(f"s_sub_u32 s80, s{84+2*i}, s83")
            a("v_mov_b32 v252, s80")
            a(f"buffer_atomic_umax v252, v250, s[76:79], 0 offen offset:{4*(base+i-1)}")
            a("s_nop 1")
        return
    if TIMING:
        a("s_waitcnt vmcnt(0)")
        stamp(a, last)
        a("s_add_u32 s76, s34, 0x8000000")
        a("s_addc_u32 s77, s35, 0")
        a("s_mov_b32 s78, 0x100000")
        a("s_mov_b32 s79, 0x00020000")
        a("s_lshl_b32 s80, s2, 7")
        a("s_lshl_b32 s81, s40, 5")
        a("s_add_u32 s80, s80, s81")
        a("v_mov_b32 v250, s80")
        for i in range(8):
            a(f"v_mov_b32 v252, s{84+2*i}")
            a(f"buffer_store_dword v252, v250, s[76:79], 0 offen offset:{4*i}")
            a("s_nop 1")

def round_bf16(a, v, t):
    a(f"v_cvt_pk_bf16_f32 v{t}, v{v}, v{v}")
    a(f"v_lshlrev_b32 v{v}, 16, v{t}")

def mfma(a, d, x, y, c):
    a(f"v_mfma_f32_32x32x16_bf16 v[{d}:{d+15}], v[{x}:{x+3}], v[{y}:{y+3}], " + (f"v[{c}:{c+15}]" if c is not None else "0"))

class VMQ:
    def __init__(self, a): self.a, self.q = a, []
    def issue(self, tag): self.q.append(tag)
    def wait(self, tags):
        idx = max(i for i, t in enumerate(self.q) if t in tags)
        self.a(f"s_waitcnt vmcnt({len(self.q)-1-idx})")
    def drained(self): self.q = []

UID = [0]
def uid():
    UID[0] += 1
    return UID[0]

def get_nonce(a, vt):
    n = uid()
    a(f"v_mov_b32 v{vt+1}, 0")
    a(f"s_mov_b32 s3, {SPIN_MAX}")
    a.label(f"nonce{n}")
    a(f"buffer_load_dword v{vt}, v{vt+1}, s[56:59], 0 offen sc1")
    a("s_waitcnt vmcnt(0)")
    a(f"v_readfirstlane_b32 s83, v{vt}")
    a("s_sub_u32 s3, s3, 1")
    a("s_cmp_eq_u32 s3, 0")
    a(f"s_cbranch_scc1 nonce{n}_ok")
    a("s_cmp_lg_u32 s83, 0")
    a(f"s_cbranch_scc1 nonce{n}_ok")
    a("s_sleep 8")
    a(f"s_branch nonce{n}")
    a.label(f"nonce{n}_ok")

def publish(a, soff, vt):
    a(f"v_mov_b32 v{vt}, s83")
    a(f"v_mov_b32 v{vt+1}, 0")
    a("s_waitcnt vmcnt(0)")
    a("s_mov_b64 exec, 1")
    a(f"buffer_store_dword v{vt}, v{vt+1}, s[36:39], {soff} offen sc1")
    a("s_mov_b64 exec, -1")

def poll(a, soff, nflags, vt):
    n = uid()
    a("s_cmp_lg_u32 s40, 0")
    a(f"s_cbranch_scc1 poll{n}_ok")
    a(f"v_and_b32 v{vt+1}, {nflags-1}, v1")
    a(f"v_lshlrev_b32 v{vt+1}, 2, v{vt+1}")
    a(f"s_mov_b32 s3, {SPIN_MAX}")
    a.label(f"poll{n}")
    a(f"buffer_load_dword v{vt}, v{vt+1}, s[36:39], {soff} offen sc1")
    a("s_waitcnt vmcnt(0)")
    a(f"v_cmp_ne_u32 vcc, s83, v{vt}")
    a(f"s_cbranch_vccz poll{n}_ok")
    a(f"s_sleep {E('SLEEP', '4')}")
    a("s_sub_u32 s3, s3, 1")
    a("s_cmp_lg_u32 s3, 0")
    a(f"s_cbranch_scc1 poll{n}")
    a.label(f"poll{n}_ok")
    a("s_waitcnt vmcnt(0)")
    a("s_barrier")

def ln_load(a):
    srd(a, 44, 16, 2048 * 1024)
    a("s_lshl_b32 s3, s41, 7")
    a("s_lshl_b32 s4, s42, 3")
    a("s_add_u32 s3, s3, s4")
    a("s_lshl_b32 s4, s40, 1")
    a("s_add_u32 s3, s3, s4")
    a("s_lshl_b32 s3, s3, 10")
    a("v_lshlrev_b32 v2, 4, v1")
    a("buffer_load_dwordx4 v[208:211], v2, s[44:47], s3 offen")
    a("buffer_load_dwordx4 v[212:215], v2, s[44:47], s3 offen offset:1024")
    a("v_mov_b32 v247, 0")
    a("buffer_load_dword v246, v247, s[56:59], 0 offen sc1")

def ln_addr(a):
    a("v_lshlrev_b32 v240, 7, v1")
    a("s_lshl_b32 s3, s40, 5")
    a("v_add_u32 v240, s3, v240")
    a("v_lshlrev_b32 v241, 4, v1")
    a("s_lshl_b32 s3, s40, 12")
    a("v_add_u32 v241, s3, v241")
    a("v_lshrrev_b32 v242, 3, v1")
    a("v_lshrrev_b32 v243, 1, v242")
    a("v_lshlrev_b32 v243, 10, v243")
    a("v_and_b32 v242, 1, v242")
    a("v_lshl_add_u32 v243, v242, 9, v243")
    a("v_and_b32 v242, 7, v1")
    a("v_lshl_add_u32 v243, v242, 4, v243")
    a("s_lshl_b32 s3, s41, 2")
    a("s_lshr_b32 s4, s42, 2")
    a("s_add_u32 s5, s3, s4")
    a("s_lshl_b32 s60, s5, 15")
    a("s_and_b32 s4, s42, 3")
    a("s_lshl_b32 s6, s4, 7")
    a("s_add_u32 s60, s60, s6")
    a("s_lshl_b32 s6, s40, 14")
    a("s_add_u32 s60, s60, s6")
    a("s_lshl_b32 s5, s5, 6")
    a("s_lshl_b32 s4, s4, 4")
    a("s_add_u32 s5, s5, s4")
    a("s_lshl_b32 s4, s40, 3")
    a("s_add_u32 s5, s5, s4")
    a(f"s_add_u32 s66, s5, {FX}")

def ln_compute(a, LS):
    X = (216, 224)
    S = 232
    a("v_readfirstlane_b32 s83, v246")
    if E("LNST"): stamp(a, 2)
    for r in range(2):
        for i in range(4):
            a(f"v_lshlrev_b32 v{X[r]+2*i}, 16, v{208+4*r+i}")
            a(f"v_and_b32 v{X[r]+2*i+1}, 0xffff0000, v{208+4*r+i}")
    for r in range(2):
        a(f"v_add_f32 v{S+r}, v{X[r]}, v{X[r]+1}")
        a(f"v_mul_f32 v{S+2+r}, v{X[r]}, v{X[r]}")
    for i in range(1, 8):
        for r in range(2):
            if i >= 2: a(f"v_add_f32 v{S+r}, v{S+r}, v{X[r]+i}")
            a(f"v_fmac_f32 v{S+2+r}, v{X[r]+i}, v{X[r]+i}")
    for off in (0x041F, 0x081F, 0x101F, 0x201F, 0x401F):
        for i in range(4): a(f"ds_swizzle_b32 v{S+4+i}, v{S+i} offset:{off}")
        a("s_waitcnt lgkmcnt(0)")
        for i in range(4): a(f"v_add_f32 v{S+i}, v{S+i}, v{S+4+i}")
    for i in range(4): a(f"v_mov_b32 v{S+4+i}, v{S+i}")
    a("s_nop 1")
    for i in range(4): a(f"v_permlane32_swap_b32 v{S+4+i}, v{S+i}")
    a("s_nop 1")
    for i in range(4): a(f"v_add_f32 v{S+i}, v{S+i}, v{S+4+i}")
    for i in range(4): a(f"v_mul_f32 v{S+i}, {f2h(1.0/512)}, v{S+i}")
    for r in range(2): a(f"v_fma_f32 v{S+2+r}, -v{S+r}, v{S+r}, v{S+2+r}")
    for r in range(2): a(f"v_max_f32 v{S+2+r}, 0, v{S+2+r}")
    def rnd(regs):
        for k, v in enumerate(regs): a(f"v_cvt_pk_bf16_f32 v{S+4+k}, v{v}, v{v}")
        for k, v in enumerate(regs): a(f"v_lshlrev_b32 v{v}, 16, v{S+4+k}")
    rnd((S, S + 1, S + 2, S + 3))
    for r in range(2): a(f"v_add_f32 v{S+2+r}, {f2h(1e-5)}, v{S+2+r}")
    rnd((S + 2, S + 3))
    for r in range(2): a(f"v_sqrt_f32 v{S+2+r}, v{S+2+r}")
    a("s_nop 0")
    rnd((S + 2, S + 3))
    for r in range(2): a(f"v_rcp_f32 v{S+2+r}, v{S+2+r}")
    for r in range(2):
        for i in range(8): a(f"v_sub_f32 v{X[r]+i}, v{X[r]+i}, v{S+r}")
    for r in range(2):
        for i in range(4): a(f"v_cvt_pk_bf16_f32 v{208+4*r+i}, v{X[r]+2*i}, v{X[r]+2*i+1}")
    for r in range(2):
        for i in range(4):
            a(f"v_lshlrev_b32 v{X[r]+2*i}, 16, v{208+4*r+i}")
            a(f"v_and_b32 v{X[r]+2*i+1}, 0xffff0000, v{208+4*r+i}")
    for r in range(2):
        for i in range(8): a(f"v_mul_f32 v{X[r]+i}, v{X[r]+i}, v{S+2+r}")
    for r in range(2):
        for i in range(4): a(f"v_cvt_pk_bf16_f32 v{208+4*r+i}, v{X[r]+2*i}, v{X[r]+2*i+1}")
    a(f"ds_write_b128 v240, v[208:211] offset:{LS}")
    a(f"ds_write_b128 v240, v[212:215] offset:{LS+16}")
    a("s_cmp_lg_u32 s83, 0")
    a("s_cbranch_scc1 ln_have_nonce")
    get_nonce(a, 244)
    a.label("ln_have_nonce")
    a("s_waitcnt lgkmcnt(0)")
    a("s_barrier")
    a("s_cmp_ge_u32 s40, 2")
    a("s_cbranch_scc1 ln_done")
    for q in range(4): a(f"ds_read_b128 v[{208+4*q}:{211+4*q}], v241 offset:{LS+1024*q}")
    a("v_mov_b32 v244, s83")
    a("v_mov_b32 v245, s83")
    for q in range(4):
        a(f"s_waitcnt lgkmcnt({3-q})")
        a(f"buffer_store_dwordx4 v[{208+4*q}:{211+4*q}], v243, s[36:39], s60 offen sc1")
        if q < 3: a("s_add_u32 s60, s60, 4096")
    a("s_waitcnt vmcnt(0)")
    a("s_mov_b64 exec, 1")
    a("buffer_store_dwordx2 v[244:245], v247, s[36:39], s66 offen sc1")
    a("s_mov_b64 exec, -1")

def poll_xn(a, vt):
    a("s_lshl_b32 s43, s41, 2")
    a("s_add_u32 s43, s43, s40")
    a("s_lshl_b32 s4, s41, 8")
    a(f"s_add_u32 s4, s4, {FX}")
    poll(a, "s4", 64, vt)
    a("s_lshl_b32 s70, s43, 15")
    a("s_lshl_b32 s73, s74, 12")
    a("s_add_u32 s72, s70, s73")

def rot_setup(a, add, pitch):
    a("s_and_b32 s10, s41, 7")
    a("s_and_b32 s11, s42, 3")
    a("s_lshl_b32 s11, s11, 1")
    a("s_add_u32 s10, s10, s11")
    if add: a(f"s_add_u32 s10, s10, {add}")
    a("s_and_b32 s74, s10, 7")
    if E("NOROT"): a("s_mov_b32 s74, 0")
    a(f"s_mul_i32 s11, s74, {64*pitch}")
    a("s_add_u32 s64, s64, s11")
    a("s_sub_u32 s67, 8, s74")
def w_wrap(pitch):
    return ["s_sub_u32 s67, s67, 1", "s_cmp_eq_u32 s67, 0", f"s_cselect_b32 s10, {512*pitch}, 0", "s_sub_u32 s64, s64, s10"]
X_ADV = ["s_add_u32 s73, s73, 4096", "s_and_b32 s73, s73, 32767", "s_add_u32 s72, s70, s73"]

def tr_base(a, RW, base):
    a("v_lshrrev_b32 v17, 5, v1")
    a("v_bfe_u32 v18, v1, 2, 2")
    a("v_lshl_add_u32 v18, v17, 3, v18")
    a("v_and_b32 v19, 3, v1")
    a("v_bfe_u32 v20, v1, 4, 1")
    a(f"v_lshlrev_b32 v{RW}, 6, v18")
    a(f"v_lshl_add_u32 v{RW}, v20, 5, v{RW}")
    a(f"v_lshl_add_u32 v{RW}, v19, 3, v{RW}")
    if base: a(f"v_add_u32 v{RW}, {base}, v{RW}")

def gemm1A(a):
    KV, NS = 32768, 12
    VW, VW3, RW, RW2 = 6, 7, 8, 9
    WF, ACC, XN = 16, 64, 112
    srd(a, 48, 18, 512 * 3072)
    a("s_and_b32 s3, s40, 1")
    a("s_lshr_b32 s4, s40, 1")
    a("v_lshrrev_b32 v16, 2, v1")
    a("v_and_b32 v17, 3, v1")
    a(f"v_mul_u32_u24 v{VW}, 3072, v16")
    a(f"v_lshl_add_u32 v{VW}, v17, 4, v{VW}")
    a("s_lshl_b32 s64, s42, 6")
    a(f"s_mul_i32 s5, s3, {16*3072}")
    a("s_add_u32 s64, s64, s5")
    a(f"v_add_u32 v{VW3}, 2048, v{VW}")
    a("s_lshl_b32 s5, s4, 10")
    a(f"v_add_u32 v{VW}, s5, v{VW}")
    a("s_lshl_b32 s6, s3, 10")
    a(f"s_add_u32 s69, s6, {KV+2048}")
    a("s_lshl_b32 s5, s4, 15")
    a("s_add_u32 s68, s5, s6")
    a("s_cmp_eq_u32 s4, 0")
    a("s_cselect_b32 s14, -1, 0")
    a("s_cselect_b32 s15, 0, -1")
    a(f"s_cselect_b32 s66, 0, {NS*4096}")
    a("s_movk_i32 s65, 2048")
    a("s_lshl_b32 s65, s65, s4")
    rot_setup(a, 1, 3072)
    def loadW(st):
        if st == NS: a("s_sub_u32 s68, s68, s66")
        a("s_mov_b32 m0, s68")
        a("s_add_u32 s68, s68, s65")
        a(f"buffer_load_dwordx4 v{VW}, s[48:51], s64 offen lds")
        a(f"s_add_u32 m0, s69, {(st % NS)*4096}")
        a("s_mov_b64 exec, s[14:15]")
        a(f"buffer_load_dwordx4 v{VW3}, s[48:51], s64 offen lds")
        a("s_mov_b64 exec, -1")
        a(f"s_add_u32 s64, s64, {32*3072}")
        if st % 2 == 1:
            for i in w_wrap(3072): a(i)
    tr_base(a, RW, 0)
    a(f"v_add_u32 v{RW2}, {KV}, v{RW}")
    for i in range(48): a(f"v_mov_b32 v{ACC+i}, 0")
    a("v_lshlrev_b32 v2, 4, v1")
    W0 = int(E("W0", "0"))
    if E("NONCE_OLD"):
        get_nonce(a, 240)
        for st in range(NS): loadW(st)
    else:
        a("v_mov_b32 v241, 0")
        a("buffer_load_dword v240, v241, s[56:59], 0 offen sc1")
        a("s_waitcnt vmcnt(0)")
        for st in range(NS): loadW(st)
        a("v_readfirstlane_b32 s83, v240")
        a("s_nop 3")
        a("s_cmp_lg_u32 s83, 0")
        a("s_cbranch_scc1 g1A_nonce")
        get_nonce(a, 240)
        a.label("g1A_nonce")
    poll_xn(a, 240)
    stamp(a, 1)
    XA = int(E("XA", "12"))
    q = VMQ(a)
    def loadX(ks):
        if ks and ks % 4 == 0:
            for i in X_ADV: a(i)
        a(f"buffer_load_dwordx4 v[{XN+4*ks}:{XN+4*ks+3}], v2, s[36:39], s72 offen offset:{(ks%4)*1024} sc1")
        q.issue(("x", ks))
    for ks in range(XA): loadX(ks)
    def rd(ks):
        st, kk = ks // 2, ks % 2
        o = (st % NS) * 4096 + kk * 1024
        out = []
        for u in range(2):
            r = WF + (ks % 4) * 8 + u * 4
            out.append(f"ds_read_b64_tr_b16 v[{r}:{r+1}], v{RW2} offset:{o+u*2048}")
            out.append(f"ds_read_b64_tr_b16 v[{r+2}:{r+3}], v{RW2} offset:{o+u*2048+256}")
        return out
    for i in rd(0) + rd(1): a(i)
    for ks in range(32):
        if ks == 10:
            a("s_barrier")
            for st in range(NS, 16):
                loadW(st); q.issue("w"); q.issue("w")
        if ks + XA < 32: loadX(ks + XA)
        if ks == 22:
            q.wait(["w", ("x", ks)])
            a("s_barrier")
        else:
            q.wait([("x", ks)])
        a(f"s_waitcnt lgkmcnt({4 if ks < 31 else 0})")
        RL = rd(ks + 2) if ks + 2 < 32 else []
        x, w = XN + 4 * ks, WF + (ks % 4) * 8
        mfma(a, ACC + 16, w, x, ACC + 16)
        for i in RL[:2]: a(i)
        mfma(a, ACC + 32, x, w + 4, ACC + 32)
        for i in RL[2:]: a(i)
    stamp(a, 2)
    def rdq(ks):
        r = 48 + (ks % 4) * 4
        a(f"ds_read_b64_tr_b16 v[{r}:{r+1}], v{RW} offset:{ks*1024}")
        a(f"ds_read_b64_tr_b16 v[{r+2}:{r+3}], v{RW} offset:{ks*1024+256}")
    for ks in range(3): rdq(ks)
    P = 16
    a("v_lshrrev_b32 v11, 5, v1")
    a("v_lshlrev_b32 v12, 4, v1")
    a("v_bfe_u32 v13, v1, 4, 1")
    a("v_lshlrev_b32 v13, 16, v13")
    a("v_lshl_add_u32 v13, v11, 8, v13")
    a("v_and_b32 v14, 15, v1")
    a("v_lshl_add_u32 v13, v14, 4, v13")
    a("s_lshl_b32 s3, s42, 17")
    a("s_lshl_b32 s4, s43, 10")
    a("s_add_u32 s3, s3, s4")
    a(f"s_add_u32 s6, s3, {WS_KH}")
    a(f"s_add_u32 s7, s3, {WS_KH+65536}")
    a(f"s_add_u32 s8, s3, {WS_VT}")
    for i in range(8): a(f"v_cvt_pk_bf16_f32 v{P+8+i}, v{ACC+16+2*i}, v{ACC+17+2*i}")
    a(f"buffer_store_dwordx4 v[{P+8}:{P+11}], v12, s[36:39], s6 offen sc1")
    a(f"buffer_store_dwordx4 v[{P+12}:{P+15}], v12, s[36:39], s7 offen sc1")
    for i in range(8): a(f"v_cvt_pk_bf16_f32 v{P+16+i}, v{ACC+32+2*i}, v{ACC+33+2*i}")
    a(f"buffer_store_dwordx4 v[{P+16}:{P+19}], v13, s[36:39], s8 offen sc1")
    a(f"buffer_store_dwordx4 v[{P+20}:{P+23}], v13, s[36:39], s8 offen offset:512 sc1")
    a("s_lshl_b32 s4, s42, 8")
    a("s_lshl_b32 s5, s43, 2")
    a("s_add_u32 s4, s4, s5")
    a(f"s_add_u32 s4, s4, {F1}")
    a(f"s_mov_b32 s9, {f2h(QSCALE)}")
    for ks in range(32):
        if ks == 14:
            publish(a, "s4", 240)
            if E("PR2"): a("s_setprio 0")
            stamp(a, 3)
        if ks + 3 < 32: rdq(ks + 3)
        a(f"s_waitcnt lgkmcnt({2*min(3, 31-ks)})")
        mfma(a, ACC, 48 + (ks % 4) * 4, XN + 4 * ks, ACC)
    QL = KV + 5 * 4096
    a("s_lshl_b32 s3, s40, 11")
    a("v_add_u32 v14, s3, v12")
    a.nop(12)
    for i in range(16): a(f"v_mul_f32 v{ACC+i}, s9, v{ACC+i}")
    for i in range(8): a(f"v_cvt_pk_bf16_f32 v{P+i}, v{ACC+2*i}, v{ACC+2*i+1}")
    a(f"ds_write_b128 v14, v[{P}:{P+3}] offset:{QL}")
    a(f"ds_write_b128 v14, v[{P+4}:{P+7}] offset:{QL+1024}")
    a("s_waitcnt lgkmcnt(0)")
    a("s_barrier")
    return QL

def gemm1B(a):
    NU, R, PITCH, SB, NLD = 7, 4, 3584, 14336, 6
    VW, VW3, RW, RM, RM2 = 6, 7, 8, 9, 10
    XN, WF, ACC = 12, 44, 100
    ln_load(a)
    a("s_and_b32 s3, s40, 1")
    a("s_lshr_b32 s4, s40, 1")
    a("v_lshrrev_b32 v16, 2, v1")
    a("v_and_b32 v17, 3, v1")
    a(f"v_mul_u32_u24 v{VW}, {PITCH}, v16")
    a(f"v_lshl_add_u32 v{VW}, v17, 4, v{VW}")
    a("s_cmp_eq_u32 s4, 0")
    a("s_cselect_b32 s48, s24, s26")
    a("s_cselect_b32 s49, s25, s27")
    a(f"s_mov_b32 s50, {512*3584}")
    a("s_mov_b32 s51, 0x00020000")
    a("s_mul_i32 s64, s42, 224")
    a(f"s_mul_i32 s5, s3, {16*PITCH}")
    a("s_add_u32 s64, s64, s5")
    a("s_lshl_b32 s5, s4, 11")
    a("s_lshl_b32 s6, s3, 10")
    a("s_add_u32 s68, s5, s6")
    a("s_lshl_b32 s5, s4, 10")
    a("s_add_u32 s5, s5, 12288")
    a("s_add_u32 s6, s68, 8192")
    a("s_cmp_eq_u32 s3, 0")
    a("s_cselect_b32 s71, s5, s6")
    a("s_cselect_b64 s[14:15], -1, 1")
    a("s_and_b32 s7, s42, 1")
    a("s_lshl_b32 s8, s7, 5")
    a(f"v_add_u32 v{VW}, s8, v{VW}")
    a("s_cmp_eq_u32 s7, 0")
    a("s_cselect_b32 s8, 192, 0")
    a("v_lshrrev_b32 v18, 1, v1")
    a("s_lshl_b32 s9, s4, 2")
    a("v_xor_b32 v18, s9, v18")
    a(f"v_mul_u32_u24 v18, {PITCH}, v18")
    a("v_and_b32 v19, 1, v1")
    a("v_lshl_add_u32 v18, v19, 4, v18")
    a("v_add_u32 v18, s8, v18")
    a(f"v_add_u32 v19, 128, v{VW}")
    a("s_cmp_eq_u32 s3, 0")
    a("s_cselect_b64 vcc, -1, 0")
    a(f"v_cndmask_b32 v{VW3}, v19, v18, vcc")
    def wlist(slot):
        o = slot * SB
        g = []
        for i in range(3):
            g.append(([f"s_add_u32 m0, s68, {o+i*(4096-64)}"], f"buffer_load_dwordx4 v{VW}, s[48:51], s64 offen offset:{64*i} lds", []))
        g.append(([f"s_add_u32 m0, s71, {o}"], f"s_mov_b64 exec, s[14:15]\nbuffer_load_dwordx4 v{VW3}, s[48:51], s64 offen lds\ns_mov_b64 exec, -1",
                  [f"s_add_u32 s64, s64, {32*PITCH}"] + (w_wrap(PITCH) if slot % 2 == 1 else [])))
        return g
    def xlist(slot):
        g = []
        for kk in range(2):
            r = XN + (2 * slot + kk) * 4
            g.append(([], f"buffer_load_dwordx4 v[{r}:{r+3}], v2, s[36:39], s72 offen offset:{((2*slot+kk)%4)*1024} sc1",
                      X_ADV if (kk == 1 and slot % 2 == 1) else []))
        return g
    def emit(g):
        for pre, ins, post in g:
            for i in pre: a(i)
            if pre: a("s_nop 0")
            a(ins)
            for i in post: a(i)
    rot_setup(a, 0, PITCH)
    ln_addr(a)
    a("s_waitcnt vmcnt(0)")
    ln_compute(a, 3 * SB)
    for st in range(R - 1):
        for i in wlist(st)[3][2]: a(i)
    a("s_branch g1B_pro")
    a.label("ln_done")
    srd(a, 52, 24, 512 * 3584)
    a("v_lshrrev_b32 v18, 1, v1")
    a(f"v_mul_u32_u24 v18, {PITCH}, v18")
    a("v_and_b32 v20, 1, v1")
    a("v_lshl_add_u32 v18, v20, 4, v18")
    a("v_add_u32 v18, s8, v18")
    a("s_sub_u32 s69, s68, 2048")
    a("s_add_u32 s6, s69, 8192")
    a("s_and_b32 s3, s40, 1")
    a("s_cmp_eq_u32 s3, 0")
    a("s_cselect_b32 s70, 12288, s6")
    a("s_cselect_b64 vcc, -1, 0")
    a("v_cndmask_b32 v11, v19, v18, vcc")
    for st in range(R - 1):
        o = st * SB
        for i in range(3):
            a(f"s_add_u32 m0, s69, {o+i*(4096-64)}")
            a("s_nop 0")
            a(f"buffer_load_dwordx4 v{VW}, s[52:55], s64 offen offset:{64*i} lds")
        a(f"s_add_u32 m0, s70, {o}")
        a("s_mov_b64 exec, s[14:15]")
        a("buffer_load_dwordx4 v11, s[52:55], s64 offen lds")
        a("s_mov_b64 exec, -1")
        emit(wlist(st))
    if E("WPF"):
        a("v_min_u32 v18, 55, v1")
        a("v_lshlrev_b32 v18, 4, v18")
        a("s_bfe_u32 s3, s2, 0x20001")
        a("s_mul_i32 s3, s3, 896")
        a("s_bfe_u32 s4, s2, 0x50003")
        a(f"s_mul_i32 s4, s4, {16*PITCH}")
        a("s_add_u32 s3, s3, s4")
        a("s_cmp_eq_u32 s40, 3")
        a("s_cselect_b32 s52, s48, s52")
        a("s_cselect_b32 s53, s49, s53")
        for r_ in range(16):
            a("buffer_load_dwordx4 v[248:251], v18, s[52:55], s3 offen")
            if r_ < 15: a(f"s_add_u32 s3, s3, {PITCH}")
    a.label("g1B_pro")
    stamp(a, 1)
    if E("LNONLY"): a("s_endpgm")
    tr_base(a, RW, 0)
    a("v_lshlrev_b32 v21, 2, v20")
    a("v_xor_b32 v21, v21, v18")
    a(f"v_lshlrev_b32 v{RM}, 5, v21")
    a(f"v_lshl_add_u32 v{RM}, v20, 10, v{RM}")
    a(f"v_lshl_add_u32 v{RM}, v19, 3, v{RM}")
    a(f"v_add_u32 v{RM}, 12288, v{RM}")
    a(f"v_xor_b32 v{RM2}, 128, v{RM}")
    for i in range(NU * 16): a(f"v_mov_b32 v{ACC+i}, 0")
    a(f"s_setprio {'1' if E('PR2') else E('PB1', '0')}")
    poll_xn(a, 240)
    for st in range(R - 1): emit(xlist(st))
    def rd_w(kk, slot, u):
        b, o = WF + kk * 28 + u * 4, slot * SB
        if u == 6:
            return [f"ds_read_b64_tr_b16 v[{b}:{b+1}], v{RM} offset:{o+kk*512}", f"ds_read_b64_tr_b16 v[{b+2}:{b+3}], v{RM2} offset:{o+kk*512}"]
        return [f"ds_read_b64_tr_b16 v[{b}:{b+1}], v{RW} offset:{o+u*2048+kk*1024}", f"ds_read_b64_tr_b16 v[{b+2}:{b+3}], v{RW} offset:{o+u*2048+kk*1024+256}"]
    def body(slot, ld, vmw, last=False):
        LL = (wlist((slot + 3) % 4) + xlist((slot + 3) % 4)) if ld else []
        li = 0
        for kk in range(2):
            if kk == 1 and not last:
                a(f"s_waitcnt vmcnt({vmw})")
                a("s_barrier")
            x = XN + (2 * slot + kk) * 4
            for u in range(NU):
                nxt = rd_w(1, slot, u) if kk == 0 else ([] if last else rd_w(0, (slot + 1) % 4, u))
                if u % 2 == 0:
                    rest = max(0, 2 * (NU - 2 - u))
                    a(f"s_waitcnt lgkmcnt({rest + (2*u if (kk == 0 or not last) else 0)})")
                l = LL[li] if (ld and kk == 1 and u >= 1) else None
                if l:
                    for i in l[0]: a(i)
                mfma(a, ACC + u * 16, WF + kk * 28 + u * 4, x, ACC + u * 16)
                for i in nxt: a(i)
                if l:
                    a(l[1])
                    for i in l[2]: a(i)
                    li += 1
    stamp(a, 3 if E("BSTAMP") else 7)
    if E("LNST"):
        dump_stamps(a, 6)
        a("s_endpgm")
    a0 = a
    class Filt:
        def __call__(self, s):
            if E("NODMA") and " lds" in s: return
            if E("NOX") and "sc1" in s: return
            if E("NOMFMA") and "v_mfma" in s: return
            if E("NOWRD") and "ds_read_b64_tr" in s: return
            if E("NOBAR") and "s_barrier" in s: return
            a0(s)
        def __getattr__(self, n): return getattr(a0, n)
    a = Filt()
    a("s_waitcnt vmcnt(4)")
    a("s_barrier")
    for u in range(NU):
        for i in rd_w(0, 0, u): a(i)
    body(0, True, 2)
    body(1, True, NLD)
    body(2, True, NLD)
    body(3, True, NLD)
    if E("BITER"):
        stamp(a, 4)
        for it in range(2):
            for slot in range(4): body(slot, True, NLD)
            stamp(a, 5 + it)
    else:
        a("s_mov_b32 s75, 2")
        a.raw(".p2align 6")
        a.label("g1B_loop")
        for slot in range(4): body(slot, True, NLD)
        a("s_sub_u32 s75, s75, 1")
        a("s_cmp_lg_u32 s75, 0")
        a("s_cbranch_scc1 g1B_loop")
    body(0, True, NLD)
    body(1, False, NLD)
    body(2, False, 0)
    body(3, False, 0, last=True)
    a = a0
    stamp(a, 2)
    a("s_barrier")
    return lambda: gemm1B_epilogue(a, ACC)

def gemm1B_epilogue(a, ACC):
    T, P = 212, 44
    a("v_lshlrev_b32 v2, 4, v1")
    a("s_mul_i32 s3, s43, 144")
    a("s_mul_i32 s4, s42, 7")
    a("s_add_u32 s3, s3, s4")
    a("s_add_u32 s3, s3, 32")
    a("s_and_b32 s7, s42, 1")
    a("s_add_u32 s4, s3, s7")
    a("s_cmp_eq_u32 s7, 0")
    a("s_cselect_b32 s5, 6, 0")
    a("s_add_u32 s5, s3, s5")
    a("s_lshl_b32 s4, s4, 10")
    a(f"s_add_u32 s4, s4, {WS_AF}")
    a("s_lshl_b32 s5, s5, 10")
    a(f"s_add_u32 s5, s5, {WS_AF}")
    a(f"s_add_u32 s6, s4, 4096")
    a(f"s_mov_b32 s9, {f2h(-LOG2E)}")
    a("s_mov_b32 s8, s9")
    a("s_mov_b32 s10, 1.0")
    a("s_mov_b32 s11, 1.0")
    pr = lambda r: f"v[{r}:{r+1}]"
    def silu_mul(g, u_, n, dst):
        for i in range(0, n, 2): a(f"v_pk_mul_f32 {pr(T+i)}, {pr(g+i)}, s[8:9]")
        for i in range(n): a(f"v_exp_f32 v{T+i}, v{T+i}")
        for i in range(0, n, 2): a(f"v_pk_mul_f32 {pr(g+i)}, {pr(g+i)}, {pr(u_+i)}")
        for i in range(0, n, 2): a(f"v_pk_add_f32 {pr(T+i)}, {pr(T+i)}, s[10:11]")
        for i in range(n): a(f"v_rcp_f32 v{T+i}, v{T+i}")
        a("s_nop 0")
        for i in range(0, n, 2): a(f"v_pk_mul_f32 {pr(g+i)}, {pr(g+i)}, {pr(T+i)}")
        for i in range(n // 2): a(f"v_cvt_pk_bf16_f32 v{dst+i}, v{g+2*i}, v{g+2*i+1}")
    NHI = int(E("NHI", "0"))
    if NHI: a("s_setprio 2")
    for p in range(3):
        if NHI and p == NHI: a("s_setprio 0")
        silu_mul(ACC + 32 * p, ACC + 32 * p + 16, 16, P + 8 * p)
        so, im = ("s4", 2048 * p) if p < 2 else ("s6", 0)
        a(f"buffer_store_dwordx4 v[{P+8*p}:{P+8*p+3}], v2, s[36:39], {so} offen offset:{im} sc1")
        a(f"buffer_store_dwordx4 v[{P+8*p+4}:{P+8*p+7}], v2, s[36:39], {so} offen offset:{im+1024} sc1")
    if NHI == 3: a("s_setprio 0")
    silu_mul(ACC + 96, ACC + 104, 8, P + 24)
    a(f"buffer_store_dwordx4 v[{P+24}:{P+27}], v2, s[36:39], s5 offen sc1")
    a("s_lshl_b32 s4, s43, 6")
    a("s_lshl_b32 s5, s42, 2")
    a("s_add_u32 s4, s4, s5")
    a(f"s_add_u32 s4, s4, {FH}")
    publish(a, "s4", T)
    stamp(a, 3)

RESCALE_T = 30
BIAS = int(E("BIAS", "88"))
def attention(a, QL):
    name = "at"
    Q = {"A": 4, "B": 8}
    NEG = {"A": 16, "B": 32}
    S = {"A": 48, "B": 64}
    O = {"A": 80, "B": 96}
    P = {"A": 112, "B": 120}
    RING, T0 = 128, 160
    NR = 2
    TP = 2112
    GB = 8 * TP
    Kf = lambda s: RING + 12 * s
    V0 = lambda s: RING + 12 * s + 4
    V1 = lambda s: RING + 12 * s + 8
    AK, AV0, AV1, VD = 2, 3, 12, 13
    mf = lambda d, x, y, c: mfma(a, d, x, y, c)
    a(f"v_mov_b32 v{VD}, v12")
    a("s_lshr_b32 s3, s40, 1")
    a("s_lshl_b32 s60, s42, 1")
    a("s_add_u32 s60, s60, s3")
    a("s_cmp_eq_u32 s3, 0")
    a("s_cselect_b64 vcc, -1, 0")
    for i in range(4): a(f"v_cndmask_b32 v{Kf(1)+i}, v{28+i}, v{24+i}, vcc")
    a("s_and_b32 s4, s40, 1")
    a("s_lshl_b32 s61, s41, 1")
    a("s_add_u32 s61, s61, s4")
    a("s_lshl_b32 s5, s4, 12")
    a("s_lshl_b32 s6, s3, 10")
    a("s_add_u32 s5, s5, s6")
    a(f"v_add_u32 v2, s5, v{VD}")
    a(f"ds_read_b128 v[{Q['A']}:{Q['A']+3}], v2 offset:{QL}")
    a(f"ds_read_b128 v[{Q['B']}:{Q['B']+3}], v2 offset:{QL+2048}")
    a("s_lshl_b32 s5, s60, 16")
    a(f"s_add_u32 s5, s5, {WS_KH}")
    a("s_add_u32 s44, s34, s5")
    a("s_addc_u32 s45, s35, 0")
    a("s_mov_b32 s46, 65536")
    a("s_mov_b32 s47, 0x00020000")
    a(f"s_add_u32 s48, s44, {WS_VT-WS_KH}")
    a("s_addc_u32 s49, s45, 0")
    a("s_mov_b32 s50, 65536")
    a("s_mov_b32 s51, 0x00020000")
    a("s_cmp_eq_u32 s4, 0")
    a("s_cselect_b32 s52, s44, s48")
    a("s_cselect_b32 s53, s45, s49")
    a("s_mov_b32 s54, 65536")
    a("s_mov_b32 s55, 0x00020000")
    a(f"s_mul_i32 s70, s3, {2*GB}")
    a("s_lshl_b32 s71, s4, 10")
    a("s_add_u32 s71, s71, s70")
    a("v_and_b32 v14, 31, v1")
    a("v_lshrrev_b32 v15, 5, v1")
    a(f"v_add_u32 v{AK}, s70, v{VD}")
    a(f"v_lshlrev_b32 v{AV0}, 8, v15")
    a(f"v_lshl_add_u32 v{AV0}, v14, 4, v{AV0}")
    a(f"v_add_u32 v{AV0}, 1024, v{AV0}")
    a(f"v_add_u32 v{AV1}, 512, v{AV0}")
    a(f"v_mov_b32 v{T0}, 2064")
    a(f"v_mov_b32 v{T0+1}, 2048")
    a("v_cmp_eq_u32 vcc, 16, v14")
    a(f"v_mov_b32 v{T0+4}, 0x3f803f80")
    a(f"v_and_b32 v{T0+2}, 1, v1")
    a(f"v_cndmask_b32 v{T0}, v{T0}, v{T0+1}, vcc")
    a("v_cmp_gt_u32 vcc, 16, v14")
    a(f"v_lshrrev_b32 v{T0+3}, 1, v1")
    a(f"v_mul_u32_u24 v{T0+3}, {TP}, v{T0+3}")
    a(f"v_cndmask_b32 v{AV0}, v{T0}, v{AV0}, vcc")
    a(f"v_cndmask_b32 v{AV1}, v{T0}, v{AV1}, vcc")
    a(f"v_add_u32 v{AV0}, s70, v{AV0}")
    a(f"v_add_u32 v{AV1}, s70, v{AV1}")
    a(f"v_cmp_eq_u32 vcc, 0, v{T0+2}")
    a(f"v_lshl_add_u32 v{T0+3}, v{T0+2}, 4, v{T0+3}")
    a("s_lshl_b32 s4, s42, 8")
    a(f"v_cndmask_b32 v{T0+4}, 0, v{T0+4}, vcc")
    for i in range(1, 4): a(f"v_mov_b32 v{T0+4+i}, v{T0+4}")
    for X in "AB":
        for i in range(16): a(f"v_mov_b32 v{O[X]+i}, 0")
        for i in range(8): a(f"v_mov_b32 v{P[X]+i}, 0")
    for i in range(4): a(f"v_mov_b32 v{V1(1)+i}, 0")
    a(f"s_mov_b32 s64, {f2h(2.0**RESCALE_T)}")
    a("s_mov_b32 s65, 0")
    a(f"s_add_u32 s4, s4, {F1}")
    a("s_waitcnt lgkmcnt(0)")
    a("s_barrier")
    a(f"ds_write_b128 v{T0+3}, v[{T0+4}:{T0+7}] offset:2048")
    for X in "AB": mf(S[X], Kf(1), Q[X], None)
    a.nop(14)
    for X in "AB":
        m = T0 + 8
        a(f"v_max3_f32 v{m}, v{S[X]}, v{S[X]+1}, v{S[X]+2}")
        for i in range(3, 15, 2):
            a(f"v_max3_f32 v{m}, v{m}, v{S[X]+i}, v{S[X]+i+1}")
        a(f"v_max_f32 v{m}, v{m}, v{S[X]+15}")
        a(f"v_mov_b32 v{m+1}, v{m}")
        a("s_nop 1")
        a(f"v_permlane32_swap_b32 v{m+1}, v{m}")
        a("s_nop 1")
        a(f"v_max_f32 v{m}, v{m}, v{m+1}")
        for i in range(16):
            a(f"v_sub_f32 v{NEG[X]+i}, {f2h(-float(BIAS))}, v{m}")
    poll(a, "s4", 64, T0)
    stamp(a, 4)
    a("s_setprio 2" if E("PR2") else "s_setprio 1")
    a("s_and_b32 s66, s41, 7")
    a("s_lshl_b32 s66, s66, 13")
    def dma(t, bufoff):
        a(f"s_add_u32 m0, {bufoff}, {t*TP - (t%4)*1024}")
        return f"buffer_load_dwordx4 v{VD}, s[52:55], {'s66' if t < 4 else 's68'} offen offset:{(t%4)*1024} sc1 lds"
    def next_group():
        a("s_add_u32 s66, s66, 8192")
        a("s_and_b32 s66, s66, 65535")
    a(f"s_add_u32 s72, s71, {GB}")
    a("s_add_u32 s68, s66, 4096")
    for t in range(8):
        i = dma(t, "s71")
        a("s_nop 0")
        a(i)
    next_group()
    a("s_add_u32 s68, s66, 4096")
    i = dma(0, "s72")
    a("s_nop 0")
    a(i)
    a("s_waitcnt vmcnt(1) lgkmcnt(0)")
    a("s_barrier")
    def reads(slot, t):
        a(f"ds_read_b128 v[{Kf(slot)}:{Kf(slot)+3}], v{AK} offset:{t*TP}")
        a(f"ds_read_b128 v[{V0(slot)}:{V0(slot)+3}], v{AV0} offset:{t*TP}")
        a(f"ds_read_b128 v[{V1(slot)}:{V1(slot)+3}], v{AV1} offset:{t*TP}")
    reads(0, 0)
    a("s_waitcnt lgkmcnt(0)")
    mf(S["A"], Kf(0), Q["A"], NEG["A"])
    a("s_mov_b32 s67, 8")
    a(f"s_mov_b32 s73, {GB}")
    a("s_and_b32 s74, s41, 7")
    a("s_add_u32 s74, s74, 2")
    a.nop(8)
    if E("ATST"): stamp(a, 4)
    a.raw(".p2align 6")
    a.label(f"{name}_loop")
    def half(X, tt):
        Y = "B" if X == "A" else "A"
        x, p = S[X], P[X]
        e = lambda i: a(f"v_exp_f32 v{x+i}, v{x+i}")
        c = lambda i: a(f"v_cvt_pk_bf16_f32 v{p+i}, v{x+2*i}, v{x+2*i+1}")
        e(0); e(1)
        ty = (tt - 1) % NR if X == "A" else tt % NR
        mf(O[Y], V1(ty), P[Y] + 4, O[Y])
        if X == "A":
            if tt == 7:
                a("s_waitcnt vmcnt(0)")
                a("s_barrier")
                a(f"v_add_u32 v{AK}, s73, v{AK}")
                a(f"v_add_u32 v{AV0}, s73, v{AV0}")
                a(f"v_add_u32 v{AV1}, s73, v{AV1}")
                a("s_sub_u32 s73, 0, s73")
                a("s_and_b32 s66, s74, 7")
                a("s_lshl_b32 s66, s66, 13")
                a("s_cmp_gt_u32 s67, 2")
                a("s_cselect_b32 s66, s66, s75")
                a("s_add_u32 s68, s66, 4096")
                a("s_add_u32 s74, s74, 1")
                reads((tt + 1) % NR, 0)
            else:
                reads((tt + 1) % NR, tt + 1)
        d = None
        k = {("B", 7): 0, ("A", 0): 1, ("B", 0): 2, ("A", 1): 3, ("B", 1): 4, ("A", 2): 5, ("B", 2): 6, ("A", 3): 7}.get((X, tt))
        e(2); e(3); c(0)
        if k is not None: d = dma(k, "s71" if k == 0 else "s72")
        e(4)
        if d: a(d)
        e(5); c(1)
        if X == "B":
            a("s_waitcnt lgkmcnt(0)")
        tk = tt % NR if X == "A" else (tt + 1) % NR
        mf(S[Y], Kf(tk), Q[Y], NEG[Y])
        e(6); e(7); c(2); e(8); c(3); e(9); e(10)
        mf(O[X], V0(tt % NR), p, O[X])
        c(4); e(11); e(12); c(5); e(13); e(14); e(15); c(6); c(7)
        if (X == "A" and tt == 5) or (X == "B" and tt == 5):
            a(f"v_cmp_nge_f32 vcc, s64, v{O[Y]+8}")
            a(f"s_cbranch_vccnz {name}_rare{Y}")
            a.label(f"{name}_ret{Y}")
    a("s_brev_b32 s75, 1")
    if E("PHASE"): a("s_nop 0")
    a0 = a
    class Filt:
        def __call__(self, s):
            if E("ATNOBAR") and "s_barrier" in s: return
            if E("ATNODMA") and " lds" in s: return
            if E("ATNORD") and "ds_read" in s: return
            if E("ATNOCHK") and ("v_cmp_nge" in s or "vccnz" in s): return
            a0(s)
        def __getattr__(self, n): return getattr(a0, n)
    a = Filt()
    for tt in range(8):
        half("A", tt)
        half("B", tt)
    a = a0
    a("s_mov_b32 s3, s71")
    a("s_mov_b32 s71, s72")
    a("s_mov_b32 s72, s3")
    a("s_sub_u32 s67, s67, 1")
    a("s_cmp_lg_u32 s67, 0")
    a(f"s_cbranch_scc1 {name}_loop")
    a("s_nop 1")
    mf(O["B"], V1(1), P["B"] + 4, O["B"])
    a("s_cmp_lg_u32 s65, 0")
    a(f"s_cbranch_scc1 {name}_safe")
    a.label(f"{name}_fin")
    stamp(a, 5)
    a.nop(14)
    a("s_mul_i32 s4, s61, 288")
    a("s_add_u32 s4, s4, s60")
    a("s_lshl_b32 s4, s4, 10")
    a(f"s_add_u32 s4, s4, {WS_AF}")
    a(f"s_add_u32 s5, s4, {144*1024}")
    a("v_lshlrev_b32 v12, 4, v1")
    for X in "AB":
        l = O[X] + 8
        a(f"v_mov_b32 v{T0}, v{l}")
        a("s_nop 1")
        a(f"v_permlane32_swap_b32 v{T0}, v{l}")
        a("s_nop 1")
        a(f"v_mul_f32 v{T0+2+(X=='B')}, 0, v{T0}")
        a(f"v_rcp_f32 v{T0}, v{T0}")
        a("s_nop 0")
        for i in range(8):
            a(f"v_mul_f32 v{O[X]+i}, v{O[X]+i}, v{T0}")
        for i in range(4):
            a(f"v_cvt_pk_bf16_f32 v{P[X]+i}, v{O[X]+2*i}, v{O[X]+2*i+1}")
        a(f"buffer_store_dwordx4 v[{P[X]}:{P[X]+3}], v12, s[36:39], {'s4' if X=='A' else 's5'} offen sc1")
    for X in "AB":
        for i in range(8):
            a(f"v_fma_f32 v{T0+2+(X=='B')}, v{O[X]+i}, 0, v{T0+2+(X=='B')}")
    a(f"v_cmp_u_f32 vcc, v{T0+2}, v{T0+3}")
    a("s_cmp_eq_u32 s65, 0")
    a("s_cselect_b64 s[4:5], vcc, 0")
    a("s_cmp_lg_u64 s[4:5], 0")
    a(f"s_cbranch_scc1 {name}_safe")
    a("s_lshl_b32 s4, s61, 7")
    a("s_lshl_b32 s5, s60, 2")
    a("s_add_u32 s4, s4, s5")
    a(f"s_add_u32 s4, s4, {FO}")
    publish(a, "s4", T0)
    dump_stamps(a, 6)
    a("s_endpgm")
    for Y in "AB":
        a.label(f"{name}_rare{Y}")
        a.nop(16)
        l = O[Y] + 8
        a(f"v_mov_b32 v{T0+2}, 0x207")
        a(f"v_cmp_class_f32 vcc, v{l}, v{T0+2}")
        a("s_cmp_lg_u64 vcc, 0")
        a("s_cselect_b32 s65, 1, s65")
        a(f"s_cbranch_scc1 {name}_ret{Y}")
        if E("CNTSAFE"):
            a(f"v_mov_b32 v{T0}, 1")
            a(f"v_mov_b32 v{T0+1}, 0")
            a("s_mov_b64 exec, 1")
            a(f"buffer_atomic_add v{T0}, v{T0+1}, s[56:59], 0 offen offset:16")
            a("s_mov_b64 exec, -1")
            a("s_nop 1")
        a(f"v_max_f32 v{T0}, 0x00800000, v{l}")
        a(f"v_frexp_exp_i32_f32 v{T0}, v{T0}")
        a(f"v_add_u32 v{T0}, {BIAS}, v{T0}")
        a(f"v_max_i32 v{T0}, 0, v{T0}")
        a(f"v_mov_b32 v{T0+1}, v{T0}")
        a("s_nop 1")
        a(f"v_permlane32_swap_b32 v{T0}, v{T0+1}")
        a("s_nop 1")
        a(f"v_cvt_f32_i32 v{T0+1}, v{T0}")
        a(f"v_sub_u32 v{T0}, 0, v{T0}")
        for i in range(9): a(f"v_ldexp_f32 v{O[Y]+i}, v{O[Y]+i}, v{T0}")
        for i in range(16): a(f"v_sub_f32 v{NEG[Y]+i}, v{NEG[Y]+i}, v{T0+1}")
        for i in range(16): a(f"v_sub_f32 v{S[Y]+i}, v{S[Y]+i}, v{T0+1}")
        a("s_nop 1")
        a(f"s_branch {name}_ret{Y}")
    a.label(f"{name}_safe")
    a("s_waitcnt vmcnt(0) lgkmcnt(0)")
    a.nop(16)
    if E("CNTSAFE"):
        a("v_mov_b32 v14, 1")
        a("v_mov_b32 v15, s65")
        a("v_lshlrev_b32 v15, 2, v15")
        a("s_mov_b64 exec, 1")
        a("buffer_atomic_add v14, v15, s[56:59], 0 offen offset:4")
        a("s_mov_b64 exec, -1")
    a("s_mov_b32 s65, 2")
    a("v_and_b32 v14, 31, v1")
    a("v_lshrrev_b32 v15, 5, v1")
    a("v_lshlrev_b32 v3, 8, v15")
    a("v_lshl_add_u32 v3, v14, 4, v3")
    a("v_mov_b32 v15, 0x3f803f80")
    a("v_cmp_eq_u32 vcc, 16, v14")
    a("s_mov_b32 s62, 0x0000ffff")
    a("s_mov_b32 s63, 0x0000ffff")
    a("v_cndmask_b32 v15, 0, v15, vcc")
    for i in range(8): a(f"v_mov_b32 v{V0(0)+i}, v15")
    def loads(slot, soff, imm):
        a(f"buffer_load_dwordx4 v[{Kf(slot)}:{Kf(slot)+3}], v{VD}, s[44:47], {soff} offen offset:{imm} sc1")
        a("s_mov_b64 exec, s[62:63]")
        a(f"buffer_load_dwordx4 v[{V0(slot)}:{V0(slot)+3}], v3, s[48:51], {soff} offen offset:{imm} sc1")
        a(f"buffer_load_dwordx4 v[{V1(slot)}:{V1(slot)+3}], v3, s[48:51], {soff} offen offset:{imm+512} sc1")
        a("s_mov_b64 exec, -1")
    M = {"A": NEG["A"], "B": NEG["B"]}
    for X in "AB":
        for i in range(16): a(f"v_mov_b32 v{O[X]+i}, 0")
        a(f"v_mov_b32 v{M[X]}, 0xff800000")
    a("s_mov_b32 s66, 0")
    a("s_mov_b32 s67, 64")
    a.label(f"{name}_sloop")
    loads(0, "s66", 0)
    a("s_waitcnt vmcnt(0)")
    for X in "AB":
        mf(S[X], Kf(0), Q[X], None)
    a.nop(16)
    for X in "AB":
        x, p, m = S[X], P[X], M[X]
        a(f"v_max3_f32 v{T0}, v{x}, v{x+1}, v{x+2}")
        for i in range(3, 15, 2):
            a(f"v_max3_f32 v{T0}, v{T0}, v{x+i}, v{x+i+1}")
        a(f"v_max_f32 v{T0}, v{T0}, v{x+15}")
        a(f"v_mov_b32 v{T0+1}, v{T0}")
        a("s_nop 1")
        a(f"v_permlane32_swap_b32 v{T0+1}, v{T0}")
        a("s_nop 1")
        a(f"v_max3_f32 v{T0}, v{T0}, v{T0+1}, v{m}")
        a(f"v_sub_f32 v{T0+1}, v{m}, v{T0}")
        a(f"v_exp_f32 v{T0+1}, v{T0+1}")
        a(f"v_mov_b32 v{m}, v{T0}")
        for i in range(9): a(f"v_mul_f32 v{O[X]+i}, v{O[X]+i}, v{T0+1}")
        for i in range(16): a(f"v_sub_f32 v{x+i}, v{x+i}, v{T0}")
        for i in range(16): a(f"v_exp_f32 v{x+i}, v{x+i}")
        a("s_nop 0")
        for i in range(8): a(f"v_cvt_pk_bf16_f32 v{p+i}, v{x+2*i}, v{x+2*i+1}")
        a("s_nop 1")
        mf(O[X], V0(0), p, O[X])
        mf(O[X], V1(0), p + 4, O[X])
    a.nop(16)
    a("s_add_u32 s66, s66, 1024")
    a("s_sub_u32 s67, s67, 1")
    a("s_cmp_lg_u32 s67, 0")
    a(f"s_cbranch_scc1 {name}_sloop")
    a(f"s_branch {name}_fin")

def gemm2(a0, middle):
    class Filt:
        def __call__(self, s):
            if E("G2NOMFMA") and "v_mfma" in s: return
            if E("G2NOLD") and ("buffer_load_dwordx4" in s): return
            if E("G2NORD") and ("ds_read_b64_tr" in s): return
            a0(s)
        def __getattr__(self, n): return getattr(a0, n)
    a = Filt()
    D, NH, NK = 8, 28, 36
    ACC, AR, WF = 64, 128, 32
    a("s_and_b32 s3, s2, 7")
    a("s_bfe_u32 s4, s2, 0x50003")
    a("s_lshl_b32 s5, s3, 2")
    a("s_and_b32 s6, s4, 3")
    a("s_add_u32 s12, s5, s6")
    a("s_lshr_b32 s13, s4, 2")
    srd(a, 44, 20, 512 * 1024)
    srd(a, 48, 28, 1792 * 1024)
    a(f"s_mul_i32 s53, s40, {NH*16384}")
    a("s_lshl_b32 s52, s40, 17")
    a("s_mul_i32 s54, s12, 288")
    a(f"s_mul_i32 s5, s40, {NH}")
    a("s_add_u32 s5, s5, s54")
    a("s_add_u32 s5, s5, 32")
    a("s_lshl_b32 s5, s5, 10")
    a(f"s_add_u32 s60, s5, {WS_AF}")
    a(f"s_add_u32 s61, s60, {144*1024}")
    a("s_lshl_b32 s5, s40, 3")
    a("s_add_u32 s5, s5, s54")
    a("s_lshl_b32 s5, s5, 10")
    a(f"s_add_u32 s62, s5, {WS_AF}")
    a(f"s_add_u32 s63, s62, {144*1024}")
    a(f"s_mul_i32 s56, s40, {D*2048}")
    a("s_and_b32 s5, s12, 3")
    a("s_lshl_b32 s5, s5, 1")
    a("s_add_u32 s5, s5, s13")
    a("s_cmp_ge_u32 s5, 7")
    a("s_cselect_b32 s6, 7, 0")
    a("s_sub_u32 s5, s5, s6")
    if E("NOHROT"): a("s_mov_b32 s5, 0")
    a("s_lshl_b32 s6, s5, 16")
    a("s_add_u32 s53, s53, s6")
    a("s_lshl_b32 s6, s5, 12")
    a("s_add_u32 s60, s60, s6")
    a("s_add_u32 s61, s61, s6")
    a("s_sub_u32 s64, 7, s5")
    a("s_mov_b32 s65, s64")
    a("v_lshlrev_b32 v2, 4, v1")
    a("v_lshrrev_b32 v3, 5, v1")
    a("v_lshlrev_b32 v4, 2, v3")
    a("v_bfe_u32 v5, v1, 2, 2")
    a("v_add_u32 v4, v4, v5")
    a("v_lshlrev_b32 v4, 10, v4")
    a("v_bfe_u32 v6, v1, 4, 1")
    a("v_lshl_add_u32 v4, v6, 6, v4")
    a("v_and_b32 v7, 3, v1")
    a("v_lshl_add_u32 v4, v7, 4, v4")
    a("s_lshl_b32 s57, s13, 7")
    a("v_add_u32 v4, s57, v4")
    a("v_add_u32 v9, 8192, v4")
    a("v_lshlrev_b32 v8, 9, v3")
    a("v_lshl_add_u32 v8, v5, 6, v8")
    a("v_lshl_add_u32 v8, v6, 5, v8")
    a("v_lshl_add_u32 v8, v7, 3, v8")
    a("v_add_u32 v8, s56, v8")
    q = VMQ(a)
    def loadW(i):
        s = i % D
        sr_, so = ("s[48:51]", "s53") if i < NH else ("s[44:47]", "s52")
        a(f"s_add_u32 m0, s56, {s*2048}")
        a("s_nop 0")
        a(f"buffer_load_dwordx4 v4, {sr_}, {so} offen lds"); q.issue(("W", i))
        a(f"s_add_u32 m0, s56, {s*2048+1024}")
        a("s_nop 0")
        a(f"buffer_load_dwordx4 v9, {sr_}, {so} offen lds"); q.issue(("W", i))
        a(f"s_add_u32 {so}, {so}, 16384")
        if i < NH and i % 4 == 3:
            a("s_sub_u32 s64, s64, 1")
            a("s_cmp_eq_u32 s64, 0")
            a(f"s_cselect_b32 s6, {NH*16384}, 0")
            a("s_sub_u32 s53, s53, s6")
    def loadA(i):
        r = AR + (i % D) * 8
        j = i if i < NH else i - NH
        s0, s1 = ("s60", "s61") if i < NH else ("s62", "s63")
        a(f"buffer_load_dwordx4 v[{r}:{r+3}], v2, s[36:39], {s0} offen offset:{(j%4)*1024} sc1"); q.issue(("A", i))
        a(f"buffer_load_dwordx4 v[{r+4}:{r+7}], v2, s[36:39], {s1} offen offset:{(j%4)*1024} sc1"); q.issue(("A", i))
        if j % 4 == 3:
            a(f"s_add_u32 {s0}, {s0}, 4096")
            a(f"s_add_u32 {s1}, {s1}, 4096")
            if i < NH:
                a("s_sub_u32 s65, s65, 1")
                a("s_cmp_eq_u32 s65, 0")
                a(f"s_cselect_b32 s6, {NH*1024}, 0")
                a("s_sub_u32 s60, s60, s6")
                a("s_sub_u32 s61, s61, s6")
    for i in range(D): loadW(i)
    if E("DPF"):
        a("s_bfe_u32 s4, s2, 0x50003")
        a("s_lshl_b32 s4, s4, 2")
        a("s_add_u32 s4, s4, s40")
        a("s_mul_i32 s5, s4, 14336")
        a("s_lshl_b32 s4, s4, 12")
        for r_ in range(14):
            if r_ and r_ % 4 == 0: a("s_add_u32 s5, s5, 4096")
            a(f"buffer_load_dwordx4 v[12:15], v2, s[48:51], s5 offen offset:{(r_%4)*1024}")
        for r_ in range(4):
            a(f"buffer_load_dwordx4 v[12:15], v2, s[44:47], s4 offen offset:{r_*1024}")
    middle()
    a("s_lshl_b32 s66, s12, 7")
    a(f"s_add_u32 s4, s66, {FH}")
    a(f"s_setprio {'1' if E('PR2') else E('PB2', '0')}")
    poll(a, "s4", 32, 12); q.drained()
    stamp(a, 4)
    for i in range(D): loadA(i)
    def rd(i):
        s = i % D
        for u in range(2):
            b = WF + (i % 2) * 8 + u * 4
            a(f"ds_read_b64_tr_b16 v[{b}:{b+1}], v8 offset:{s*2048+u*256}")
            a(f"ds_read_b64_tr_b16 v[{b+2}:{b+3}], v8 offset:{s*2048+1024+u*256}")
    rd(0)
    for i in range(NK):
        if i == NH:
            a(f"s_add_u32 s4, s66, {FO}")
            stamp(a, 5)
            poll(a, "s4", 32, 12); q.drained()
            stamp(a, 6)
            for j in range(NH, NK): loadA(j)
        tags = [("A", i)] + ([("W", i + 1)] if i + 1 < NK else [])
        tags = [t for t in tags if t in q.q]
        if tags: q.wait(tags)
        if i + 1 < NK:
            rd(i + 1)
            a("s_waitcnt lgkmcnt(4)")
        else:
            a("s_waitcnt lgkmcnt(0)")
        r = AR + (i % D) * 8
        for t in range(2):
            for u in range(2):
                w = WF + (i % 2) * 8 + u * 4
                d = ACC + (t * 2 + u) * 16
                mfma(a, d, w, r + 4 * t, d if i > 0 else None)
        if i + D < NK:
            loadW(i + D)
            if i + D < NH: loadA(i + D)
    PITCH = 272
    a("s_setprio 3")
    a("s_barrier")
    a("v_and_b32 v9, 31, v1")
    a(f"v_mul_u32_u24 v9, {PITCH}, v9")
    a("v_lshl_add_u32 v9, v3, 4, v9")
    a(f"s_mul_i32 s56, s40, {64*PITCH}")
    a("v_add_u32 v9, s56, v9")
    a("v_lshrrev_b32 v10, 3, v0")
    a("v_and_b32 v11, 7, v0")
    a("s_lshl_b32 s57, s12, 6")
    a("v_add_u32 v12, s57, v10")
    a("v_lshlrev_b32 v12, 10, v12")
    a("v_lshl_add_u32 v12, v11, 4, v12")
    a("s_lshl_b32 s57, s13, 7")
    a("v_add_u32 v12, s57, v12")
    srd(a, 44, 16, 2048 * 1024)
    srd(a, 48, 30, 2048 * 1024)
    a("s_mov_b32 s58, 32768")
    a("buffer_load_dwordx4 v[16:19], v12, s[44:47], 0 offen")
    a("buffer_load_dwordx4 v[20:23], v12, s[44:47], s58 offen")
    for t in range(2):
        for u in range(2):
            d = ACC + (t * 2 + u) * 16
            for j in range(4):
                a(f"ds_write_b128 v9, v[{d+4*j}:{d+4*j+3}] offset:{t*32*PITCH + u*128 + j*32}")
    a(f"v_mul_u32_u24 v13, {PITCH}, v10")
    a("v_lshl_add_u32 v13, v11, 5, v13")
    a("s_waitcnt lgkmcnt(0)")
    a("s_barrier")
    for it in range(2):
        for w in range(4):
            b = AR + (it * 4 + w) * 8
            off = w * 64 * PITCH + it * 32 * PITCH
            a(f"ds_read_b128 v[{b}:{b+3}], v13 offset:{off}")
            a(f"ds_read_b128 v[{b+4}:{b+7}], v13 offset:{off+16}")
    a("s_waitcnt vmcnt(0)")
    for it in range(2):
        xs = 16 + 4 * it
        for i in range(4):
            a(f"v_lshlrev_b32 v{24+it*8+2*i}, 16, v{xs+i}")
            a(f"v_and_b32 v{25+it*8+2*i}, 0xffff0000, v{xs+i}")
    for it in range(2):
        a(f"s_waitcnt lgkmcnt({8*(1-it)})")
        for w in range(4):
            b = AR + (it * 4 + w) * 8
            for i in range(8):
                a(f"v_add_f32 v{24+it*8+i}, v{24+it*8+i}, v{b+i}")
        for i in range(4):
            a(f"v_cvt_pk_bf16_f32 v{40+it*4+i}, v{24+it*8+2*i}, v{25+it*8+2*i}")
        a(f"buffer_store_dwordx4 v[{40+it*4}:{43+it*4}], v12, s[48:51], {'0' if it==0 else 's58'} offen{E('OUTF', '')}")
    dump_stamps(a, 7)
    a("s_endpgm")

def gen(a):
    a.raw(f".globl {NAME}")
    a.raw(".p2align 8")
    a.raw(f".type {NAME},@function")
    a.label(NAME)
    a("s_cmp_ge_u32 s2, 512")
    a(f"s_cbranch_scc1 {NAME}_done")
    a("s_load_dwordx16 s[16:31], s[0:1], 0")
    a("s_load_dwordx4 s[32:35], s[0:1], 64")
    a("s_memrealtime s[10:11]")
    a("v_and_b32 v1, 63, v0")
    a("v_lshrrev_b32 v2, 6, v0")
    a("s_and_b32 s3, s2, 7")
    a("v_readfirstlane_b32 s40, v2")
    a("s_bfe_u32 s4, s2, 0x50003")
    a("s_and_b32 s5, s3, 1")
    a("s_lshl_b32 s5, s5, 3")
    a("s_and_b32 s6, s4, 7")
    a("s_add_u32 s41, s5, s6")
    a("s_lshr_b32 s5, s3, 1")
    a("s_lshl_b32 s5, s5, 2")
    a("s_lshr_b32 s6, s4, 3")
    a("s_add_u32 s42, s5, s6")
    if E("CODEPF"):
        a("s_getpc_b64 s[52:53]")
        a.label("pf_pc")
        a(f"s_sub_u32 s52, s52, pf_pc-{NAME}")
        a("s_subb_u32 s53, s53, 0")
        a(f"s_mov_b32 s54, {NAME}_done-{NAME}")
        a("s_mov_b32 s55, 0x00020000")
        a("s_lshr_b32 s7, s2, 3")
        a("s_lshl_b32 s7, s7, 12")
        a("v_lshlrev_b32 v3, 4, v0")
        a("buffer_load_dwordx4 v[248:251], v3, s[52:55], s7 offen")
    a("s_waitcnt lgkmcnt(0)")
    stamp(a, 0)
    srd(a, 36, 34, WS_NREC)
    srd(a, 56, 32, 256)
    a("s_cmp_ge_u32 s2, 256")
    a(f"s_cbranch_scc1 {NAME}_B")
    a("s_setprio 3" if E("PR2") else "s_setprio 2")
    a("s_or_b32 s3, s2, s40")
    a("s_cmp_lg_u32 s3, 0")
    a(f"s_cbranch_scc1 {NAME}_A")
    a("s_or_b32 s10, s10, 1")
    a("v_mov_b32 v2, s10")
    a("v_mov_b32 v3, 0")
    a("s_mov_b64 exec, 1")
    a("buffer_store_dword v2, v3, s[56:59], 0 offen sc1")
    a("s_mov_b64 exec, -1")
    a("s_waitcnt vmcnt(0)")
    a.label(f"{NAME}_A")
    if E("ONLY_B"): a("s_endpgm")
    QL = gemm1A(a)
    if E("ONLY_G1"):
        dump_stamps(a, 7 if E("ITER") else 4)
        a("s_endpgm")
    attention(a, QL)
    a.label(f"{NAME}_B")
    if E("ONLY_A"): a("s_endpgm")
    a("s_setprio 3")
    epi = gemm1B(a)
    gemm2(a, epi)
    a.label(f"{NAME}_done")
    a("s_endpgm")

if __name__ == "__main__":
    out = sys.argv[1] if len(sys.argv) > 1 else "v3.s"
    a = Asm()
    gen(a)
    for p in check_hazards(a.lines, NAME): print("HAZARD", p, file=sys.stderr)
    txt = HEADER + ("; @launch grid=(512,1,1) block=(256,1,1) lds=81920\n" if E("FINAL") else f"; @launch kernel={NAME} grid=(512,1,1) block=(256,1,1) lds=81920\n") + '.amdgcn_target "amdgcn-amd-amdhsa--gfx950"\n.text\n' + a.text()
    txt += f""".section .rodata,"a"
.p2align 6
.amdhsa_kernel {NAME}
  .amdhsa_next_free_vgpr 256
  .amdhsa_next_free_sgpr 102
  .amdhsa_accum_offset 256
  .amdhsa_group_segment_fixed_size 0
  .amdhsa_kernarg_size 80
  .amdhsa_user_sgpr_count 2
  .amdhsa_user_sgpr_kernarg_segment_ptr 1
  .amdhsa_system_sgpr_workgroup_id_x 1
.end_amdhsa_kernel
"""
    open(out, "w").write(txt)
```
